```python
import torch

def _softmax(x, axis=-1):
    return torch.softmax(x, dim=axis)
def _gelu(x):
    return torch.nn.functional.gelu(x, approximate="tanh")
def _silu(x):
    return torch.nn.functional.silu(x)
def _sigmoid(x):
    return torch.sigmoid(x)
def _layernorm(x, axis=-1, eps=1e-5):
    m = x.mean(dim=axis, keepdim=True)
    v = x.var(dim=axis, keepdim=True, unbiased=False)
    return (x - m) / torch.sqrt(v + eps)
def _scatter_add(tgt, idx, src, axis=0):
    return tgt.clone().index_add_(axis, idx, src)
def _segment_sum(src, seg, n):
    out = torch.zeros((n,) + src.shape[1:], dtype=src.dtype)
    return out.index_add_(0, seg, src)
def _pad(x, pw):
    flat = tuple(v for pair in reversed(pw) for v in pair)
    return torch.nn.functional.pad(x, flat)

kernel_name = 'gated_mix__gqa_block_cached__glu_gated_glu__decode'

def setup_inputs():

    _w = (lambda a: (lambda t: t.to(torch.bfloat16) if t.is_floating_point() else t)(torch.as_tensor(a)))
    def _A_setup():
        B, Sq, D = 2, 1, 512
        Hq, Hkv, Sk, Dh = 32, 8, 16384, 128
        assert Hq % Hkv == 0, (Hq, Hkv)
        return {
            "x": _w((lambda *s: torch.randn(*s, dtype=torch.bfloat16) * 0.05)(B, Sq, D)),
            "k_cache": _w((lambda *s: torch.randn(*s, dtype=torch.bfloat16) * 6.4)(B, Hkv, Sk, Dh)),
            "v_cache": _w((lambda *s: torch.randn(*s, dtype=torch.bfloat16) * 1.6)(B, Hkv, Sk, Dh)),
            "wq": _w((lambda *s: torch.randn(*s, dtype=torch.bfloat16) * 6.4)(D, Hq * Dh) * (D ** -0.5)),
            "wo": _w((lambda *s: torch.randn(*s, dtype=torch.bfloat16) * 1.6)(Hq * Dh, D) * ((Hq * Dh) ** -0.5)),
        }
    _A_in = _A_setup()

    def _B_setup():
        B, S, D, F = 2, 1, 512, 1792
        return {
            "x": _w((lambda *s: torch.randn(*s, dtype=torch.bfloat16) * 0.05)(B, S, D)),
            "w_gate": _w((lambda *s: torch.randn(*s, dtype=torch.bfloat16) * 1.6)(D, F)),
            "w_up": _w((lambda *s: torch.randn(*s, dtype=torch.bfloat16) * 0.05)(D, F)),
            "w_down": _w((lambda *s: torch.randn(*s, dtype=torch.bfloat16) * 0.05)(F, D)),
        }
    _B_in = _B_setup()

    return {
        "A_x": _A_in["x"],
        "A_k_cache": _A_in["k_cache"],
        "A_v_cache": _A_in["v_cache"],
        "A_wq": _A_in["wq"],
        "A_wo": _A_in["wo"],
        "B_x": _B_in["x"],
        "B_w_gate": _B_in["w_gate"],
        "B_w_up": _B_in["w_up"],
        "B_w_down": _B_in["w_down"],
        "gate_w": _w((lambda *s: torch.randn(*s, dtype=torch.bfloat16) * 0.05)(512) * 16.0),
    }

def reference(A_x, A_k_cache, A_v_cache, A_wq, A_wo, B_x, B_w_gate, B_w_up, B_w_down, gate_w):
    def _A_ref(x, k_cache, v_cache, wq, wo):
        B, Sq, D = x.shape
        Hq, Dh = 32, 128
        Hkv = k_cache.shape[1]
        rep = Hq // Hkv
        q = (lambda x, *d: x.permute(*d))((x @ wq).reshape(B, Sq, Hq, Dh), 0, 2, 1, 3)
        k = (lambda x, n, axis: torch.repeat_interleave(x, n, dim=axis))(k_cache, rep, axis=1)
        v = (lambda x, n, axis: torch.repeat_interleave(x, n, dim=axis))(v_cache, rep, axis=1)
        scores = torch.einsum("bhqd,bhkd->bhqk", q, k) * (Dh ** -0.5)
        p = _softmax(scores, axis=-1)
        o = torch.einsum("bhqk,bhkd->bhqd", p, v)
        return (lambda x, *d: x.permute(*d))(o, 0, 2, 1, 3).reshape(B, Sq, Hq * Dh) @ wo

    def _B_ref(x, w_gate, w_up, w_down):
        g = torch.einsum("bsd,df->bsf", x, w_gate)
        u = torch.einsum("bsd,df->bsf", x, w_up)
        h = _sigmoid(g) * u
        return torch.einsum("bsf,fd->bsd", h, w_down)

    x = A_x
    g = _sigmoid((x * gate_w).sum(-1, keepdims=True))
    a = _A_ref(x, A_k_cache, A_v_cache, A_wq, A_wo)
    b = _B_ref(x, B_w_gate, B_w_up, B_w_down)
    return g * a + (1 - g) * b
```

```python
import sys, struct
NAME = "gated_mix__gqa_block_cached__glu_gated_glu__decode"

def f2u(x): return struct.unpack("<I", struct.pack("<f", x))[0]

WS_EPOCH = 0
WS_QG = 0x1000
WS_ML = 0x20000
WS_OP = 0x100000
WS_YP = 0x200000
WS_STAMP = 0x400000
WS_USED = 0x500000
LDS_A = 0
LDS_Q = 8192
LDS_M = 9216
LDS_L = 9344
HFS = 1152
WVS = 2304
LDS_O = 9472
LDS_Y = LDS_O + 8 * WVS
LDS_END = LDS_Y + 8 * WVS

class VM:
    def __init__(self): self.ops = []
    def issue(self, name, counted=True): self.ops.append((name, counted))
    def after(self, name):
        idx = max(i for i, (n, c) in enumerate(self.ops) if n == name)
        return sum(1 for n, c in self.ops[idx + 1:] if c)

def gen(depth=8, pol="nt", wpol="nt", order="inter", wo_pos="tail", stamp=False, q_at=5, ml_at=6, h_at=4,
        outpol="", stpol="sc1", ldpol="sc1", spin=200000, header=None):
    L = []
    def A(s):
        for line in s.strip("\n").split("\n"):
            L.append("    " + line.strip() if not line.strip().endswith(":") else line.strip())
    vm = VM()
    nst = [0]
    def ST(name=None):
        if not stamp: return
        A("s_memrealtime s[%d:%d]" % (70 + 2 * nst[0], 71 + 2 * nst[0])); nst[0] += 1
    def wait(name):
        n = vm.after(name)
        assert n <= 63
        A("s_waitcnt vmcnt(%d)" % n)
    def pace():
        A("s_waitcnt vmcnt(%d)" % max(0, depth - 4))
    lab = [0]
    def newlabel(p):
        lab[0] += 1; return "L_%s%d" % (p, lab[0])

    vL, vKO, vVO = 1, 2, 3
    vSP = 4
    vG = 8
    vT = 9
    vW = 14
    Q0, O0, AX0 = 16, 16, 24
    S0 = 32
    YA = 48
    def Kreg(t): return 128 + 16 * t
    def Vreg(t): return 64 + 16 * t if t < 4 else 128 + 16 * (t - 4)
    sK, sV, sW, sWS, sWO, sWD = 32, 36, 40, 44, 48, 52
    sB, sREST, sTAG, sUNIT, sSTR = 30, 31, 56, 57, 58
    sKO, sVO = 66, 67
    tstep = 8 * 4096 if order == "inter" else 4096

    def issueK(t):
        for i in range(4):
            A("buffer_load_dwordx4 v[%d:%d], v%d, s[%d:%d], s%d offen offset:%d %s" % (Kreg(t) + 4 * i, Kreg(t) + 4 * i + 3, vKO, sK, sK + 3, sKO, 64 * i, pol))
            vm.issue("K%d" % t)
        if t < 7: A("s_add_u32 s%d, s%d, %d" % (sKO, sKO, tstep))
    def issueV(t):
        for i in range(4):
            A("buffer_load_dwordx4 v[%d:%d], v%d, s[%d:%d], s%d offen offset:%d %s" % (Vreg(t) + 4 * i, Vreg(t) + 4 * i + 3, vVO, sV, sV + 3, sVO, 1024 * i, pol))
            vm.issue("V%d" % t)
        if t < 7: A("s_add_u32 s%d, s%d, %d" % (sVO, sVO, tstep))

    def dpp(op, d, a, b, ctrl):
        A("%s_dpp v%d, v%d, v%d %s row_mask:0xf bank_mask:0xf" % (op, d, a, b, ctrl))
    def xrows(op, x, t):
        A("v_mov_b32 v%d, v%d\ns_nop 1\nv_permlane16_swap_b32 v%d, v%d\n%s v%d, v%d, v%d" % (t, x, t, x, op, x, t, x))
        A("v_mov_b32 v%d, v%d\ns_nop 1\nv_permlane32_swap_b32 v%d, v%d\n%s v%d, v%d, v%d" % (t, x, t, x, op, x, t, x))

    def retry(loads, tagregs, label_ok=None):
        lo, ld = newlabel("spin"), newlabel("done")
        A("s_mov_b64 s[60:61], exec\ns_mov_b32 s62, 0")
        cmpn(tagregs)
        A("s_and_b64 exec, exec, vcc\ns_cbranch_scc0 %s" % ld)
        A("%s:" % lo)
        for s in loads: A(s)
        A("s_add_u32 s62, s62, 1\ns_cmp_gt_u32 s62, %d\ns_cbranch_scc1 L_bail" % spin)
        A("s_waitcnt vmcnt(0)")
        cmpn(tagregs)
        A("s_and_b64 exec, exec, vcc\ns_cbranch_scc1 %s" % lo)
        A("%s:" % ld)
        A("s_mov_b64 exec, s[60:61]")
    def cmpn(tagregs):
        A("v_cmp_ne_u32 vcc, s%d, v%d" % (sTAG, tagregs[0]))
        for r in tagregs[1:]:
            A("v_cmp_ne_u32 s[68:69], s%d, v%d\ns_or_b64 vcc, vcc, s[68:69]" % (sTAG, r))

    def tail_prep():
        A("v_lshlrev_b32 v10, 4, v%d\ns_mul_i32 s63, s3, %d\nv_add_u32 v10, s63, v10" % (vL, WVS))
        A("v_lshrrev_b32 v11, 2, v%d\nv_lshlrev_b32 v15, 12, v11\nv_lshlrev_b32 v11, 4, v11\nv_bfe_u32 v12, v%d, 1, 1\nv_mul_u32_u24 v12, %d, v12" % (vL, vL, HFS))
        A("v_and_b32 v13, 1, v%d\nv_lshlrev_b32 v13, 3, v13\nv_add3_u32 v11, v11, v12, v13" % vL)
        A("s_lshl_b32 s63, s3, 8\nv_add_u32 v11, s63, v11")
        A("s_lshl_b32 s96, s%d, 7\ns_add_u32 s96, s96, s%d\ns_lshl_b32 s96, s96, 12\ns_lshl_b32 s63, s3, 10\ns_add_u32 s96, s96, s63\ns_add_u32 s96, s96, %d" % (sB, sREST, WS_OP))
        A("v_and_b32 v12, 3, v%d\nv_lshl_add_u32 v15, v12, 3, v15" % vL)
        A("s_lshl_b32 s97, s%d, 7\ns_and_b32 s64, s%d, 0x70\ns_add_u32 s97, s97, s64\ns_lshl_b32 s97, s97, 12\ns_and_b32 s64, s%d, 15\ns_lshl_b32 s64, s64, 8\ns_add_u32 s97, s97, s64\ns_lshl_b32 s64, s3, 5\ns_add_u32 s97, s97, s64\ns_add_u32 s97, s97, %d" % (sB, sREST, sREST, WS_OP))
        A("v_mov_b32 v61, s%d\nv_mov_b32 v63, s%d" % (sTAG, sTAG))
    def lds_reduce_publish(src, ldsbase):
        lskip = newlabel("nopub")
        A("ds_write_b128 v10, v[%d:%d] offset:%d\nds_write_b128 v10, v[%d:%d] offset:%d" % (src, src + 3, ldsbase, src + 4, src + 7, ldsbase + HFS))
        A("s_waitcnt lgkmcnt(0)\ns_barrier")
        A("s_cmp_ge_u32 s3, 4\ns_cbranch_scc1 %s" % lskip)
        for w in range(8):
            A("ds_read_b64 v[%d:%d], v11 offset:%d" % (64 + 2 * w, 65 + 2 * w, ldsbase + w * WVS))
        A("s_waitcnt lgkmcnt(6)\nv_add_f32 v64, v64, v66\nv_add_f32 v65, v65, v67")
        A("s_waitcnt lgkmcnt(4)\nv_add_f32 v68, v68, v70\nv_add_f32 v69, v69, v71")
        A("s_waitcnt lgkmcnt(2)\nv_add_f32 v72, v72, v74\nv_add_f32 v73, v73, v75\nv_add_f32 v64, v64, v68\nv_add_f32 v65, v65, v69")
        A("s_waitcnt lgkmcnt(0)\nv_add_f32 v76, v76, v78\nv_add_f32 v77, v77, v79")
        A("v_add_f32 v72, v72, v76\nv_add_f32 v73, v73, v77\nv_add_f32 v60, v64, v72\nv_add_f32 v62, v65, v73")
        A("buffer_store_dwordx4 v[60:63], v%d, s[%d:%d], s96 offen %s" % (vVO, sWS, sWS + 3, stpol))
        vm.issue("pub", counted=False)
        A("%s:" % lskip)

    hdr = header or ""
    L.append(hdr + "; @launch grid=(256,1,1) block=(512,1,1) lds=%d" % LDS_END)
    L.append('.amdgcn_target "amdgcn-amd-amdhsa--gfx950"\n.text\n.globl %s_kernel\n.p2align 8\n.type %s_kernel,@function\n%s_kernel:' % (NAME, NAME, NAME))
    A("s_cmp_ge_u32 s2, 256\ns_cbranch_scc1 L_end")
    A("s_load_dwordx16 s[4:19], s[0:1], 0\ns_load_dwordx8 s[20:27], s[0:1], 64\ns_load_dwordx2 s[28:29], s[0:1], 96")
    ST("start")
    A("v_lshrrev_b32 v9, 6, v0\nv_and_b32 v%d, 63, v0\nv_readfirstlane_b32 s3, v9" % vL)
    A("s_bfe_u32 s%d, s2, 0x10003" % sB)
    A("s_and_b32 s%d, s2, 7\ns_lshr_b32 s59, s2, 4\ns_lshl_b32 s59, s59, 3\ns_or_b32 s%d, s%d, s59" % (sREST, sREST, sREST))
    A("s_lshl_b32 s%d, s%d, 1\ns_or_b32 s%d, s%d, s%d" % (sUNIT, sREST, sUNIT, sUNIT, sB))
    A("v_lshrrev_b32 v10, 4, v%d\nv_and_b32 v11, 15, v%d" % (vL, vL))
    A("v_and_b32 v12, 3, v11\nv_lshlrev_b32 v12, 10, v12\nv_lshrrev_b32 v13, 2, v11\nv_lshl_add_u32 v12, v13, 8, v12\nv_lshl_add_u32 v%d, v10, 4, v12" % vKO)
    A("v_lshlrev_b32 v%d, 4, v%d" % (vVO, vL))
    if order == "inter": A("s_lshl_b32 s%d, s3, 12" % sKO)
    else: A("s_lshl_b32 s%d, s3, 15" % sKO)
    A("s_mov_b32 s%d, s%d" % (sVO, sKO))
    A("s_lshl_b32 s59, s%d, 7\ns_add_u32 s59, s59, s%d\ns_lshl_b32 s59, s59, 18" % (sB, sREST))
    A("s_movk_i32 s%d, 3584\ns_cmp_lt_u32 s%d, 128\ns_cselect_b32 s%d, 8192, s%d" % (sSTR, sUNIT, sSTR, sSTR))
    A("s_lshl_b32 s63, s%d, 4\nv_mul_u32_u24 v12, s63, v10\nv_lshl_add_u32 v12, v11, 2, v12" % sSTR)
    A("v_bfe_u32 v13, v11, 1, 1\nv_lshlrev_b32 v13, 10, v13\nv_lshl_add_u32 v13, v10, 5, v13\ns_lshl_b32 s63, s3, 7\nv_add_u32 v13, s63, v13")
    A("s_mul_i32 s63, s3, s%d\ns_lshl_b32 s63, s63, 6" % sSTR)
    A("s_waitcnt lgkmcnt(0)")
    A("s_load_dword s%d, s[28:29], %d" % (sTAG, WS_EPOCH))
    A("s_sub_u32 s64, s%d, 128\ns_cmp_lt_u32 s%d, 128\ns_cselect_b32 s64, s%d, s64\ns_cselect_b32 s%d, s10, s16\ns_cselect_b32 s%d, s11, s17" % (sUNIT, sUNIT, sUNIT, sW, sW + 1))
    A("s_sub_u32 s65, s%d, 184\ns_cmp_ge_u32 s%d, 184\ns_cselect_b32 s64, s65, s64\ns_cselect_b32 s%d, s18, s%d\ns_cselect_b32 s%d, s19, s%d" % (sUNIT, sUNIT, sW, sW, sW + 1, sW + 1))
    A("s_lshl_b32 s64, s64, 6\ns_add_u32 s%d, s%d, s64\ns_addc_u32 s%d, s%d, 0" % (sW, sW, sW + 1, sW + 1))
    A("s_mul_i32 s%d, s%d, 511\ns_add_u32 s%d, s%d, 64\ns_mov_b32 s%d, 0x20000" % (sW + 2, sSTR, sW + 2, sW + 2, sW + 3))
    A("s_add_u32 s%d, s6, s59\ns_addc_u32 s%d, s7, 0\ns_mov_b32 s%d, 0x40000\ns_mov_b32 s%d, 0x20000" % (sK, sK + 1, sK + 2, sK + 3))
    A("s_cmp_ge_u32 s%d, 240\ns_cbranch_scc1 L_noA1" % sUNIT)
    A("global_load_dwordx4 v[48:51], v13, s[4:5]\nglobal_load_dwordx4 v[52:55], v13, s[4:5] offset:16")
    vm.issue("X", False); vm.issue("X", False)
    for q in range(16):
        A("buffer_load_dword v%d, v12, s[%d:%d], s63 offen %s" % (32 + q, sW, sW + 3, wpol))
        vm.issue("W", False)
        if q < 15: A("s_add_u32 s63, s63, s%d" % sSTR)
    A("L_noA1:")
    issueK(0); issueK(1)
    A("s_add_u32 s%d, s8, s59\ns_addc_u32 s%d, s9, 0\ns_mov_b32 s%d, 0x40000\ns_mov_b32 s%d, 0x20000" % (sV, sV + 1, sV + 2, sV + 3))
    A("s_mov_b32 s%d, s28\ns_mov_b32 s%d, s29\ns_mov_b32 s%d, %d\ns_mov_b32 s%d, 0x20000" % (sWS, sWS + 1, sWS + 2, WS_USED, sWS + 3))
    A("s_mov_b32 s%d, s12\ns_mov_b32 s%d, s13\ns_mov_b32 s%d, 0x400000\ns_mov_b32 s%d, 0x20000" % (sWO, sWO + 1, sWO + 2, sWO + 3))
    A("s_mov_b32 s%d, s20\ns_mov_b32 s%d, s21\ns_mov_b32 s%d, 1835008\ns_mov_b32 s%d, 0x20000" % (sWD, sWD + 1, sWD + 2, sWD + 3))
    A("v_and_b32 v9, 1, v%d\nv_cmp_eq_u32 vcc, 1, v9\nv_mov_b32 v60, 0x0c0c0100\nv_mov_b32 v9, 0x01000c0c\nv_mov_b32 v61, 0x0c0c0302\nv_mov_b32 v15, 0x03020c0c" % vL)
    A("v_cndmask_b32 v60, v60, v9, vcc\nv_cndmask_b32 v61, v61, v15, vcc")
    A("v_and_b32 v9, 2, v%d\nv_cmp_eq_u32 vcc, 2, v9\nv_mov_b32 v15, 0x0c0c0c0c\ns_nop 0" % vL)
    A("v_cndmask_b32 v%d, v60, v15, vcc\nv_cndmask_b32 v%d, v15, v60, vcc\nv_cndmask_b32 v%d, v61, v15, vcc\nv_cndmask_b32 v%d, v15, v61, vcc" % (vSP, vSP + 1, vSP + 2, vSP + 3))
    A("s_waitcnt lgkmcnt(0)\ns_add_u32 s%d, s%d, 1" % (sTAG, sTAG))
    A("s_cmp_ge_u32 s%d, 240\ns_cbranch_scc1 L_noA2" % sUNIT)
    A("s_waitcnt vmcnt(24)")
    for q in range(16):
        A("v_perm_b32 v%d, v%d, v%d, v%d" % (64 + q, 48 + (q >> 1), 48 + (q >> 1), 60 + (q & 1)))
    for u in range(4):
        A("s_waitcnt vmcnt(%d)" % (8 + 12 - 4 * u))
        A("v_mfma_f32_16x16x32_bf16 v[56:59], v[%d:%d], v[%d:%d], %s" % (64 + 4 * u, 67 + 4 * u, 32 + 4 * u, 35 + 4 * u, "0" if u == 0 else "v[56:59]"))
    ST("W")
    A("s_lshl_b32 s63, s3, 10\nv_add_u32 v9, s63, v%d\ns_nop 6" % vVO)
    A("ds_write_b128 v9, v[56:59] offset:%d" % LDS_A)
    A("s_waitcnt lgkmcnt(0)\ns_barrier")
    A("s_cmp_lg_u32 s3, 0\ns_cbranch_scc1 L_noA2")
    A("v_lshlrev_b32 v9, 4, v11\nv_and_b32 v12, 1, v10\nv_lshl_add_u32 v9, v12, 3, v9")
    for w in range(8):
        A("ds_read_b64 v[%d:%d], v9 offset:%d" % (32 + 2 * w, 33 + 2 * w, LDS_A + 1024 * w))
    A("v_mul_u32_u24 v12, %d, v12\nv_lshl_add_u32 v12, v11, 3, v12" % (3840 * 8))
    A("s_lshl_b32 s63, s%d, 7\ns_add_u32 s63, s63, %d" % (sUNIT, WS_QG))
    A("s_waitcnt lgkmcnt(0)")
    for a, b in ((32, 34), (36, 38), (40, 42), (44, 46), (32, 36), (40, 44), (32, 40)):
        A("v_add_f32 v%d, v%d, v%d\nv_add_f32 v%d, v%d, v%d" % (a, a, b, a + 1, a + 1, b + 1))
    A("v_cvt_pk_bf16_f32 v32, v32, v33\nv_mov_b32 v33, s%d" % sTAG)
    A("s_mov_b32 exec_hi, 0")
    A("buffer_store_dwordx2 v[32:33], v12, s[%d:%d], s63 offen %s" % (sWS, sWS + 3, stpol))
    vm.issue("pubA", False)
    A("s_mov_b32 exec_hi, -1")
    A("L_noA2:")
    ST("pubA")
    qload = "buffer_load_dwordx2 v[12:13], v15, s[%d:%d], s63 offen %s" % (sWS, sWS + 3, ldpol)
    for t in range(2, 8):
        pace(); issueK(t)
        if t == 2:
            A("s_lshl_b32 s63, s%d, 10\nv_add_u32 v9, s63, v%d" % (sB, vVO))
            A("global_load_dwordx4 v[80:83], v9, s[4:5]\nglobal_load_dwordx4 v[84:87], v%d, s[22:23]" % vVO)
            vm.issue("xg"); vm.issue("xg")
        if t == 4:
            wait("xg")
            A("v_dot2_f32_bf16 v%d, v80, v84, 0" % vG)
            for i in range(1, 4): A("v_dot2_f32_bf16 v%d, v%d, v%d, v%d" % (vG, 80 + i, 84 + i, vG))
            A("s_nop 2")
            for c in ("quad_perm:[1,0,3,2]", "quad_perm:[2,3,0,1]", "row_half_mirror", "row_mirror"):
                dpp("v_add_f32", vG, vG, vG, c); A("s_nop 1")
            xrows("v_add_f32", vG, 9)
            A("v_mul_f32 v%d, 0x%08x, v%d\nv_exp_f32 v%d, v%d\ns_nop 0\nv_add_f32 v%d, 1.0, v%d\nv_rcp_f32 v%d, v%d" % (vG, f2u(-1.4426950408889634), vG, vG, vG, vG, vG, vG, vG))
        if t == q_at:
            A("v_and_b32 v15, 31, v%d\nv_lshlrev_b32 v15, 3, v15" % vL)
            A("s_mul_i32 s63, s%d, %d\ns_lshr_b32 s64, s%d, 4\ns_lshl_b32 s64, s64, 11\ns_add_u32 s63, s63, s64\ns_lshl_b32 s64, s3, 8\ns_add_u32 s63, s63, s64\ns_add_u32 s63, s63, %d" % (sB, 3840 * 8, sREST, WS_QG))
            A(qload); vm.issue("qg")
    pace(); issueV(0)
    wait("qg")
    ST("qg")
    retry([qload], [13])
    A("v_lshrrev_b32 v15, 1, v15\ns_lshl_b32 s63, s3, 7\nv_add_u32 v15, s63, v15")
    A("ds_write_b32 v15, v12 offset:%d" % LDS_Q)
    A("v_lshrrev_b32 v9, 2, v11\nv_lshlrev_b32 v9, 8, v9\nv_lshl_add_u32 v9, v10, 4, v9")
    A("s_waitcnt lgkmcnt(0)\ns_barrier")
    for i in range(4):
        A("ds_read_b128 v[%d:%d], v9 offset:%d" % (Q0 + 4 * i, Q0 + 4 * i + 3, LDS_Q + 64 * i))
    pace(); issueV(1)
    A("s_waitcnt lgkmcnt(0)")
    ST("q")
    for t in range(8):
        wait("K%d" % t)
        for i in range(4):
            A("v_mfma_f32_16x16x32_bf16 v[%d:%d], v[%d:%d], v[%d:%d], %s" % (S0 + 4 * t, S0 + 4 * t + 3, Kreg(t) + 4 * i, Kreg(t) + 4 * i + 3, Q0 + 4 * i, Q0 + 4 * i + 3,
              "0" if i == 0 else "v[%d:%d]" % (S0 + 4 * t, S0 + 4 * t + 3)))
        if t == 3: pace(); issueV(2)
    pace(); issueV(3)
    A("v_max3_f32 v9, v32, v33, v34")
    for r in range(35, 59, 2): A("v_max3_f32 v9, v9, v%d, v%d" % (r, r + 1))
    A("v_max3_f32 v9, v9, v59, v60\nv_max3_f32 v9, v9, v61, v62\nv_max_f32 v9, v9, v63")
    xrows("v_max_f32", 9, 12)
    A("v_lshrrev_b32 v12, 2, v11\nv_lshlrev_b32 v12, 5, v12\ns_lshl_b32 s63, s3, 2\nv_add_u32 v13, s63, v12")
    A("ds_write_b32 v13, v9 offset:%d" % LDS_M)
    A("s_waitcnt lgkmcnt(0)\ns_barrier")
    A("ds_read_b128 v[16:19], v12 offset:%d\nds_read_b128 v[20:23], v12 offset:%d" % (LDS_M, LDS_M + 16))
    A("s_mov_b32 s65, 0x%08x" % f2u(128 ** -0.5 * 1.4426950408889634))
    A("s_waitcnt lgkmcnt(0)")
    A("v_max3_f32 v9, v16, v17, v18\nv_max3_f32 v9, v9, v19, v20\nv_max3_f32 v9, v9, v21, v22\nv_max_f32 v9, v9, v23")
    A("v_mul_f32 v9, s65, v9")
    for r in range(32, 64):
        A("v_fma_f32 v%d, v%d, s65, -v9" % (r, r))
    for r in range(32, 64):
        A("v_exp_f32 v%d, v%d" % (r, r))
    ST("exp")
    pace(); issueV(4)
    A("v_add_f32 v15, v32, v33\nv_add_f32 v14, v34, v35")
    for r in range(36, 64, 2): A("v_add_f32 v15, v15, v%d\nv_add_f32 v14, v14, v%d" % (r, r + 1))
    A("v_add_f32 v15, v15, v14")
    for t in range(8):
        A("v_cvt_pk_bf16_f32 v%d, v%d, v%d\nv_cvt_pk_bf16_f32 v%d, v%d, v%d" % (32 + 2 * t, 32 + 4 * t, 33 + 4 * t, 33 + 2 * t, 34 + 4 * t, 35 + 4 * t))
    xrows("v_add_f32", 15, 14)
    A("ds_write_b32 v13, v15 offset:%d" % LDS_L)
    A("s_waitcnt lgkmcnt(0)\ns_barrier")
    A("s_cmp_lg_u32 s3, 1\ns_cbranch_scc1 L_noML")
    A("ds_read_b128 v[16:19], v12 offset:%d\nds_read_b128 v[20:23], v12 offset:%d" % (LDS_L, LDS_L + 16))
    A("v_lshrrev_b32 v12, 1, v12\nv_bfe_u32 v13, v11, 1, 1\nv_lshl_add_u32 v12, v13, 6, v12")
    A("s_lshl_b32 s63, s%d, 7\ns_add_u32 s63, s63, s%d\ns_lshl_b32 s63, s63, 7\ns_add_u32 s63, s63, %d" % (sB, sREST, WS_ML))
    A("v_mov_b32 v24, v9\nv_mov_b32 v25, s%d\nv_mov_b32 v27, s%d" % (sTAG, sTAG))
    A("s_waitcnt lgkmcnt(0)")
    A("v_add_f32 v16, v16, v17\nv_add_f32 v18, v18, v19\nv_add_f32 v20, v20, v21\nv_add_f32 v22, v22, v23\nv_add_f32 v16, v16, v18\nv_add_f32 v20, v20, v22\nv_add_f32 v26, v16, v20")
    A("s_mov_b64 exec, 0x5555")
    A("buffer_store_dwordx4 v[24:27], v12, s[%d:%d], s63 offen %s" % (sWS, sWS + 3, stpol))
    vm.issue("pubML", False)
    A("s_mov_b64 exec, -1\ns_nop 0")
    A("L_noML:")
    ST("pubML")
    hl = ["buffer_load_dwordx2 v[200:201], v56, s[%d:%d], 0 offen %s" % (sWS, sWS + 3, ldpol),
          "buffer_load_dwordx2 v[202:203], v57, s[%d:%d], 0 offen %s" % (sWS, sWS + 3, ldpol)]
    mll = "buffer_load_dwordx4 v[204:207], v58, s[%d:%d], 0 offen %s" % (sWS, sWS + 3, ldpol)
    def issue_wo():
        A("s_lshl_b32 s63, s%d, 3\ns_add_u32 s63, s63, s3\ns_lshl_b32 s63, s63, 12" % sREST)
        for r in range(4):
            A("buffer_load_dwordx4 v[%d:%d], v%d, s[%d:%d], s63 offen offset:%d %s" % (208 + 4 * r, 211 + 4 * r, vVO, sWO, sWO + 3, 1024 * r, wpol))
            vm.issue("wo")
    def unpack_wo():
        for r in range(16):
            A("v_lshlrev_b32 v%d, 16, v%d\nv_and_b32 v%d, 0xffff0000, v%d" % (224 + 2 * r, 208 + r, 225 + 2 * r, 208 + r))
    def issue_side(t):
        if t == h_at:
            A("s_min_u32 s63, s3, 6\ns_mul_i32 s64, s%d, 7\ns_add_u32 s63, s63, s64\ns_mul_i32 s64, s%d, 3840\ns_add_u32 s63, s63, s64\ns_lshl_b32 s63, s63, 3" % (sREST, sB))
            A("s_add_u32 s63, s63, %d\nv_mov_b32 v56, s63\ns_add_u32 s63, s63, %d\nv_mov_b32 v57, s63" % (WS_QG + 2048 * 8, 896 * 8))
            A("s_mul_i32 s63, s%d, 7\ns_add_u32 s63, s63, s3\ns_lshl_b32 s63, s63, 11\ns_cmp_eq_u32 s3, 7\ns_cselect_b32 s63, 0x10000000, s63\nv_add_u32 v59, s63, v%d" % (sREST, vVO))
            for s in hl: A(s); vm.issue("hg")
            A("buffer_load_dwordx4 v[192:195], v59, s[%d:%d], 0 offen %s" % (sWD, sWD + 3, wpol)); vm.issue("wd")
            A("buffer_load_dwordx4 v[196:199], v59, s[%d:%d], 0 offen offset:1024 %s" % (sWD, sWD + 3, wpol)); vm.issue("wd")
        if t == ml_at:
            A("s_lshl_b32 s63, s%d, 7\ns_and_b32 s64, s%d, 0x70\ns_add_u32 s63, s63, s64\ns_lshl_b32 s63, s63, 7\ns_bfe_u32 s64, s%d, 0x20002\ns_lshl_b32 s64, s64, 4\ns_add_u32 s63, s63, s64\ns_add_u32 s63, s63, %d" % (sB, sREST, sREST, WS_ML))
            A("v_lshrrev_b32 v58, 2, v%d\nv_lshlrev_b32 v58, 7, v58\nv_add_u32 v58, s63, v58" % vL)
            A(mll); vm.issue("ml")
        if wo_pos == t: issue_wo()
    def do_h():
        wait("wd")
        retry(hl, [201, 203])
        A("v_lshlrev_b32 v56, 16, v200\nv_and_b32 v57, 0xffff0000, v200\nv_lshlrev_b32 v60, 16, v202\nv_and_b32 v61, 0xffff0000, v202")
        A("v_mul_f32 v56, 0x%08x, v56\nv_mul_f32 v57, 0x%08x, v57" % (f2u(-1.4426950408889634), f2u(-1.4426950408889634)))
        A("v_exp_f32 v56, v56\nv_exp_f32 v57, v57\nv_sub_f32 v62, 1.0, v%d\nv_add_f32 v56, 1.0, v56\nv_add_f32 v57, 1.0, v57" % vG)
        A("v_rcp_f32 v56, v56\nv_rcp_f32 v57, v57\nv_mul_f32 v60, v60, v62\nv_mul_f32 v61, v61, v62\nv_mul_f32 v56, v56, v60\nv_mul_f32 v57, v57, v61")
        for j in range(4):
            A("v_lshlrev_b32 v60, 16, v%d\nv_and_b32 v61, 0xffff0000, v%d\nv_mul_f32 v%d, v56, v60\nv_mul_f32 v%d, v56, v61" % (192 + j, 192 + j, YA + 2 * j, YA + 2 * j + 1))
        for j in range(4):
            A("v_lshlrev_b32 v60, 16, v%d\nv_and_b32 v61, 0xffff0000, v%d\nv_fmac_f32 v%d, v57, v60\nv_fmac_f32 v%d, v57, v61" % (196 + j, 196 + j, YA + 2 * j, YA + 2 * j + 1))
    def do_ml():
        wait("ml")
        retry([mll], [205, 207])
        A("v_mov_b32 v60, v204\ns_nop 1")
        for c in ("row_ror:4", "row_ror:8"):
            dpp("v_max_f32", 60, 60, 60, c); A("s_nop 1")
        xrows("v_max_f32", 60, 61)
        A("v_sub_f32 v60, v204, v60\nv_exp_f32 v60, v60\ns_nop 0\nv_mul_f32 v61, v60, v206\ns_nop 1")
        for c in ("row_ror:4", "row_ror:8"):
            dpp("v_add_f32", 61, 61, 61, c); A("s_nop 1")
        xrows("v_add_f32", 61, 62)
        A("v_rcp_f32 v61, v61\nv_mul_f32 v60, v60, v%d\nv_mul_f32 v%d, v60, v61" % (vG, vW))
    if h_at == 4: issue_side(4)
    for t in range(8):
        for r in range(4):
            for j2 in range(2):
                A("v_perm_b32 v%d, v%d, v%d, v%d" % (AX0 + 2 * r + j2, 32 + 2 * t + (r >> 1), 32 + 2 * t + (r >> 1), vSP + 2 * (r & 1) + j2))
        wait("V%d" % t)
        if t == 7: ST("V7")
        for r in range(4):
            for hf in range(2):
                A("v_mfma_f32_16x16x16_bf16 v[%d:%d], v[%d:%d], v[%d:%d], %s" % (O0 + 4 * hf, O0 + 4 * hf + 3, AX0 + 2 * r, AX0 + 2 * r + 1,
                  Vreg(t) + 4 * r + 2 * hf, Vreg(t) + 4 * r + 2 * hf + 1, "0" if (t == 0 and r == 0) else "v[%d:%d]" % (O0 + 4 * hf, O0 + 4 * hf + 3)))
        if t + 5 < 8:
            pace(); issueV(t + 5); issue_side(t + 5)
        if t == 4: do_h()
        if t == 5: do_ml()
        if t == 6:
            if wo_pos != "tail":
                wait("wo"); unpack_wo()
            tail_prep()
    A("s_nop 6")
    lds_reduce_publish(O0, LDS_O)
    ST("pubO")
    opl = "buffer_load_dwordx2 v[12:13], v15, s[%d:%d], s97 offen %s" % (sWS, sWS + 3, ldpol)
    if wo_pos == "tail": issue_wo()
    A(opl); vm.issue("og")
    A("s_add_u32 s96, s96, %d" % (WS_YP - WS_OP))
    if wo_pos == "tail":
        wait("wo"); unpack_wo()
    A("s_waitcnt vmcnt(0)")
    retry([opl], [13])
    ST("og")
    A("v_mul_f32 v12, v12, v%d\ns_nop 1" % vW)
    for c in ("row_ror:4", "row_ror:8"):
        dpp("v_add_f32", 12, 12, 12, c); A("s_nop 1")
    xrows("v_add_f32", 12, 13)
    A("s_nop 1")
    for r in range(4):
        for j in range(8):
            dpp("v_fmac_f32", YA + j, 12, 224 + 8 * r + j, "quad_perm:[%d,%d,%d,%d]" % (r, r, r, r))
    lds_reduce_publish(YA, LDS_Y)
    ST("pubY")
    A("s_cmp_eq_u32 s3, 4\ns_cbranch_scc1 L_final")
    A("s_cmp_lg_u32 s3, 5\ns_cbranch_scc1 L_exit\ns_cmp_lg_u32 s2, 0\ns_cbranch_scc1 L_exit")
    A("v_lshlrev_b32 v15, 14, v%d\ns_mov_b32 s63, %d" % (vL, WS_YP))
    A("v_add_u32 v16, 0x1000, v15\nv_add_u32 v17, 0x2000, v15\nv_add_u32 v18, 0x3000, v15")
    el = ["buffer_load_dwordx2 v[%d:%d], v%d, s[%d:%d], s63 offen %s" % (20 + 2 * a, 21 + 2 * a, 15 + a, sWS, sWS + 3, ldpol) for a in range(4)]
    for s in el: A(s)
    A("s_waitcnt vmcnt(0)")
    retry(el, [21, 23, 25, 27])
    A("v_mov_b32 v9, %d\nv_mov_b32 v10, s%d\ns_mov_b64 exec, 1" % (WS_EPOCH, sTAG))
    A("buffer_store_dword v10, v9, s[%d:%d], 0 offen %s" % (sWS, sWS + 3, stpol))
    A("s_mov_b64 exec, -1\ns_branch L_exit")
    A("L_final:")
    A("v_lshrrev_b32 v15, 1, v%d\nv_lshlrev_b32 v15, 12, v15\nv_and_b32 v9, 1, v%d\nv_lshl_add_u32 v15, v9, 4, v15" % (vL, vL))
    A("v_add_u32 v16, 0x20000, v15\nv_add_u32 v17, 0x40000, v15\nv_add_u32 v18, 0x60000, v15")
    A("s_lshl_b32 s63, s%d, 19\ns_lshl_b32 s64, s%d, 5\ns_add_u32 s63, s63, s64\ns_add_u32 s63, s63, %d" % (sB, sREST, WS_YP))
    fl = ["buffer_load_dwordx4 v[%d:%d], v%d, s[%d:%d], s63 offen %s" % (20 + 4 * a, 23 + 4 * a, 15 + a, sWS, sWS + 3, ldpol) for a in range(4)]
    for s in fl: A(s)
    A("s_lshl_b32 s64, s%d, 10\ns_lshl_b32 s65, s%d, 3\ns_add_u32 s64, s64, s65\nv_lshl_add_u32 v9, v9, 2, s64" % (sB, sREST))
    A("s_waitcnt vmcnt(0)")
    retry(fl, [21, 23, 25, 27, 29, 31, 33, 35])
    ST("yg")
    A("v_add_f32 v20, v20, v24\nv_add_f32 v22, v22, v26\nv_add_f32 v28, v28, v32\nv_add_f32 v30, v30, v34\nv_add_f32 v20, v20, v28\nv_add_f32 v22, v22, v30\ns_nop 0")
    for c in ("quad_perm:[2,3,0,1]", "row_ror:4", "row_ror:8"):
        dpp("v_add_f32", 20, 20, 20, c); dpp("v_add_f32", 22, 22, 22, c); A("s_nop 0")
    A("v_mov_b32 v21, v20\nv_mov_b32 v23, v22\ns_nop 0\nv_permlane16_swap_b32 v21, v20\nv_permlane16_swap_b32 v23, v22\nv_add_f32 v20, v20, v21\nv_add_f32 v22, v22, v23")
    A("v_mov_b32 v21, v20\nv_mov_b32 v23, v22\ns_nop 0\nv_permlane32_swap_b32 v21, v20\nv_permlane32_swap_b32 v23, v22\nv_add_f32 v20, v20, v21\nv_add_f32 v22, v22, v23")
    A("v_cvt_pk_bf16_f32 v20, v20, v22\ns_mov_b64 exec, 3")
    A("global_store_dword v9, v20, s[24:25] %s" % outpol)
    A("s_mov_b64 exec, -1")
    A("L_exit:")
    if stamp:
        ST("end")
        A("s_waitcnt lgkmcnt(0)")
        A("s_lshl_b32 s63, s2, 3\ns_add_u32 s63, s63, s3\ns_lshl_b32 s63, s63, 6\ns_add_u32 s63, s63, %d\nv_mov_b32 v9, 0" % WS_STAMP)
        for i in range(0, 16, 4):
            for j in range(4):
                A("v_mov_b32 v%d, s%d" % (20 + j, 70 + 2 * (i + j)) if i + j < nst[0] else "v_mov_b32 v%d, 0" % (20 + j))
            A("buffer_store_dwordx4 v[20:23], v9, s[%d:%d], s63 offen offset:%d\ns_nop 1" % (sWS, sWS + 3, 4 * i))
    A("s_endpgm")
    A("L_bail:")
    A("s_mov_b64 exec, 1\nv_mov_b32 v9, 0\nv_mov_b32 v10, 0xdead\nglobal_store_dword v9, v10, s[26:27]")
    A("L_end:\ns_endpgm")
    L.append('.section .rodata,"a"\n.p2align 6\n.amdhsa_kernel %s_kernel' % NAME)
    L.append("  .amdhsa_next_free_vgpr 256\n  .amdhsa_next_free_sgpr 102\n  .amdhsa_accum_offset 256\n  .amdhsa_group_segment_fixed_size 0\n  .amdhsa_kernarg_size 104\n  .amdhsa_user_sgpr_count 2\n  .amdhsa_user_sgpr_kernarg_segment_ptr 1\n  .amdhsa_system_sgpr_workgroup_id_x 1\n.end_amdhsa_kernel")
    return "\n".join(L) + "\n"

if __name__ == "__main__":
    import asmlib, json
    out = sys.argv[1]
    kw = json.loads(sys.argv[2]) if len(sys.argv) > 2 else {}
    open(out, "w").write(gen(**kw))
    asmlib.build(out)
```

```python
import sys, struct
NAME = "gated_mix__gqa_block_cached__glu_gated_glu__decode"

def f2u(x): return struct.unpack("<I", struct.pack("<f", x))[0]

WS_EPOCH = 0
WS_QG = 0x1000
WS_ML = 0x20000
WS_OP = 0x100000
WS_YP = 0x200000
WS_STAMP = 0x400000
WS_USED = 0x500000
LDS_A = 0
LDS_Q = 8192
LDS_M = 9216
LDS_L = 9344
HFS = 1152
WVS = 2304
LDS_O = 9472
LDS_Y = LDS_O + 8 * WVS
LDS_END = LDS_Y + 8 * WVS

class VM:
    def __init__(self): self.ops = []
    def issue(self, name, counted=True): self.ops.append((name, counted))
    def after(self, name):
        idx = max(i for i, (n, c) in enumerate(self.ops) if n == name)
        return sum(1 for n, c in self.ops[idx + 1:] if c)

def gen(depth=8, pol="nt", wpol="nt", order="inter", wo_pos="tail", stamp=False, q_at=5, ml_at=6, h_at=4,
        outpol="", stpol="sc1", ldpol="sc1", spin=200000, header=None, probe=None, lcg=True, dump=False, pbase=6000):
    L = []
    def A(s):
        for line in s.strip("\n").split("\n"):
            L.append("    " + line.strip() if not line.strip().endswith(":") else line.strip())
    vm = VM()
    nst = [0]; stn = {}
    def ST(name=None):
        if not (stamp or probe): return
        stn[name] = 70 + 2 * nst[0]
        A("s_memrealtime s[%d:%d]" % (70 + 2 * nst[0], 71 + 2 * nst[0])); nst[0] += 1
    def wait(name):
        n = vm.after(name)
        assert n <= 63
        A("s_waitcnt vmcnt(%d)" % n)
    def pace():
        A("s_waitcnt vmcnt(%d)" % max(0, depth - 4))
    lab = [0]
    def newlabel(p):
        lab[0] += 1; return "L_%s%d" % (p, lab[0])

    vL, vKO, vVO = 1, 2, 3
    vSP = 4
    vG = 8
    vT = 9
    vW = 14
    Q0, O0, AX0 = 16, 16, 24
    S0 = 32
    YA = 48
    def Kreg(t): return 128 + 16 * t
    def Vreg(t): return 64 + 16 * t if t < 4 else 128 + 16 * (t - 4)
    sK, sV, sW, sWS, sWO, sWD = 32, 36, 40, 44, 48, 52
    sB, sREST, sTAG, sUNIT, sSTR = 30, 31, 56, 57, 58
    sKO, sVO = 66, 67
    tstep = 8 * 4096 if order == "inter" else 4096

    def issueK(t):
        for i in range(4):
            A("buffer_load_dwordx4 v[%d:%d], v%d, s[%d:%d], s%d offen offset:%d %s" % (Kreg(t) + 4 * i, Kreg(t) + 4 * i + 3, vKO, sK, sK + 3, sKO, 64 * i, pol))
            vm.issue("K%d" % t)
        if t < 7: A("s_add_u32 s%d, s%d, %d" % (sKO, sKO, tstep))
    def issueV(t):
        for i in range(4):
            A("buffer_load_dwordx4 v[%d:%d], v%d, s[%d:%d], s%d offen offset:%d %s" % (Vreg(t) + 4 * i, Vreg(t) + 4 * i + 3, vVO, sV, sV + 3, sVO, 1024 * i, pol))
            vm.issue("V%d" % t)
        if t < 7: A("s_add_u32 s%d, s%d, %d" % (sVO, sVO, tstep))

    def dpp(op, d, a, b, ctrl):
        A("%s_dpp v%d, v%d, v%d %s row_mask:0xf bank_mask:0xf" % (op, d, a, b, ctrl))
    def xrows(op, x, t):
        A("v_mov_b32 v%d, v%d\ns_nop 1\nv_permlane16_swap_b32 v%d, v%d\n%s v%d, v%d, v%d" % (t, x, t, x, op, x, t, x))
        A("v_mov_b32 v%d, v%d\ns_nop 1\nv_permlane32_swap_b32 v%d, v%d\n%s v%d, v%d, v%d" % (t, x, t, x, op, x, t, x))

    def retry(loads, tagregs, label_ok=None):
        lo, ld = newlabel("spin"), newlabel("done")
        A("s_mov_b64 s[60:61], exec\ns_mov_b32 s62, 0")
        cmpn(tagregs)
        A("s_wqm_b64 exec, vcc\ns_cbranch_scc0 %s" % ld)
        A("%s:" % lo)
        for s in loads: A(s)
        A("s_add_u32 s62, s62, 1\ns_cmp_gt_u32 s62, %d\ns_cbranch_scc1 L_bail" % spin)
        A("s_waitcnt vmcnt(0)")
        cmpn(tagregs)
        A("s_wqm_b64 exec, vcc\ns_cbranch_scc1 %s" % lo)
        A("%s:" % ld)
        A("s_mov_b64 exec, s[60:61]")
    def cmpn(tagregs):
        A("v_cmp_ne_u32 vcc, s%d, v%d" % (sTAG, tagregs[0]))
        for r in tagregs[1:]:
            A("v_cmp_ne_u32 s[68:69], s%d, v%d\ns_or_b64 vcc, vcc, s[68:69]" % (sTAG, r))

    def tail_prep():
        A("v_lshlrev_b32 v10, 4, v%d\ns_mul_i32 s63, s3, %d\nv_add_u32 v10, s63, v10" % (vL, WVS))
        A("v_lshrrev_b32 v11, 2, v%d\nv_lshlrev_b32 v15, 12, v11\nv_lshlrev_b32 v11, 4, v11\nv_bfe_u32 v12, v%d, 1, 1\nv_mul_u32_u24 v12, %d, v12" % (vL, vL, HFS))
        A("v_and_b32 v13, 1, v%d\nv_lshlrev_b32 v13, 3, v13\nv_add3_u32 v11, v11, v12, v13" % vL)
        A("s_lshl_b32 s63, s3, 8\nv_add_u32 v11, s63, v11")
        A("s_lshl_b32 s96, s%d, 7\ns_add_u32 s96, s96, s%d\ns_lshl_b32 s96, s96, 12\ns_lshl_b32 s63, s3, 10\ns_add_u32 s96, s96, s63\ns_add_u32 s96, s96, %d" % (sB, sREST, WS_OP))
        A("v_and_b32 v12, 3, v%d\nv_lshl_add_u32 v15, v12, 3, v15" % vL)
        A("s_lshl_b32 s97, s%d, 7\ns_and_b32 s64, s%d, 0x70\ns_add_u32 s97, s97, s64\ns_lshl_b32 s97, s97, 12\ns_and_b32 s64, s%d, 15\ns_lshl_b32 s64, s64, 8\ns_add_u32 s97, s97, s64\ns_lshl_b32 s64, s3, 5\ns_add_u32 s97, s97, s64\ns_add_u32 s97, s97, %d" % (sB, sREST, sREST, WS_OP))
        A("v_mov_b32 v61, s%d\nv_mov_b32 v63, s%d" % (sTAG, sTAG))
    def lds_reduce_publish(src, ldsbase):
        lskip = newlabel("nopub")
        A("ds_write_b128 v10, v[%d:%d] offset:%d\nds_write_b128 v10, v[%d:%d] offset:%d" % (src, src + 3, ldsbase, src + 4, src + 7, ldsbase + HFS))
        A("s_waitcnt lgkmcnt(0)\ns_barrier")
        A("s_cmp_ge_u32 s3, 4\ns_cbranch_scc1 %s" % lskip)
        for w in range(8):
            A("ds_read_b64 v[%d:%d], v11 offset:%d" % (64 + 2 * w, 65 + 2 * w, ldsbase + w * WVS))
        A("s_waitcnt lgkmcnt(6)\nv_add_f32 v64, v64, v66\nv_add_f32 v65, v65, v67")
        A("s_waitcnt lgkmcnt(4)\nv_add_f32 v68, v68, v70\nv_add_f32 v69, v69, v71")
        A("s_waitcnt lgkmcnt(2)\nv_add_f32 v72, v72, v74\nv_add_f32 v73, v73, v75\nv_add_f32 v64, v64, v68\nv_add_f32 v65, v65, v69")
        A("s_waitcnt lgkmcnt(0)\nv_add_f32 v76, v76, v78\nv_add_f32 v77, v77, v79")
        A("v_add_f32 v72, v72, v76\nv_add_f32 v73, v73, v77\nv_add_f32 v60, v64, v72\nv_add_f32 v62, v65, v73")
        A("buffer_store_dwordx4 v[60:63], v%d, s[%d:%d], s96 offen %s" % (vVO, sWS, sWS + 3, stpol))
        vm.issue("pub", counted=False)
        A("%s:" % lskip)

    hdr = header or ""
    L.append(hdr + "; @launch grid=(256,1,1) block=(512,1,1) lds=%d" % LDS_END)
    L.append('.amdgcn_target "amdgcn-amd-amdhsa--gfx950"\n.text\n.globl %s_kernel\n.p2align 8\n.type %s_kernel,@function\n%s_kernel:' % (NAME, NAME, NAME))
    A("s_cmp_ge_u32 s2, 256\ns_cbranch_scc1 L_end")
    A("s_load_dwordx16 s[4:19], s[0:1], 0\ns_load_dwordx8 s[20:27], s[0:1], 64\ns_load_dwordx2 s[28:29], s[0:1], 96")
    ST("start")
    A("v_lshrrev_b32 v9, 6, v0\nv_and_b32 v%d, 63, v0\nv_readfirstlane_b32 s3, v9" % vL)
    A("s_bfe_u32 s%d, s2, 0x10003" % sB)
    A("s_and_b32 s%d, s2, 7\ns_lshr_b32 s59, s2, 4\ns_lshl_b32 s59, s59, 3\ns_or_b32 s%d, s%d, s59" % (sREST, sREST, sREST))
    A("s_lshl_b32 s%d, s%d, 1\ns_or_b32 s%d, s%d, s%d" % (sUNIT, sREST, sUNIT, sUNIT, sB))
    A("v_lshrrev_b32 v10, 4, v%d\nv_and_b32 v11, 15, v%d" % (vL, vL))
    A("v_and_b32 v12, 3, v11\nv_lshlrev_b32 v12, 10, v12\nv_lshrrev_b32 v13, 2, v11\nv_lshl_add_u32 v12, v13, 8, v12\nv_lshl_add_u32 v%d, v10, 4, v12" % vKO)
    A("v_lshlrev_b32 v%d, 4, v%d" % (vVO, vL))
    if order == "inter": A("s_lshl_b32 s%d, s3, 12" % sKO)
    else: A("s_lshl_b32 s%d, s3, 15" % sKO)
    A("s_mov_b32 s%d, s%d" % (sVO, sKO))
    A("s_lshl_b32 s59, s%d, 7\ns_add_u32 s59, s59, s%d\ns_lshl_b32 s59, s59, 18" % (sB, sREST))
    A("s_movk_i32 s%d, 3584\ns_cmp_lt_u32 s%d, 128\ns_cselect_b32 s%d, 8192, s%d" % (sSTR, sUNIT, sSTR, sSTR))
    A("s_lshl_b32 s63, s%d, 4\nv_mul_u32_u24 v12, s63, v10\nv_lshl_add_u32 v12, v11, 2, v12" % sSTR)
    A("v_bfe_u32 v13, v11, 1, 1\nv_lshlrev_b32 v13, 10, v13\nv_lshl_add_u32 v13, v10, 5, v13\ns_lshl_b32 s63, s3, 7\nv_add_u32 v13, s63, v13")
    A("s_mul_i32 s63, s3, s%d\ns_lshl_b32 s63, s63, 6" % sSTR)
    A("s_waitcnt lgkmcnt(0)")
    A("s_load_dword s%d, s[28:29], %d" % (sTAG, WS_EPOCH))
    A("s_sub_u32 s64, s%d, 128\ns_cmp_lt_u32 s%d, 128\ns_cselect_b32 s64, s%d, s64\ns_cselect_b32 s%d, s10, s16\ns_cselect_b32 s%d, s11, s17" % (sUNIT, sUNIT, sUNIT, sW, sW + 1))
    A("s_sub_u32 s65, s%d, 184\ns_cmp_ge_u32 s%d, 184\ns_cselect_b32 s64, s65, s64\ns_cselect_b32 s%d, s18, s%d\ns_cselect_b32 s%d, s19, s%d" % (sUNIT, sUNIT, sW, sW, sW + 1, sW + 1))
    A("s_lshl_b32 s64, s64, 6\ns_add_u32 s%d, s%d, s64\ns_addc_u32 s%d, s%d, 0" % (sW, sW, sW + 1, sW + 1))
    A("s_mul_i32 s%d, s%d, 511\ns_add_u32 s%d, s%d, 64\ns_mov_b32 s%d, 0x20000" % (sW + 2, sSTR, sW + 2, sW + 2, sW + 3))
    A("s_add_u32 s%d, s6, s59\ns_addc_u32 s%d, s7, 0\ns_mov_b32 s%d, 0x40000\ns_mov_b32 s%d, 0x20000" % (sK, sK + 1, sK + 2, sK + 3))
    A("s_cmp_ge_u32 s%d, 240\ns_cbranch_scc1 L_noA1" % sUNIT)
    A("global_load_dwordx4 v[48:51], v13, s[4:5]\nglobal_load_dwordx4 v[52:55], v13, s[4:5] offset:16")
    vm.issue("X", False); vm.issue("X", False)
    for q in range(16):
        A("buffer_load_dword v%d, v12, s[%d:%d], s63 offen %s" % (32 + q, sW, sW + 3, wpol))
        vm.issue("W", False)
        if q < 15: A("s_add_u32 s63, s63, s%d" % sSTR)
    A("L_noA1:")
    issueK(0); issueK(1)
    A("s_add_u32 s%d, s8, s59\ns_addc_u32 s%d, s9, 0\ns_mov_b32 s%d, 0x40000\ns_mov_b32 s%d, 0x20000" % (sV, sV + 1, sV + 2, sV + 3))
    A("s_mov_b32 s%d, s28\ns_mov_b32 s%d, s29\ns_mov_b32 s%d, %d\ns_mov_b32 s%d, 0x20000" % (sWS, sWS + 1, sWS + 2, WS_USED, sWS + 3))
    A("s_mov_b32 s%d, s12\ns_mov_b32 s%d, s13\ns_mov_b32 s%d, 0x400000\ns_mov_b32 s%d, 0x20000" % (sWO, sWO + 1, sWO + 2, sWO + 3))
    A("s_mov_b32 s%d, s20\ns_mov_b32 s%d, s21\ns_mov_b32 s%d, 1835008\ns_mov_b32 s%d, 0x20000" % (sWD, sWD + 1, sWD + 2, sWD + 3))
    A("v_and_b32 v9, 1, v%d\nv_cmp_eq_u32 vcc, 1, v9\nv_mov_b32 v60, 0x0c0c0100\nv_mov_b32 v9, 0x01000c0c\nv_mov_b32 v61, 0x0c0c0302\nv_mov_b32 v15, 0x03020c0c" % vL)
    A("v_cndmask_b32 v60, v60, v9, vcc\nv_cndmask_b32 v61, v61, v15, vcc")
    A("v_and_b32 v9, 2, v%d\nv_cmp_eq_u32 vcc, 2, v9\nv_mov_b32 v15, 0x0c0c0c0c\ns_nop 0" % vL)
    A("v_cndmask_b32 v%d, v60, v15, vcc\nv_cndmask_b32 v%d, v15, v60, vcc\nv_cndmask_b32 v%d, v61, v15, vcc\nv_cndmask_b32 v%d, v15, v61, vcc" % (vSP, vSP + 1, vSP + 2, vSP + 3))
    A("s_waitcnt lgkmcnt(0)")
    if lcg: A("s_mul_i32 s%d, s%d, 0x9e3779b5\ns_add_u32 s%d, s%d, 0x7f4a7c15" % (sTAG, sTAG, sTAG, sTAG))
    else: A("s_add_u32 s%d, s%d, 1" % (sTAG, sTAG))
    if dump:
        A("s_cmp_lg_u32 s2, 0\ns_cbranch_scc1 L_nodump\ns_cmp_lg_u32 s3, 0\ns_cbranch_scc1 L_nodump")
        A("v_lshlrev_b32 v9, 2, v1\nv_add_u32 v12, 0x3f0000, v9\nbuffer_load_dword v13, v12, s[%d:%d], 0 offen\ns_waitcnt vmcnt(0)\nglobal_store_dword v9, v13, s[26:27]\nL_nodump:" % (sWS, sWS + 3))
    A("s_cmp_ge_u32 s%d, 240\ns_cbranch_scc1 L_noA2" % sUNIT)
    A("s_waitcnt vmcnt(24)")
    for q in range(16):
        A("v_perm_b32 v%d, v%d, v%d, v%d" % (64 + q, 48 + (q >> 1), 48 + (q >> 1), 60 + (q & 1)))
    for u in range(4):
        A("s_waitcnt vmcnt(%d)" % (8 + 12 - 4 * u))
        A("v_mfma_f32_16x16x32_bf16 v[56:59], v[%d:%d], v[%d:%d], %s" % (64 + 4 * u, 67 + 4 * u, 32 + 4 * u, 35 + 4 * u, "0" if u == 0 else "v[56:59]"))
    ST("W")
    A("s_lshl_b32 s63, s3, 10\nv_add_u32 v9, s63, v%d\ns_nop 6" % vVO)
    A("ds_write_b128 v9, v[56:59] offset:%d" % LDS_A)
    A("s_waitcnt lgkmcnt(0)\ns_barrier")
    A("s_cmp_lg_u32 s3, 0\ns_cbranch_scc1 L_noA2")
    A("v_lshlrev_b32 v9, 4, v11\nv_and_b32 v12, 1, v10\nv_lshl_add_u32 v9, v12, 3, v9")
    for w in range(8):
        A("ds_read_b64 v[%d:%d], v9 offset:%d" % (32 + 2 * w, 33 + 2 * w, LDS_A + 1024 * w))
    A("v_mul_u32_u24 v12, %d, v12\nv_lshl_add_u32 v12, v11, 3, v12" % (3840 * 8))
    A("s_lshl_b32 s63, s%d, 7\ns_add_u32 s63, s63, %d" % (sUNIT, WS_QG))
    A("s_waitcnt lgkmcnt(0)")
    for a, b in ((32, 34), (36, 38), (40, 42), (44, 46), (32, 36), (40, 44), (32, 40)):
        A("v_add_f32 v%d, v%d, v%d\nv_add_f32 v%d, v%d, v%d" % (a, a, b, a + 1, a + 1, b + 1))
    A("v_cvt_pk_bf16_f32 v32, v32, v33\nv_mov_b32 v33, s%d" % sTAG)
    A("s_mov_b32 exec_hi, 0")
    A("buffer_store_dwordx2 v[32:33], v12, s[%d:%d], s63 offen %s" % (sWS, sWS + 3, stpol))
    vm.issue("pubA", False)
    A("s_mov_b32 exec_hi, -1")
    A("L_noA2:")
    ST("pubA")
    qload = "buffer_load_dwordx2 v[12:13], v15, s[%d:%d], s63 offen %s" % (sWS, sWS + 3, ldpol)
    for t in range(2, 8):
        pace(); issueK(t)
        if t == 2:
            A("s_lshl_b32 s63, s%d, 10\nv_add_u32 v9, s63, v%d" % (sB, vVO))
            A("global_load_dwordx4 v[80:83], v9, s[4:5]\nglobal_load_dwordx4 v[84:87], v%d, s[22:23]" % vVO)
            vm.issue("xg"); vm.issue("xg")
        if t == 4:
            wait("xg")
            A("v_dot2_f32_bf16 v%d, v80, v84, 0" % vG)
            for i in range(1, 4): A("v_dot2_f32_bf16 v%d, v%d, v%d, v%d" % (vG, 80 + i, 84 + i, vG))
            A("s_nop 2")
            for c in ("quad_perm:[1,0,3,2]", "quad_perm:[2,3,0,1]", "row_half_mirror", "row_mirror"):
                dpp("v_add_f32", vG, vG, vG, c); A("s_nop 1")
            xrows("v_add_f32", vG, 9)
            A("v_mul_f32 v%d, 0x%08x, v%d\nv_exp_f32 v%d, v%d\ns_nop 0\nv_add_f32 v%d, 1.0, v%d\nv_rcp_f32 v%d, v%d" % (vG, f2u(-1.4426950408889634), vG, vG, vG, vG, vG, vG, vG))
        if t == q_at:
            A("v_and_b32 v15, 31, v%d\nv_lshlrev_b32 v15, 3, v15" % vL)
            A("s_mul_i32 s63, s%d, %d\ns_lshr_b32 s64, s%d, 4\ns_lshl_b32 s64, s64, 11\ns_add_u32 s63, s63, s64\ns_lshl_b32 s64, s3, 8\ns_add_u32 s63, s63, s64\ns_add_u32 s63, s63, %d" % (sB, 3840 * 8, sREST, WS_QG))
            A(qload); vm.issue("qg")
    pace(); issueV(0)
    wait("qg")
    ST("qg")
    retry([qload], [13])
    A("v_lshrrev_b32 v15, 1, v15\ns_lshl_b32 s63, s3, 7\nv_add_u32 v15, s63, v15")
    A("ds_write_b32 v15, v12 offset:%d" % LDS_Q)
    A("v_lshrrev_b32 v9, 2, v11\nv_lshlrev_b32 v9, 8, v9\nv_lshl_add_u32 v9, v10, 4, v9")
    A("s_waitcnt lgkmcnt(0)\ns_barrier")
    for i in range(4):
        A("ds_read_b128 v[%d:%d], v9 offset:%d" % (Q0 + 4 * i, Q0 + 4 * i + 3, LDS_Q + 64 * i))
    pace(); issueV(1)
    A("s_waitcnt lgkmcnt(0)")
    ST("q")
    for t in range(8):
        wait("K%d" % t)
        for i in range(4):
            A("v_mfma_f32_16x16x32_bf16 v[%d:%d], v[%d:%d], v[%d:%d], %s" % (S0 + 4 * t, S0 + 4 * t + 3, Kreg(t) + 4 * i, Kreg(t) + 4 * i + 3, Q0 + 4 * i, Q0 + 4 * i + 3,
              "0" if i == 0 else "v[%d:%d]" % (S0 + 4 * t, S0 + 4 * t + 3)))
        if t == 3: pace(); issueV(2)
    pace(); issueV(3)
    A("v_max3_f32 v9, v32, v33, v34")
    for r in range(35, 59, 2): A("v_max3_f32 v9, v9, v%d, v%d" % (r, r + 1))
    A("v_max3_f32 v9, v9, v59, v60\nv_max3_f32 v9, v9, v61, v62\nv_max_f32 v9, v9, v63")
    xrows("v_max_f32", 9, 12)
    A("v_lshrrev_b32 v12, 2, v11\nv_lshlrev_b32 v12, 5, v12\ns_lshl_b32 s63, s3, 2\nv_add_u32 v13, s63, v12")
    A("ds_write_b32 v13, v9 offset:%d" % LDS_M)
    A("s_waitcnt lgkmcnt(0)\ns_barrier")
    A("ds_read_b128 v[16:19], v12 offset:%d\nds_read_b128 v[20:23], v12 offset:%d" % (LDS_M, LDS_M + 16))
    A("s_mov_b32 s65, 0x%08x" % f2u(128 ** -0.5 * 1.4426950408889634))
    A("s_waitcnt lgkmcnt(0)")
    A("v_max3_f32 v9, v16, v17, v18\nv_max3_f32 v9, v9, v19, v20\nv_max3_f32 v9, v9, v21, v22\nv_max_f32 v9, v9, v23")
    A("v_mul_f32 v9, s65, v9")
    for r in range(32, 64):
        A("v_fma_f32 v%d, v%d, s65, -v9" % (r, r))
    for r in range(32, 64):
        A("v_exp_f32 v%d, v%d" % (r, r))
    ST("exp")
    pace(); issueV(4)
    A("v_add_f32 v15, v32, v33\nv_add_f32 v14, v34, v35")
    for r in range(36, 64, 2): A("v_add_f32 v15, v15, v%d\nv_add_f32 v14, v14, v%d" % (r, r + 1))
    A("v_add_f32 v15, v15, v14")
    for t in range(8):
        A("v_cvt_pk_bf16_f32 v%d, v%d, v%d\nv_cvt_pk_bf16_f32 v%d, v%d, v%d" % (32 + 2 * t, 32 + 4 * t, 33 + 4 * t, 33 + 2 * t, 34 + 4 * t, 35 + 4 * t))
    xrows("v_add_f32", 15, 14)
    A("ds_write_b32 v13, v15 offset:%d" % LDS_L)
    A("s_waitcnt lgkmcnt(0)\ns_barrier")
    A("s_cmp_lg_u32 s3, 1\ns_cbranch_scc1 L_noML")
    A("ds_read_b128 v[16:19], v12 offset:%d\nds_read_b128 v[20:23], v12 offset:%d" % (LDS_L, LDS_L + 16))
    A("v_lshrrev_b32 v12, 1, v12\nv_bfe_u32 v13, v11, 1, 1\nv_lshl_add_u32 v12, v13, 6, v12")
    A("s_lshl_b32 s63, s%d, 7\ns_add_u32 s63, s63, s%d\ns_lshl_b32 s63, s63, 7\ns_add_u32 s63, s63, %d" % (sB, sREST, WS_ML))
    A("v_mov_b32 v24, v9\nv_mov_b32 v25, s%d\nv_mov_b32 v27, s%d" % (sTAG, sTAG))
    A("s_waitcnt lgkmcnt(0)")
    A("v_add_f32 v16, v16, v17\nv_add_f32 v18, v18, v19\nv_add_f32 v20, v20, v21\nv_add_f32 v22, v22, v23\nv_add_f32 v16, v16, v18\nv_add_f32 v20, v20, v22\nv_add_f32 v26, v16, v20")
    A("s_mov_b64 exec, 0x5555")
    A("buffer_store_dwordx4 v[24:27], v12, s[%d:%d], s63 offen %s" % (sWS, sWS + 3, stpol))
    vm.issue("pubML", False)
    A("s_mov_b64 exec, -1\ns_nop 0")
    A("L_noML:")
    ST("pubML")
    hl = ["buffer_load_dwordx2 v[200:201], v56, s[%d:%d], 0 offen %s" % (sWS, sWS + 3, ldpol),
          "buffer_load_dwordx2 v[202:203], v57, s[%d:%d], 0 offen %s" % (sWS, sWS + 3, ldpol)]
    mll = "buffer_load_dwordx4 v[204:207], v58, s[%d:%d], 0 offen %s" % (sWS, sWS + 3, ldpol)
    def issue_wo():
        A("s_lshl_b32 s63, s%d, 3\ns_add_u32 s63, s63, s3\ns_lshl_b32 s63, s63, 12" % sREST)
        for r in range(4):
            A("buffer_load_dwordx4 v[%d:%d], v%d, s[%d:%d], s63 offen offset:%d %s" % (208 + 4 * r, 211 + 4 * r, vVO, sWO, sWO + 3, 1024 * r, wpol))
            vm.issue("wo")
    def unpack_wo():
        for r in range(16):
            A("v_lshlrev_b32 v%d, 16, v%d\nv_and_b32 v%d, 0xffff0000, v%d" % (224 + 2 * r, 208 + r, 225 + 2 * r, 208 + r))
    def issue_side(t):
        if t == h_at:
            A("s_min_u32 s63, s3, 6\ns_mul_i32 s64, s%d, 7\ns_add_u32 s63, s63, s64\ns_mul_i32 s64, s%d, 3840\ns_add_u32 s63, s63, s64\ns_lshl_b32 s63, s63, 3" % (sREST, sB))
            A("s_add_u32 s63, s63, %d\nv_mov_b32 v56, s63\ns_add_u32 s63, s63, %d\nv_mov_b32 v57, s63" % (WS_QG + 2048 * 8, 896 * 8))
            A("s_mul_i32 s63, s%d, 7\ns_add_u32 s63, s63, s3\ns_lshl_b32 s63, s63, 11\ns_cmp_eq_u32 s3, 7\ns_cselect_b32 s63, 0x10000000, s63\nv_add_u32 v59, s63, v%d" % (sREST, vVO))
            for s in hl: A(s); vm.issue("hg")
            A("buffer_load_dwordx4 v[192:195], v59, s[%d:%d], 0 offen %s" % (sWD, sWD + 3, wpol)); vm.issue("wd")
            A("buffer_load_dwordx4 v[196:199], v59, s[%d:%d], 0 offen offset:1024 %s" % (sWD, sWD + 3, wpol)); vm.issue("wd")
        if t == ml_at:
            A("s_lshl_b32 s63, s%d, 7\ns_and_b32 s64, s%d, 0x70\ns_add_u32 s63, s63, s64\ns_lshl_b32 s63, s63, 7\ns_bfe_u32 s64, s%d, 0x20002\ns_lshl_b32 s64, s64, 4\ns_add_u32 s63, s63, s64\ns_add_u32 s63, s63, %d" % (sB, sREST, sREST, WS_ML))
            A("v_lshrrev_b32 v58, 2, v%d\nv_lshlrev_b32 v58, 7, v58\nv_add_u32 v58, s63, v58" % vL)
            A(mll); vm.issue("ml")
        if wo_pos == t: issue_wo()
    def do_h():
        wait("wd")
        retry(hl, [201, 203])
        A("v_lshlrev_b32 v56, 16, v200\nv_and_b32 v57, 0xffff0000, v200\nv_lshlrev_b32 v60, 16, v202\nv_and_b32 v61, 0xffff0000, v202")
        A("v_mul_f32 v56, 0x%08x, v56\nv_mul_f32 v57, 0x%08x, v57" % (f2u(-1.4426950408889634), f2u(-1.4426950408889634)))
        A("v_exp_f32 v56, v56\nv_exp_f32 v57, v57\nv_sub_f32 v62, 1.0, v%d\nv_add_f32 v56, 1.0, v56\nv_add_f32 v57, 1.0, v57" % vG)
        A("v_rcp_f32 v56, v56\nv_rcp_f32 v57, v57\nv_mul_f32 v60, v60, v62\nv_mul_f32 v61, v61, v62\nv_mul_f32 v56, v56, v60\nv_mul_f32 v57, v57, v61")
        for j in range(4):
            A("v_lshlrev_b32 v60, 16, v%d\nv_and_b32 v61, 0xffff0000, v%d\nv_mul_f32 v%d, v56, v60\nv_mul_f32 v%d, v56, v61" % (192 + j, 192 + j, YA + 2 * j, YA + 2 * j + 1))
        for j in range(4):
            A("v_lshlrev_b32 v60, 16, v%d\nv_and_b32 v61, 0xffff0000, v%d\nv_fmac_f32 v%d, v57, v60\nv_fmac_f32 v%d, v57, v61" % (196 + j, 196 + j, YA + 2 * j, YA + 2 * j + 1))
    def do_ml():
        wait("ml")
        retry([mll], [205, 207])
        A("v_mov_b32 v60, v204\ns_nop 1")
        for c in ("row_ror:4", "row_ror:8"):
            dpp("v_max_f32", 60, 60, 60, c); A("s_nop 1")
        xrows("v_max_f32", 60, 61)
        A("v_sub_f32 v60, v204, v60\nv_exp_f32 v60, v60\ns_nop 0\nv_mul_f32 v61, v60, v206\ns_nop 1")
        for c in ("row_ror:4", "row_ror:8"):
            dpp("v_add_f32", 61, 61, 61, c); A("s_nop 1")
        xrows("v_add_f32", 61, 62)
        A("v_rcp_f32 v61, v61\nv_mul_f32 v60, v60, v%d\nv_mul_f32 v%d, v60, v61" % (vG, vW))
    if h_at == 4: issue_side(4)
    for t in range(8):
        for r in range(4):
            for j2 in range(2):
                A("v_perm_b32 v%d, v%d, v%d, v%d" % (AX0 + 2 * r + j2, 32 + 2 * t + (r >> 1), 32 + 2 * t + (r >> 1), vSP + 2 * (r & 1) + j2))
        wait("V%d" % t)
        if t == 7: ST("V7")
        for r in range(4):
            for hf in range(2):
                A("v_mfma_f32_16x16x16_bf16 v[%d:%d], v[%d:%d], v[%d:%d], %s" % (O0 + 4 * hf, O0 + 4 * hf + 3, AX0 + 2 * r, AX0 + 2 * r + 1,
                  Vreg(t) + 4 * r + 2 * hf, Vreg(t) + 4 * r + 2 * hf + 1, "0" if (t == 0 and r == 0) else "v[%d:%d]" % (O0 + 4 * hf, O0 + 4 * hf + 3)))
        if t + 5 < 8:
            pace(); issueV(t + 5); issue_side(t + 5)
        if t == 4: do_h()
        if t == 5: do_ml()
        if t == 6:
            if wo_pos != "tail":
                wait("wo"); unpack_wo()
            tail_prep()
    A("s_nop 6")
    lds_reduce_publish(O0, LDS_O)
    ST("pubO")
    opl = "buffer_load_dwordx2 v[12:13], v15, s[%d:%d], s97 offen %s" % (sWS, sWS + 3, ldpol)
    if wo_pos == "tail": issue_wo()
    A(opl); vm.issue("og")
    A("s_add_u32 s96, s96, %d" % (WS_YP - WS_OP))
    if wo_pos == "tail":
        wait("wo"); unpack_wo()
    A("s_waitcnt vmcnt(0)")
    retry([opl], [13])
    ST("og")
    A("v_mul_f32 v12, v12, v%d\ns_nop 1" % vW)
    for c in ("row_ror:4", "row_ror:8"):
        dpp("v_add_f32", 12, 12, 12, c); A("s_nop 1")
    xrows("v_add_f32", 12, 13)
    A("s_nop 1")
    for r in range(4):
        for j in range(8):
            dpp("v_fmac_f32", YA + j, 12, 224 + 8 * r + j, "quad_perm:[%d,%d,%d,%d]" % (r, r, r, r))
    lds_reduce_publish(YA, LDS_Y)
    ST("pubY")
    A("s_cmp_eq_u32 s3, 4\ns_cbranch_scc1 L_final")
    A("s_cmp_lg_u32 s3, 5\ns_cbranch_scc1 L_exit\ns_cmp_lg_u32 s2, 0\ns_cbranch_scc1 L_exit")
    A("v_lshlrev_b32 v15, 14, v%d\ns_mov_b32 s63, %d" % (vL, WS_YP))
    A("v_add_u32 v16, 0x1000, v15\nv_add_u32 v17, 0x2000, v15\nv_add_u32 v18, 0x3000, v15")
    el = ["buffer_load_dwordx2 v[%d:%d], v%d, s[%d:%d], s63 offen %s" % (20 + 2 * a, 21 + 2 * a, 15 + a, sWS, sWS + 3, ldpol) for a in range(4)]
    for s in el: A(s)
    A("s_waitcnt vmcnt(0)")
    retry(el, [21, 23, 25, 27])
    A("v_mov_b32 v9, %d\nv_mov_b32 v10, s%d\ns_mov_b64 exec, 1" % (WS_EPOCH, sTAG))
    A("buffer_store_dword v10, v9, s[%d:%d], 0 offen %s" % (sWS, sWS + 3, stpol))
    A("s_mov_b64 exec, -1\ns_branch L_exit")
    A("L_final:")
    A("v_lshrrev_b32 v15, 1, v%d\nv_lshlrev_b32 v15, 12, v15\nv_and_b32 v9, 1, v%d\nv_lshl_add_u32 v15, v9, 4, v15" % (vL, vL))
    A("v_add_u32 v16, 0x20000, v15\nv_add_u32 v17, 0x40000, v15\nv_add_u32 v18, 0x60000, v15")
    A("s_lshl_b32 s63, s%d, 19\ns_lshl_b32 s64, s%d, 5\ns_add_u32 s63, s63, s64\ns_add_u32 s63, s63, %d" % (sB, sREST, WS_YP))
    fl = ["buffer_load_dwordx4 v[%d:%d], v%d, s[%d:%d], s63 offen %s" % (20 + 4 * a, 23 + 4 * a, 15 + a, sWS, sWS + 3, ldpol) for a in range(4)]
    for s in fl: A(s)
    A("s_lshl_b32 s64, s%d, 10\ns_lshl_b32 s65, s%d, 3\ns_add_u32 s64, s64, s65\nv_lshl_add_u32 v9, v9, 2, s64" % (sB, sREST))
    A("s_waitcnt vmcnt(0)")
    retry(fl, [21, 23, 25, 27, 29, 31, 33, 35])
    ST("yg")
    A("v_add_f32 v20, v20, v24\nv_add_f32 v22, v22, v26\nv_add_f32 v28, v28, v32\nv_add_f32 v30, v30, v34\nv_add_f32 v20, v20, v28\nv_add_f32 v22, v22, v30\ns_nop 0")
    for c in ("quad_perm:[2,3,0,1]", "row_ror:4", "row_ror:8"):
        dpp("v_add_f32", 20, 20, 20, c); dpp("v_add_f32", 22, 22, 22, c); A("s_nop 0")
    A("v_mov_b32 v21, v20\nv_mov_b32 v23, v22\ns_nop 0\nv_permlane16_swap_b32 v21, v20\nv_permlane16_swap_b32 v23, v22\nv_add_f32 v20, v20, v21\nv_add_f32 v22, v22, v23")
    A("v_mov_b32 v21, v20\nv_mov_b32 v23, v22\ns_nop 0\nv_permlane32_swap_b32 v21, v20\nv_permlane32_swap_b32 v23, v22\nv_add_f32 v20, v20, v21\nv_add_f32 v22, v22, v23")
    A("v_cvt_pk_bf16_f32 v20, v20, v22\ns_mov_b64 exec, 3")
    A("global_store_dword v9, v20, s[24:25] %s" % outpol)
    A("s_mov_b64 exec, -1")
    A("L_exit:")
    if probe:
        ST("end")
        name, sign, waves = probe
        A("s_waitcnt lgkmcnt(0)")
        A("s_lshl_b32 s63, 1, s3\ns_and_b32 s63, s63, %d\ns_cbranch_scc0 L_pe" % waves)
        if name == "W": A("s_cmp_ge_u32 s%d, 240\ns_cbranch_scc1 L_pe" % sUNIT)
        A("s_sub_u32 s63, s%d, s70" % stn[name])
        if sign < 0: A("s_sub_u32 s63, 4000, s63")
        A("s_add_u32 s63, s63, %d" % pbase)
        A("L_pl:\ns_sleep 4\ns_memrealtime s[64:65]\ns_waitcnt lgkmcnt(0)\ns_sub_u32 s64, s64, s70\ns_cmp_lt_u32 s64, s63\ns_cbranch_scc1 L_pl")
        A("L_pe:")
    if stamp:
        ST("end")
        A("s_waitcnt lgkmcnt(0)")
        A("s_lshl_b32 s63, s2, 3\ns_add_u32 s63, s63, s3\ns_lshl_b32 s63, s63, 6\ns_add_u32 s63, s63, %d\nv_mov_b32 v9, 0" % WS_STAMP)
        for i in range(0, 16, 4):
            for j in range(4):
                A("v_mov_b32 v%d, s%d" % (20 + j, 70 + 2 * (i + j)) if i + j < nst[0] else "v_mov_b32 v%d, 0" % (20 + j))
            A("buffer_store_dwordx4 v[20:23], v9, s[%d:%d], s63 offen offset:%d\ns_nop 1" % (sWS, sWS + 3, 4 * i))
    A("s_endpgm")
    A("L_bail:")
    A("s_mov_b64 exec, 1\nv_mov_b32 v9, 0\nv_mov_b32 v10, 0xdead\nglobal_store_dword v9, v10, s[26:27]")
    A("L_end:\ns_endpgm")
    L.append('.section .rodata,"a"\n.p2align 6\n.amdhsa_kernel %s_kernel' % NAME)
    L.append("  .amdhsa_next_free_vgpr 256\n  .amdhsa_next_free_sgpr 102\n  .amdhsa_accum_offset 256\n  .amdhsa_group_segment_fixed_size 0\n  .amdhsa_kernarg_size 104\n  .amdhsa_user_sgpr_count 2\n  .amdhsa_user_sgpr_kernarg_segment_ptr 1\n  .amdhsa_system_sgpr_workgroup_id_x 1\n.end_amdhsa_kernel")
    return "\n".join(L) + "\n"

if __name__ == "__main__":
    import asmlib, json
    out = sys.argv[1]
    kw = json.loads(sys.argv[2]) if len(sys.argv) > 2 else {}
    open(out, "w").write(gen(**kw))
    asmlib.build(out)
```

```python
import sys, struct
NAME = "gated_mix__gqa_block_cached__glu_gated_glu__decode"
def f2u(x): return struct.unpack("<I", struct.pack("<f", x))[0]
LOG2E = 1.4426950408889634

WS_EPOCH = 0
WS_QG = 0x1000
WS_ML = 0x20000
WS_OP = 0x40000
WS_YP = 0xC0000
WS_MK = 0x140000
WS_STAMP = 0x400000
WS_USED = 0x180000
LDS_A = 0
LDS_Q = 4096
LDS_M = 5120
LDS_L = 5184
LDS_F = 5248
LDS_H = 5312
LDS_C = 5376
LDS_o = 5632
LDS_R = 5888
HFS = 1152
WVS = 2304
LDS_O = 6400
LDS_K = LDS_O + 4 * WVS
assert LDS_K % 256 == 0
LDS_END = LDS_K + 4 * 12288

class VM:
    def __init__(self): self.ops = []
    def issue(self, name, counted=True, w=None): self.ops.append((name, counted, (1.0 if counted else None) if w is None else w))
    def after(self, name):
        idx = max(i for i, (n, c, w) in enumerate(self.ops) if n == name)
        return sum(1 for n, c, w in self.ops[idx + 1:] if c)
    def pace_n(self, room):
        n = 0; tot = 0.0
        for name, c, w in reversed(self.ops):
            if w is None: continue
            if tot + w > room: return n, True
            tot += w; n += 1
        return n, False

def gen(d=5, dpat=None, d0=None, pol="nt", kpol=None, wpol="nt", w2pol="", stamp=False, wd_pre=True, wo_pre=False, lock=0,
        p1=22, p2=100, pe=123, qk_at=37, outpol="", stpol="sc1", ldpol="sc1", spin=200000, header=None, probe=None, pbase=6000,
        sleep1=0, sleep2=0, nap=2, sprio=1, dend=None, lds_pad=0, adapt=None, db=7, alev=None, win=8, mkstr=7, npeer=16, adelay=True, aw=6, skewprobe=0, pslot=255, prow=None):
    if kpol is None: kpol = pol
    if d0 is None: d0 = d
    L = []
    def A(s):
        for line in s.strip("\n").split("\n"):
            t = line.strip()
            L.append(t if t.endswith(":") else "    " + t)
    vm = VM()
    diag = stamp or probe or skewprobe
    names = ["start", "W", "pubA", "qw", "q", "exp", "pubML", "V7", "B5", "pubO", "og", "pubY", "yg", "end"]
    stn = {n: 70 + 2 * i for i, n in enumerate(names)}
    def ST(name):
        if diag: A("s_memrealtime s[%d:%d]" % (stn[name], stn[name] + 1))
    def wait(name, extra=0):
        n = vm.after(name) + extra
        assert n <= 63
        A("s_waitcnt vmcnt(%d)" % n)
    npace = [0]; amode = [False]
    def pace(dd=None, w=1.0):
        if amode[0] and dd is None:
            l1 = newlabel("pc")
            dd = dpat[npace[0] % len(dpat)] if dpat else d
            npace[0] += 1
            A("s_waitcnt vmcnt(%d)\ns_cbranch_vccnz %s\ns_waitcnt vmcnt(%d)\n%s:" % (vm.pace_n(db - w)[0], l1, vm.pace_n(dd - w)[0], l1))
            return
        if dd is None:
            dd = dpat[npace[0] % len(dpat)] if dpat else d
            npace[0] += 1
        n, need = vm.pace_n(dd - w)
        if need: A("s_waitcnt vmcnt(%d)" % n)
    lab = [0]
    def newlabel(p):
        lab[0] += 1; return "L_%s%d" % (p, lab[0])

    vL, vVO, vSP, vG = 1, 3, 4, 8
    Q0, O0, AX0, S0 = 16, 16, 24, 32
    vKS, vKR = 88, 92
    YA, PUB, vWO, vWD2, vHH = 64, 72, 76, 77, 78
    WOR, WDR, WOF, T = 128, 144, 160, 192
    def buf(i): return 96 + 16 * (i % 10)
    def Kreg(t): return buf(t)
    def Vreg(t): return buf(t + 6)
    sK, sV, sW, sWS, sWO, sWD = 32, 36, 40, 44, 48, 52
    sB, sREST, sTAG, sSTR = 30, 31, 56, 58
    sKO, sVO, sSLOT, sM0 = 66, 67, 59, 101
    WS = "s[%d:%d]" % (sWS, sWS + 3)
    tstep = 4 * 4096

    def dpp(op, dst, a, b, ctrl):
        A("%s_dpp v%d, v%d, v%d %s row_mask:0xf bank_mask:0xf" % (op, dst, a, b, ctrl))
    def xrows(op, x, t):
        A("v_mov_b32 v%d, v%d\ns_nop 1\nv_permlane16_swap_b32 v%d, v%d\n%s v%d, v%d, v%d" % (t, x, t, x, op, x, t, x))
        A("v_mov_b32 v%d, v%d\ns_nop 1\nv_permlane32_swap_b32 v%d, v%d\n%s v%d, v%d, v%d" % (t, x, t, x, op, x, t, x))
    def cmpn(tagregs):
        A("v_cmp_ne_u32 vcc, s%d, v%d" % (sTAG, tagregs[0]))
        for r in tagregs[1:]:
            A("v_cmp_ne_u32 s[68:69], s%d, v%d\ns_or_b64 vcc, vcc, s[68:69]" % (sTAG, r))
    def poll(loads, tagregs, sleep=0, first=True):
        lo, lc = newlabel("spin"), newlabel("chk")
        A("s_mov_b32 s62, 0")
        if not first: A("s_branch %s" % lc)
        elif sleep: A("s_branch %s_n" % lo)
        A("%s:" % lo)
        if sleep: A("s_sleep %d\n%s_n:" % (sleep, lo))
        for s in loads: A(s)
        A("s_add_u32 s62, s62, 1\ns_cmp_gt_u32 s62, %d\ns_cbranch_scc1 L_bail" % spin)
        A("%s:" % lc)
        A("s_waitcnt vmcnt(0)")
        cmpn(tagregs)
        A("s_wqm_b64 exec, vcc\ns_cbranch_scc1 %s" % lo)
        A("s_mov_b64 exec, -1")
    def bump(off):
        A("v_mov_b32 v12, 0\nv_mov_b32 v13, 1\ns_mov_b64 exec, 1\nds_add_u32 v12, v13 offset:%d\ns_mov_b64 exec, -1" % off)
    def await_lds(off, val, sleep):
        lo = newlabel("lw")
        A("v_mov_b32 v12, 0\ns_mov_b32 s62, 0\ns_branch %s_n\n%s:" % (lo, lo))
        if sleep: A("s_sleep %d" % sleep)
        A("%s_n:\nds_read_b32 v13, v12 offset:%d\ns_add_u32 s62, s62, 1\ns_cmp_gt_u32 s62, %d\ns_cbranch_scc1 L_bail" % (lo, off, spin * 8))
        A("s_waitcnt lgkmcnt(0)\nv_readfirstlane_b32 s63, v13\ns_cmp_lt_u32 s63, %d\ns_cbranch_scc1 %s" % (val, lo))
    def only_wave(w, skip): A("s_cmp_lg_u32 s3, %d\ns_cbranch_scc1 %s" % (w, skip))

    def srds2():
        A("s_mov_b32 s%d, s28\ns_mov_b32 s%d, s29\ns_mov_b32 s%d, %d\ns_mov_b32 s%d, 0x20000" % (sWS, sWS + 1, sWS + 2, 0x500000 if stamp else WS_USED, sWS + 3))
        A("s_mov_b32 s%d, s12\ns_mov_b32 s%d, s13\ns_mov_b32 s%d, 0x400000\ns_mov_b32 s%d, 0x20000" % (sWO, sWO + 1, sWO + 2, sWO + 3))
        A("s_mov_b32 s%d, s20\ns_mov_b32 s%d, s21\ns_mov_b32 s%d, 1835008\ns_mov_b32 s%d, 0x20000" % (sWD, sWD + 1, sWD + 2, sWD + 3))
    def tag():
        A("s_waitcnt lgkmcnt(0)")
        A("s_mul_i32 s%d, s%d, 0x9e3779b5\ns_add_u32 s%d, s%d, 0x7f4a7c15" % (sTAG, sTAG, sTAG, sTAG))
    def w2_prep():
        A("v_lshrrev_b32 v9, 3, v%d\nv_and_b32 v12, 7, v%d\nv_lshlrev_b32 v%d, 4, v12\nv_lshl_add_u32 v%d, v9, 10, v%d" % (vL, vL, vWO, vWO, vWO))
        A("v_cmp_gt_u32 s[68:69], 6, v9\nv_mov_b32 v13, 0x10000000\ns_mul_i32 s58, s%d, %d\ns_lshl_b32 s64, s3, 7\ns_add_u32 s58, s58, s64" % (sREST, 14 * 1024))
        A("v_cndmask_b32 v%d, v13, v%d, s[68:69]\ns_lshl_b32 s57, s%d, 15\ns_add_u32 s57, s57, s64" % (vWD2, vWO, sREST))
    def load_wo(a):
        A("buffer_load_dwordx4 v[%d:%d], v%d, s[%d:%d], s57 offen %s" % (WOR + 4 * a, WOR + 4 * a + 3, vWO, sWO, sWO + 3, w2pol))
        vm.issue("wo")
        if a < 3: A("s_add_u32 s57, s57, 8192")
    def load_wd(a):
        if a == 1: A("s_add_u32 s58, s58, 8192")
        A("buffer_load_dwordx4 v[%d:%d], v%d, s[%d:%d], s58 offen %s" % (WDR + 4 * a, WDR + 4 * a + 3, vWD2 if a else vWO, sWD, sWD + 3, w2pol)); vm.issue("wd")

    L.append((header or "") + "; @launch grid=(256,1,1) block=(512,1,1) lds=%d" % (LDS_END + lds_pad))
    if stamp: L.append("; stamps: " + " ".join(names))
    L.append('.amdgcn_target "amdgcn-amd-amdhsa--gfx950"\n.text\n.globl %s_kernel\n.p2align 8\n.type %s_kernel,@function\n%s_kernel:' % (NAME, NAME, NAME))
    A("s_cmp_ge_u32 s2, 256\ns_cbranch_scc1 L_end")
    A("s_load_dwordx16 s[4:19], s[0:1], 0\ns_load_dwordx8 s[20:27], s[0:1], 64\ns_load_dwordx2 s[28:29], s[0:1], 96")
    ST("start")
    A("v_lshrrev_b32 v9, 6, v0\nv_and_b32 v%d, 63, v0\nv_readfirstlane_b32 s3, v9" % vL)
    A("s_bfe_u32 s%d, s2, 0x10003" % sB)
    A("s_and_b32 s%d, s2, 7\ns_lshr_b32 s63, s2, 4\ns_lshl_b32 s63, s63, 3\ns_or_b32 s%d, s%d, s63" % (sREST, sREST, sREST))
    A("s_lshl_b32 s%d, s%d, 7\ns_add_u32 s%d, s%d, s%d" % (sSLOT, sB, sSLOT, sSLOT, sREST))
    A("v_lshrrev_b32 v10, 4, v%d\nv_and_b32 v11, 15, v%d\nv_lshlrev_b32 v%d, 4, v%d" % (vL, vL, vVO, vL))
    A("s_cmp_ge_u32 s3, 4\ns_cbranch_scc1 L_helper")

    if sprio: A("s_setprio %d" % sprio)
    A("v_lshlrev_b32 v12, 2, v10\nv_xor_b32 v12, v12, v11\nv_lshlrev_b32 v12, 4, v12\nv_lshl_add_u32 v%d, v10, 8, v12" % vKS)
    for i in range(1, 4): A("v_xor_b32 v%d, %d, v%d" % (vKS + i, 16 * i, vKS))
    A("s_lshl_b32 s%d, s3, 12\ns_mov_b32 s%d, s%d" % (sKO, sVO, sKO))
    A("s_lshl_b32 s65, s%d, 18" % sSLOT)
    A("s_mul_i32 s%d, s3, 12288\ns_add_u32 s%d, s%d, %d" % (sM0, sM0, sM0, LDS_K))
    A("s_movk_i32 s%d, 3584\ns_cmp_lt_u32 s%d, 64\ns_cselect_b32 s%d, 8192, s%d" % (sSTR, sREST, sSTR, sSTR))
    A("s_lshl_b32 s63, s%d, 4\nv_mul_u32_u24 v12, s63, v10\nv_lshl_add_u32 v12, v11, 3, v12" % sSTR)
    A("s_lshl_b32 s62, s%d, 2\ns_add_u32 s62, s62, s3\ns_lshl_b32 s62, s62, 6" % sB)
    A("v_bfe_u32 v13, v11, 2, 1\nv_lshlrev_b32 v13, 10, v13\nv_lshl_add_u32 v13, v10, 5, v13\ns_lshl_b32 s63, s62, 1\nv_add_u32 v13, s63, v13")
    A("s_mul_i32 s63, s62, s%d" % sSTR)
    A("s_sub_u32 s64, s%d, 64\ns_cmp_lt_u32 s%d, 64\ns_cselect_b32 s64, s%d, s64\ns_sub_u32 s62, s%d, 92\ns_cmp_ge_u32 s%d, 92\ns_cselect_b32 s64, s62, s64\ns_lshl_b32 s64, s64, 7" % (sREST, sREST, sREST, sREST, sREST))
    A("s_mul_i32 s%d, s%d, 511\ns_add_u32 s%d, s%d, 128\ns_mov_b32 s%d, 0x20000" % (sW + 2, sSTR, sW + 2, sW + 2, sW + 3))
    A("s_mov_b32 s%d, 0x40000\ns_mov_b32 s%d, 0x20000" % (sK + 2, sK + 3))
    A("s_waitcnt lgkmcnt(0)")
    A("s_add_u32 s%d, s6, s65\ns_addc_u32 s%d, s7, 0" % (sK, sK + 1))
    A("s_cmp_ge_u32 s%d, 120\ns_cbranch_scc1 L_noA1" % sREST)
    A("s_cmp_lt_u32 s%d, 64\ns_cselect_b32 s%d, s10, s16\ns_cselect_b32 s%d, s11, s17" % (sREST, sW, sW + 1))
    A("s_cmp_ge_u32 s%d, 92\ns_cselect_b32 s%d, s18, s%d\ns_cselect_b32 s%d, s19, s%d" % (sREST, sW, sW, sW + 1, sW + 1))
    A("s_add_u32 s%d, s%d, s64\ns_addc_u32 s%d, s%d, 0" % (sW, sW, sW + 1, sW + 1))
    A("global_load_dwordx4 v[64:67], v13, s[4:5]\nglobal_load_dwordx4 v[68:71], v13, s[4:5] offset:16")
    vm.issue("X", False); vm.issue("X", False)
    for q in range(16):
        pace(d0, 0.5)
        A("buffer_load_dwordx2 v[%d:%d], v12, s[%d:%d], s63 offen %s" % (32 + 2 * q, 33 + 2 * q, sW, sW + 3, wpol))
        vm.issue("W%d" % q, False, 0.5)
        if q < 15: A("s_add_u32 s63, s63, s%d" % sSTR)
    A("L_noA1:")
    slots = {}
    def at(i, f): slots.setdefault(i, []).append(f)
    def loadK(t, i):
        if i == 0:
            A("s_add_u32 s63, s%d, %d\ns_mov_b32 m0, s63" % (sM0, (t % 3) * 4096))
            A("s_waitcnt lgkmcnt(0)" if t >= 3 else "s_nop 0")
        A("buffer_load_dwordx4 v%d, s[%d:%d], s%d offen offset:%d %s lds" % (vKS + i, sK, sK + 3, sKO, 1024 * i, kpol))
        vm.issue("K%d" % t)
        if i == 3 and t < 15: A("s_add_u32 s%d, s%d, %d" % (sKO, sKO, tstep))
    def readK(t):
        wait("K%d" % t)
        for i in range(4):
            A("ds_read_b128 v[%d:%d], v%d offset:%d" % (Kreg(t) + 4 * i, Kreg(t) + 4 * i + 3, vKR + i, (t % 3) * 4096))
    def loadV(t, i):
        A("buffer_load_dwordx4 v[%d:%d], v%d, s[%d:%d], s%d offen offset:%d %s" % (Vreg(t) + 4 * i, Vreg(t) + 4 * i + 3, vVO, sV, sV + 3, sVO, 1024 * i, pol))
        vm.issue("V%d.%d" % (t, i))
        if i == 3 and t < 15: A("s_add_u32 s%d, s%d, %d" % (sVO, sVO, tstep))
    def setup2():
        A("s_load_dword s%d, s[28:29], %d" % (sTAG, WS_EPOCH))
        A("s_barrier")
        A("s_add_u32 s%d, s8, s65\ns_addc_u32 s%d, s9, 0\ns_mov_b32 s%d, 0x40000\ns_mov_b32 s%d, 0x20000" % (sV, sV + 1, sV + 2, sV + 3))
        A("v_and_b32 v9, 1, v%d\nv_cmp_eq_u32 vcc, 1, v9\nv_mov_b32 v12, 0x0c0c0100\nv_mov_b32 v9, 0x01000c0c\nv_mov_b32 v13, 0x0c0c0302\nv_mov_b32 v15, 0x03020c0c" % vL)
        A("v_cndmask_b32 v12, v12, v9, vcc\nv_cndmask_b32 v13, v13, v15, vcc")
        A("v_and_b32 v9, 2, v%d\nv_cmp_eq_u32 vcc, 2, v9\nv_mov_b32 v15, 0x0c0c0c0c\ns_nop 0" % vL)
        A("v_cndmask_b32 v%d, v12, v15, vcc\nv_cndmask_b32 v%d, v15, v12, vcc\nv_cndmask_b32 v%d, v13, v15, vcc\nv_cndmask_b32 v%d, v15, v13, vcc" % (vSP, vSP + 1, vSP + 2, vSP + 3))
        A("v_and_b32 v12, 3, v11\nv_lshlrev_b32 v12, 10, v12\nv_lshrrev_b32 v13, 2, v11\nv_lshl_add_u32 v12, v13, 8, v12\nv_xor_b32 v13, v10, v11\nv_lshl_add_u32 v12, v13, 4, v12\nv_add_u32 v%d, s%d, v12" % (vKR, sM0))
        for i in range(1, 4): A("v_xor_b32 v%d, %d, v%d" % (vKR + i, 64 * i, vKR))
    def phaseA(half):
        def f():
            l1 = newlabel("skipA")
            A("s_cmp_ge_u32 s%d, 120\ns_cbranch_scc1 %s" % (sREST, l1))
            A("s_waitcnt vmcnt(%d)" % (vm.after("W15") + (8 if half == 0 else 0)))
            for u in range(8 * half, 8 * half + 8):
                for j2 in range(2):
                    A("v_perm_b32 v%d, v%d, v%d, v%d" % (96 + 2 * (u & 7) + j2, 64 + (u >> 1), 64 + (u >> 1), vSP + 2 * (u & 1) + j2))
            for u in range(8 * half, 8 * half + 8):
                A("v_mfma_f32_16x16x16_bf16 v[72:75], v[%d:%d], v[%d:%d], %s" % (96 + 2 * (u & 7), 97 + 2 * (u & 7), 32 + 2 * u, 33 + 2 * u, "0" if u == 0 else "v[72:75]"))
            if half == 1:
                ST("W")
                A("s_lshl_b32 s63, s3, 10\nv_add_u32 v9, s63, v%d\ns_nop 6" % vVO)
                A("ds_write_b128 v9, v[72:75] offset:%d" % LDS_A)
                bump(LDS_C)
            A("%s:" % l1)
        return f
    def progress(val):
        def f():
            l1 = newlabel("pg")
            only_wave(0, l1)
            A("v_mov_b32 v12, 0\nv_mov_b32 v13, %d\nds_write_b32 v12, v13 offset:%d" % (val, LDS_C + 12))
            A("%s:" % l1)
        return f
    def q_wait():
        ST("qw")
        A("v_lshrrev_b32 v9, 2, v11\nv_lshlrev_b32 v9, 8, v9\nv_lshl_add_u32 v9, v10, 4, v9")
        await_lds(LDS_C + 8, 4, 0)
        for i in range(4):
            A("ds_read_b128 v[%d:%d], v9 offset:%d" % (Q0 + 4 * i, Q0 + 4 * i + 3, LDS_Q + 64 * i))
        ST("q")
    def qk(ts):
        def f():
            A("s_waitcnt lgkmcnt(0)")
            for t in ts:
                for i in range(4):
                    A("v_mfma_f32_16x16x32_bf16 v[%d:%d], v[%d:%d], v[%d:%d], %s" % (S0 + 4 * t, S0 + 4 * t + 3, Kreg(t) + 4 * i, Kreg(t) + 4 * i + 3, Q0 + 4 * i, Q0 + 4 * i + 3,
                      "0" if i == 0 else "v[%d:%d]" % (S0 + 4 * t, S0 + 4 * t + 3)))
        return f
    def smax():
        A("v_max3_f32 v9, v32, v33, v34\nv_max3_f32 v14, v35, v36, v37")
        rs = list(range(38, 96))
        for k in range(0, len(rs), 2): A("v_max3_f32 v%d, v%d, v%d, v%d" % ((9, 14)[(k >> 1) & 1], (9, 14)[(k >> 1) & 1], rs[k], rs[k + 1]))
        A("v_max_f32 v9, v9, v14")
        A("s_mov_b32 s65, 0x%08x" % f2u(128 ** -0.5 * LOG2E))
        xrows("v_max_f32", 9, 12)
        A("v_mul_f32 v9, s65, v9")
    def sexp(lo, hi):
        def f():
            for r in range(lo, hi): A("v_fma_f32 v%d, v%d, s65, -v9" % (r, r))
            for r in range(lo, hi): A("v_exp_f32 v%d, v%d" % (r, r))
            if hi == 96: ST("exp")
        return f
    def ssum(lo, hi):
        def f():
            for r in range(lo, hi, 2):
                if r == 32: A("v_mov_b32 v14, v32\nv_mov_b32 v15, v33")
                else: A("v_pk_add_f32 v[14:15], v[14:15], v[%d:%d]" % (r, r + 1))
            for r in range(lo, hi, 2): A("v_cvt_pk_bf16_f32 v%d, v%d, v%d" % (32 + (r - 32) // 2, r, r + 1))
            if hi == 96:
                A("v_add_f32 v15, v15, v14")
                xrows("v_add_f32", 15, 14)
                A("v_lshrrev_b32 v14, 2, v11\nv_lshlrev_b32 v14, 4, v14\ns_lshl_b32 s63, s3, 2\nv_add_u32 v14, s63, v14")
                A("ds_write_b32 v14, v9 offset:%d\nds_write_b32 v14, v15 offset:%d" % (LDS_M, LDS_L))
                bump(LDS_C + 4)
        return f
    def expand(t):
        for r in range(4):
            for j2 in range(2):
                A("v_perm_b32 v%d, v%d, v%d, v%d" % (AX0 + 2 * r + j2, 32 + 2 * t + (r >> 1), 32 + 2 * t + (r >> 1), vSP + 2 * (r & 1) + j2))
    def pvm(t, r):
        for hf in range(2):
            A("v_mfma_f32_16x16x16_bf16 v[%d:%d], v[%d:%d], v[%d:%d], %s" % (O0 + 4 * hf, O0 + 4 * hf + 3, AX0 + 2 * r, AX0 + 2 * r + 1,
              Vreg(t) + 4 * r + 2 * hf, Vreg(t) + 4 * r + 2 * hf + 1, "0" if (t == 0 and r == 0) else "v[%d:%d]" % (O0 + 4 * hf, O0 + 4 * hf + 3)))
    def pv(t):
        def f():
            expand(t); wait("V%d.3" % t)
            for r in range(4): pvm(t, r)
        return f
    def s_prep():
        srds2(); tag(); w2_prep()
        A("v_lshlrev_b32 v10, 4, v%d\ns_mul_i32 s63, s3, %d\nv_add_u32 v10, s63, v10" % (vL, WVS))
        A("v_lshlrev_b32 v15, 11, v9\nv_lshl_add_u32 v15, v12, 4, v15")
        A("s_and_b32 s100, s%d, 0xf0\ns_and_b32 s63, s3, 1\ns_lshl_b32 s63, s63, 3\ns_add_u32 s100, s100, s63\ns_lshl_b32 s100, s100, 11\ns_and_b32 s63, s%d, 15\ns_lshl_b32 s63, s63, 7\ns_add_u32 s100, s100, s63\ns_add_u32 s100, s100, %d" % (sSLOT, sREST, WS_OP))
        A("s_cmp_ge_u32 s3, 2\ns_cselect_b32 s63, 0, -1\nv_and_b32 v15, s63, v15")
        A("v_mov_b32 v%d, s%d\nv_mov_b32 v%d, s%d" % (PUB + 1, sTAG, PUB + 3, sTAG))
    dm = max(dpat) if dpat else d
    if adapt: dm = max(dm, db)
    dmv = max(dm, dend[1]) if dend else dm
    assert 4 <= dm <= 8
    at(0, setup2)
    at(1, phaseA(0)); at(min(dm, 6), phaseA(1))
    assert min(dm, 6) < 3 + dm
    for t in range(16): at(4 * t + 3 + dm, lambda t=t: readK(t))
    for p in sorted(set([p1, p2, pe] + (adapt or []))): at(p, progress(p))
    if adapt:
        a0 = adapt[0] + win
        at(a0 - 1, lambda: A("s_mov_b64 vcc, 0"))
        for j, p in enumerate(range(a0, 126, win)):
            at(p, lambda: A("v_mov_b32 v2, 0\nds_read_b32 v0, v2 offset:%d" % (LDS_C + 16)))
            at(p + 1, lambda j=j: A("s_waitcnt lgkmcnt(0)\nv_and_b32 v0, %d, v0\nv_cmp_ne_u32 vcc, 0, v0" % (1 << (j % 8))))
    at(qk_at - 1, q_wait)
    t = 0; s = qk_at
    while t < 16:
        ts = [u for u in (t, t + 1) if u < 16 and 4 * u + 3 + dm < s and (u < 14 or s >= 64)]
        if ts:
            assert all(s < 4 * (u + 10) + 3 + dm for u in ts)
            at(s, qk(ts)); t += len(ts); slast = s
        s += 1
    at(slast + 1, smax)
    for k in range(4): at(slast + 2 + k, sexp(32 + 16 * k, 48 + 16 * k))
    at(slast + 6, ssum(32, 64)); at(slast + 7, ssum(64, 96))
    nxt = slast + 8; late = []
    for t in range(15):
        nxt = max(nxt, 67 + 4 * t + dmv)
        if nxt <= 127: at(nxt, pv(t))
        else: late.append(t)
        assert t + 10 > 15 or nxt < 64 + 4 * (t + 10)
        nxt += 1
    at(113, s_prep)
    for i in range(128):
        if adapt and i == adapt[0] + win: amode[0] = True
        if dend and i >= dend[0]: pace(dend[1])
        else: pace()
        if i < 64: loadK(i >> 2, i & 3)
        else: loadV((i - 64) >> 2, i & 3)
        for f in slots.get(i, []): f()
    amode[0] = False
    pre = ([lambda: load_wd(0), lambda: load_wd(1)] if wd_pre else []) + ([lambda a=a: load_wo(a) for a in range(4)] if wo_pre else [])
    for t in late:
        pv(t)()
        if pre: pre.pop(0)()
    expand(15)
    for r in range(4):
        wait("V15.%d" % r)
        if r == 3: ST("V7")
        pvm(15, r)
        k = (len(pre) + 2 - r) // (3 - r) if r < 3 else 0
        for _ in range(k): pre.pop(0)()
    assert not pre
    A("s_nop 6")
    A("ds_write_b128 v10, v[16:19] offset:%d\nds_write_b128 v10, v[20:23] offset:%d" % (LDS_O, LDS_O + HFS))
    A("s_waitcnt lgkmcnt(0)\ns_barrier")
    ST("B5")
    opl = "buffer_load_dwordx4 v[%d:%d], v15, %s, s100 offen %s" % (T, T + 3, WS, ldpol)
    A(opl)
    A("s_branch L_join")

    A("L_helper:")
    A("v_mov_b32 v12, 0\nv_mov_b32 v13, 0\nv_mov_b32 v14, 0\nv_mov_b32 v15, 0\nds_write_b128 v12, v[12:15] offset:%d\nds_write_b32 v12, v12 offset:%d" % (LDS_C, LDS_C + 16))
    A("s_waitcnt lgkmcnt(0)")
    A("s_load_dword s%d, s[28:29], %d" % (sTAG, WS_EPOCH))
    A("s_barrier")
    srds2()
    only_wave(5, "L_nox")
    A("s_lshl_b32 s63, s%d, 10\nv_add_u32 v9, s63, v%d" % (sB, vVO))
    A("global_load_dwordx4 v[32:35], v9, s[4:5]\nglobal_load_dwordx4 v[36:39], v%d, s[22:23]" % vVO)
    A("s_waitcnt vmcnt(0)")
    A("v_dot2_f32_bf16 v%d, v32, v36, 0" % vG)
    for i in range(1, 4): A("v_dot2_f32_bf16 v%d, v%d, v%d, v%d" % (vG, 32 + i, 36 + i, vG))
    A("s_nop 2")
    for c in ("quad_perm:[1,0,3,2]", "quad_perm:[2,3,0,1]", "row_half_mirror", "row_mirror"):
        dpp("v_add_f32", vG, vG, vG, c); A("s_nop 1")
    xrows("v_add_f32", vG, 9)
    A("v_mul_f32 v%d, 0x%08x, v%d\nv_exp_f32 v%d, v%d\ns_nop 0\nv_add_f32 v%d, 1.0, v%d\nv_rcp_f32 v%d, v%d" % (vG, f2u(-LOG2E), vG, vG, vG, vG, vG, vG, vG))
    A("L_nox:")
    tag()
    only_wave(4, "L_noA2")
    A("s_cmp_ge_u32 s%d, 120\ns_cbranch_scc1 L_noA2" % sREST)
    A("v_lshlrev_b32 v9, 3, v%d\nv_lshrrev_b32 v14, 5, v%d\nv_mul_u32_u24 v14, %d, v14\nv_add_u32 v14, v14, v9" % (vL, vL, 30720 - 256))
    A("s_mul_i32 s64, s%d, 61440\ns_lshl_b32 s65, s%d, 8\ns_add_u32 s64, s64, s65\ns_add_u32 s64, s64, %d" % (sB, sREST, WS_QG))
    await_lds(LDS_C, 4, 1)
    for w in range(4):
        A("ds_read_b64 v[%d:%d], v9 offset:%d" % (32 + 2 * w, 33 + 2 * w, LDS_A + 1024 * w))
    A("s_waitcnt lgkmcnt(0)\nv_pk_add_f32 v[32:33], v[32:33], v[34:35]\nv_pk_add_f32 v[36:37], v[36:37], v[38:39]\nv_pk_add_f32 v[32:33], v[32:33], v[36:37]")
    A("v_cvt_pk_bf16_f32 v32, v32, v33\nv_mov_b32 v33, s%d" % sTAG)
    A("buffer_store_dwordx2 v[32:33], v14, %s, s64 offen %s" % (WS, stpol))
    A("L_noA2:")
    ST("pubA")
    def adapt_cps(cs, setup=False):
        l1 = newlabel("noad")
        if setup:
            nrow = npeer // 8; span = 32 // nrow
            A("s_lshr_b32 s64, s2, 3\ns_and_b32 s60, s64, %d\ns_mul_i32 s60, s60, %d\ns_lshr_b32 s64, s64, %d\ns_lshl_b32 s64, s64, 3\ns_and_b32 s63, s2, 7\ns_add_u32 s64, s64, s63\ns_add_u32 s64, s64, s60" % (span - 1, npeer, span.bit_length() - 1))
            A("s_lshl_b32 s64, s64, %d\ns_add_u32 s66, s64, %d\ns_lshl_b32 s60, s60, %d\ns_add_u32 s60, s60, %d" % (mkstr, WS_MK, mkstr, WS_MK))
            A("v_and_b32 v50, %d, v%d\nv_lshlrev_b32 v50, %d, v50\nv_mov_b32 v51, 0\nv_mov_b32 v52, s%d" % (npeer - 1, vL, mkstr, sTAG))
            if stamp: A("s_mov_b32 s71, 0")
        only_wave(aw, l1)
        for c in cs:
            await_lds(LDS_C + 12, adapt[c], 1)
            A("s_mov_b64 exec, 1\nbuffer_store_dword v52, v51, %s, s66 offen %s\ns_mov_b64 exec, -1" % (WS, stpol))
            if adelay: A("s_waitcnt vmcnt(0)")
            A("buffer_load_dword v53, v50, %s, s60 offen %s" % (WS, ldpol))
            A("s_add_u32 s66, s66, 32768\ns_add_u32 s60, s60, 32768\ns_waitcnt vmcnt(0)")
            A("v_cmp_eq_u32 vcc, s%d, v53\ns_bcnt1_i32_b64 s63, vcc\ns_mov_b32 s61, 0" % sTAG)
            for thr, m in alev:
                A("s_cmp_ge_u32 s63, %d\ns_cselect_b32 s61, %d, s61" % (thr, m))
            A("v_mov_b32 v53, s61\nds_write_b32 v51, v53 offset:%d" % (LDS_C + 16))
            if stamp: A("s_min_u32 s63, s63, 63\ns_lshl_b32 s63, s63, %d\ns_or_b32 s71, s71, s63" % (6 * c))
        A("%s:" % l1)
    if adapt: adapt_cps([c for c, cp in enumerate(adapt) if cp < p1], True)
    A("v_lshrrev_b32 v40, 5, v%d\nv_mul_u32_u24 v40, %d, v40\nv_add_u32 v40, v40, v%d" % (vL, 61440 - 512, vVO))
    A("s_mul_i32 s98, s%d, 30720\ns_lshr_b32 s64, s%d, 4\ns_lshl_b32 s64, s64, 11\ns_add_u32 s98, s98, s64\ns_and_b32 s65, s3, 3\ns_lshl_b32 s64, s65, 9\ns_add_u32 s98, s98, s64\ns_add_u32 s98, s98, %d" % (sB, sREST, WS_QG))
    await_lds(LDS_C + 12, p1, nap)
    poll(["buffer_load_dwordx4 v[32:35], v40, %s, s98 offen %s" % (WS, ldpol)], [33, 35], 4)
    A("v_mov_b32 v36, v32\nv_mov_b32 v37, v34\ns_lshl_b32 s63, s65, 8\ns_add_u32 s63, s63, %d\nv_permlane32_swap_b32 v36, v32\nv_permlane32_swap_b32 v37, v34" % LDS_Q)
    for a, b in ((36, 32), (37, 34)):
        A("v_lshlrev_b32 v12, 16, v%d\nv_lshlrev_b32 v13, 16, v%d\nv_and_b32 v14, 0xffff0000, v%d\nv_and_b32 v15, 0xffff0000, v%d" % (a, b, a, b))
        A("v_add_f32 v12, v12, v13\nv_add_f32 v14, v14, v15\nv_cvt_pk_bf16_f32 v%d, v12, v14" % a)
    A("v_and_b32 v9, 31, v%d\nv_lshl_add_u32 v9, v9, 3, s63" % vL)
    A("ds_write2_b32 v9, v36, v37 offset0:0 offset1:1")
    bump(LDS_C + 8)
    only_wave(5, "L_noside")
    A("v_min_u32 v40, 13, v11\nv_lshrrev_b32 v40, 1, v40\nv_lshlrev_b32 v40, 3, v40")
    A("s_mul_i32 s63, s%d, 7\ns_mul_i32 s64, s%d, 3840\ns_add_u32 s63, s63, s64\ns_lshl_b32 s63, s63, 3\ns_add_u32 s63, s63, %d" % (sREST, sB, WS_QG + 2048 * 8))
    A("v_and_b32 v41, 1, v10\nv_mul_u32_u24 v41, 61440, v41\nv_lshrrev_b32 v42, 1, v10\nv_mul_u32_u24 v42, %d, v42\nv_add3_u32 v40, v40, v41, v42\nv_add_u32 v40, s63, v40" % (896 * 8))
    poll(["buffer_load_dwordx2 v[32:33], v40, %s, 0 offen %s" % (WS, ldpol)], [33], 4)
    A("v_and_b32 v34, 1, v%d\nv_cmp_eq_u32 vcc, 1, v34\nv_lshlrev_b32 v34, 16, v32\nv_and_b32 v35, 0xffff0000, v32" % vL)
    A("v_cndmask_b32 v34, v34, v35, vcc\nv_cmp_gt_u32 vcc, 14, v11\nv_mov_b32 v35, v34\ns_nop 1\nv_permlane16_swap_b32 v35, v34\nv_add_f32 v34, v34, v35")
    A("v_mov_b32 v36, v34\ns_nop 1\nv_permlane32_swap_b32 v34, v36")
    A("v_mul_f32 v34, 0x%08x, v34\nv_exp_f32 v34, v34\nv_sub_f32 v37, 1.0, v%d\nv_add_f32 v34, 1.0, v34\nv_rcp_f32 v34, v34\nv_mul_f32 v36, v36, v37" % (f2u(-LOG2E), vG))
    A("v_mul_f32 v34, v34, v36\nv_cndmask_b32 v34, 0, v34, vcc")
    A("v_and_b32 v35, 7, v11\nv_lshlrev_b32 v35, 3, v35\nv_lshrrev_b32 v36, 3, v11\nv_lshl_add_u32 v35, v36, 2, v35")
    A("ds_write_b32 v35, v34 offset:%d" % LDS_H)
    A("v_and_b32 v40, 3, v%d\nv_lshlrev_b32 v40, 4, v40\nv_bfe_u32 v41, v%d, 2, 1\nv_lshl_add_u32 v41, v41, 6, v40" % (vL, vL))
    A("s_lshl_b32 s64, s%d, 7\ns_add_u32 s64, s64, %d\nv_mov_b32 v45, s%d\nv_mov_b32 v47, s%d" % (sSLOT, WS_ML, sTAG, sTAG))
    await_lds(LDS_C + 4, 4, nap)
    A("ds_read_b128 v[32:35], v40 offset:%d\nds_read_b128 v[36:39], v40 offset:%d" % (LDS_M, LDS_L))
    A("v_and_b32 v42, 12, v%d\nv_add_u32 v42, v42, v40\nds_read_b32 v43, v42 offset:%d" % (vL, LDS_M))
    A("s_waitcnt lgkmcnt(0)\nv_max3_f32 v44, v32, v33, v34\nv_max_f32 v44, v44, v35")
    for w in range(4): A("v_sub_f32 v%d, v%d, v44" % (32 + w, 32 + w))
    for w in range(4): A("v_exp_f32 v%d, v%d" % (32 + w, 32 + w))
    A("v_mul_f32 v46, v32, v36")
    for w in range(1, 4): A("v_fmac_f32 v46, v%d, v%d" % (32 + w, 36 + w))
    A("s_mov_b64 exec, 0xff")
    A("buffer_store_dwordx4 v[44:47], v41, %s, s64 offen %s" % (WS, stpol))
    A("s_mov_b64 exec, -1")
    ST("pubML")
    A("s_and_b32 s64, s%d, 0xf0\ns_lshl_b32 s64, s64, 7\ns_add_u32 s64, s64, %d" % (sSLOT, WS_ML))
    A("v_lshrrev_b32 v41, 2, v%d\nv_lshl_add_u32 v41, v41, 7, v40" % vL)
    await_lds(LDS_C + 12, p2, nap)
    poll(["buffer_load_dwordx4 v[32:35], v41, %s, s64 offen %s" % (WS, ldpol)], [33, 35], 4)
    A("v_mov_b32 v36, v32\ns_nop 1")
    for c in ("row_ror:4", "row_ror:8"):
        dpp("v_max_f32", 36, 36, 36, c); A("s_nop 1")
    xrows("v_max_f32", 36, 37)
    A("v_sub_f32 v37, v32, v36\nv_exp_f32 v37, v37\ns_nop 0\nv_mul_f32 v37, v37, v34\ns_nop 1")
    for c in ("row_ror:4", "row_ror:8"):
        dpp("v_add_f32", 37, 37, 37, c); A("s_nop 1")
    xrows("v_add_f32", 37, 38)
    A("v_sub_f32 v43, v43, v36\nv_rcp_f32 v37, v37\nv_exp_f32 v43, v43\nv_mul_f32 v37, v37, v%d\nv_mul_f32 v43, v43, v37" % vG)
    A("ds_write_b32 v42, v43 offset:%d" % LDS_F)
    A("L_noside:")
    if adapt: adapt_cps([c for c, cp in enumerate(adapt) if cp >= p1])
    A("s_cmp_lg_u32 s2, 255\ns_cbranch_scc1 L_noep")
    only_wave(7, "L_noep")
    A("v_lshlrev_b32 v48, 9, v%d\ns_mov_b32 s64, %d" % (vL, WS_ML))
    await_lds(LDS_C + 12, pe, nap)
    poll(["buffer_load_dwordx4 v[%d:%d], v48, %s, s64 offen offset:%d %s" % (32 + 4 * a, 35 + 4 * a, WS, 128 * a, ldpol) for a in range(4)], [33 + 2 * a for a in range(8)], 8)
    A("v_mov_b32 v48, %d\nv_mov_b32 v49, s%d\ns_mov_b64 exec, 1" % (WS_EPOCH, sTAG))
    A("buffer_store_dword v49, v48, %s, 0 offen %s" % (WS, stpol))
    A("s_mov_b64 exec, -1")
    A("L_noep:")
    w2_prep()
    A("v_bfe_u32 v11, v%d, 1, 4\nv_lshlrev_b32 v11, 4, v11\nv_and_b32 v12, 1, v%d\nv_mul_u32_u24 v12, %d, v12" % (vL, vL, HFS))
    A("v_lshrrev_b32 v13, 5, v%d\nv_lshlrev_b32 v13, 3, v13\nv_add3_u32 v11, v11, v12, v13" % vL)
    A("s_and_b32 s65, s3, 3\ns_lshl_b32 s63, s65, 8\nv_add_u32 v11, s63, v11\ns_lshl_b32 s63, s65, 4\nv_mov_b32 v14, s63")
    A("s_lshl_b32 s99, s%d, 11\ns_lshl_b32 s63, s65, 9\ns_add_u32 s99, s99, s63\ns_add_u32 s99, s99, %d" % (sSLOT, WS_OP))
    A("v_mov_b32 v%d, s%d\nv_mov_b32 v%d, s%d\nv_mov_b32 v15, 0" % (PUB + 1, sTAG, PUB + 3, sTAG))
    save = list(vm.ops)
    if wd_pre or wo_pre:
        await_lds(LDS_C + 12, pe, nap)
        if wd_pre: load_wd(0); load_wd(1)
        if wo_pre:
            for a in range(4): load_wo(a)
    vm.ops = save
    A("s_waitcnt lgkmcnt(0)\ns_barrier")
    ST("B5")
    A("ds_read_b128 v[%d:%d], v14 offset:%d" % (T + 8, T + 11, LDS_F))
    for w in range(4):
        A("ds_read_b64 v[%d:%d], v11 offset:%d" % (T + 2 * w, T + 2 * w + 1, LDS_O + w * WVS))
    x = lambda k: T + k
    A("s_waitcnt lgkmcnt(2)\nv_mul_f32 v%d, v%d, v%d\nv_mul_f32 v%d, v%d, v%d\nv_fmac_f32 v%d, v%d, v%d\nv_fmac_f32 v%d, v%d, v%d" % (x(0), x(0), x(8), x(1), x(1), x(8), x(0), x(2), x(9), x(1), x(3), x(9)))
    A("s_waitcnt lgkmcnt(0)\nv_fmac_f32 v%d, v%d, v%d\nv_fmac_f32 v%d, v%d, v%d\nv_fmac_f32 v%d, v%d, v%d\nv_fmac_f32 v%d, v%d, v%d" % (x(0), x(4), x(10), x(1), x(5), x(10), x(0), x(6), x(11), x(1), x(7), x(11)))
    A("v_cvt_pk_bf16_f32 v%d, v%d, v%d\nv_cvt_pk_bf16_f32 v%d, v%d, v%d\ns_nop 1\nv_permlane32_swap_b32 v%d, v%d" % (PUB + 2, x(0), x(1), PUB, x(0), x(1), PUB, PUB + 2))
    A("s_mov_b32 exec_hi, 0")
    A("buffer_store_dwordx4 v[%d:%d], v%d, %s, s99 offen %s" % (PUB, PUB + 3, vVO, WS, stpol))
    A("s_mov_b32 exec_hi, -1")

    A("L_join:")
    vm.issue("x1")
    ST("pubO")
    if not wd_pre: load_wd(0); load_wd(1)
    if not wo_pre:
        for a in range(4): load_wo(a)
    A("v_lshlrev_b32 v13, 3, v9\nds_read_b64 v[%d:%d], v13 offset:%d" % (vHH, vHH + 1, LDS_H))
    A("v_lshlrev_b32 v13, 4, v9")
    A("v_and_b32 v12, 7, v%d\nv_lshrrev_b32 v80, 4, v%d" % (vL, vL))
    A("v_lshlrev_b32 v14, 4, v12\nv_lshrrev_b32 v81, 1, v80\nv_lshl_add_u32 v14, v81, 7, v14")
    A("s_lshl_b32 s99, s%d, 11\ns_lshl_b32 s63, s3, 8\ns_add_u32 s99, s99, s63\ns_add_u32 s99, s99, %d" % (sSLOT, WS_YP))
    A("v_and_b32 v11, 1, v12\nv_lshlrev_b32 v11, 6, v11\nv_lshl_add_u32 v11, v80, 4, v11\nv_lshrrev_b32 v12, 1, v12\nv_lshl_add_u32 v11, v12, 2, v11\ns_and_b32 s63, s3, 1\ns_lshl_b32 s63, s63, 7\nv_add_u32 v11, s63, v11")
    wait("wd")
    A("s_waitcnt lgkmcnt(0)")
    for a in range(2):
        for j in range(4):
            A("v_lshlrev_b32 v80, 16, v%d\nv_and_b32 v81, 0xffff0000, v%d" % (WDR + 4 * a + j, WDR + 4 * a + j))
            op = "v_mul_f32" if a == 0 else "v_fmac_f32"
            A("%s v%d, v%d, v80\n%s v%d, v%d, v81" % (op, YA + 2 * j, vHH + a, op, YA + 2 * j + 1, vHH + a))
    wait("wo")
    for r in range(16):
        A("v_lshlrev_b32 v%d, 16, v%d\nv_and_b32 v%d, 0xffff0000, v%d" % (WOF + 2 * r, WOR + r, WOF + 2 * r + 1, WOR + r))
    def red4(steps):
        A("v_lshlrev_b32 v%d, 16, v%d\nv_lshlrev_b32 v%d, 16, v%d\nv_and_b32 v%d, 0xffff0000, v%d\nv_and_b32 v%d, 0xffff0000, v%d\ns_nop 0" % (x(4), x(0), x(6), x(2), x(5), x(0), x(7), x(2)))
        A("v_permlane32_swap_b32 v%d, v%d\nv_permlane32_swap_b32 v%d, v%d\nv_add_f32 v%d, v%d, v%d\nv_add_f32 v%d, v%d, v%d\ns_nop 1" % (x(4), x(6), x(5), x(7), x(4), x(4), x(6), x(5), x(5), x(7)))
        A("v_permlane16_swap_b32 v%d, v%d\nv_add_f32 v%d, v%d, v%d" % (x(4), x(5), x(4), x(4), x(5)))
        for c in steps:
            A("s_nop 1"); dpp("v_add_f32", x(4), x(4), x(4), c)
    A("s_cmp_ge_u32 s3, 2\ns_cbranch_scc1 L_nog2")
    poll([opl], [x(1), x(3)], sleep1, first=False)
    red4(["row_ror:8"])
    A("ds_write_b32 v11, v%d offset:%d\ns_waitcnt lgkmcnt(0)" % (x(4), LDS_o))
    A("L_nog2:")
    ST("og")
    A("s_barrier")
    A("ds_read_b128 v[%d:%d], v13 offset:%d\nds_read_b128 v[%d:%d], v13 offset:%d" % (x(0), x(3), LDS_o, x(4), x(7), LDS_o + 128))
    A("s_waitcnt lgkmcnt(0)")
    A("v_pk_add_f32 v[%d:%d], v[%d:%d], v[%d:%d]\nv_pk_add_f32 v[%d:%d], v[%d:%d], v[%d:%d]" % (x(0), x(1), x(0), x(1), x(4), x(5), x(2), x(3), x(2), x(3), x(6), x(7)))
    for a in range(4):
        for j in range(0, 8, 2):
            lo = a & 1
            A("v_pk_fma_f32 v[%d:%d], v[%d:%d], v[%d:%d], v[%d:%d] op_sel:[0,%d,0] op_sel_hi:[1,%d,1]" % (YA + j, YA + j + 1, WOF + 8 * a + j, WOF + 8 * a + j + 1, x(a & 2), x((a & 2) + 1), YA + j, YA + j + 1, lo, lo))
    A("s_nop 1")
    for k in range(4): A("v_permlane32_swap_b32 v%d, v%d" % (YA + k, YA + k + 4))
    for k in range(4): A("v_add_f32 v%d, v%d, v%d" % (YA + k, YA + k, YA + k + 4))
    A("s_nop 0\nv_permlane16_swap_b32 v%d, v%d\nv_permlane16_swap_b32 v%d, v%d" % (YA, YA + 2, YA + 1, YA + 3))
    A("v_add_f32 v%d, v%d, v%d\nv_add_f32 v%d, v%d, v%d\ns_nop 0" % (YA, YA, YA + 2, YA + 1, YA + 1, YA + 3))
    dpp("v_add_f32", YA, YA, YA, "row_ror:8"); dpp("v_add_f32", YA + 1, YA + 1, YA + 1, "row_ror:8")
    A("v_cvt_pk_bf16_f32 v%d, v%d, v%d\nv_cvt_pk_bf16_f32 v%d, v%d, v%d\ns_nop 1\nv_permlane16_swap_b32 v%d, v%d" % (PUB + 2, YA, YA + 1, PUB, YA, YA + 1, PUB, PUB + 2))
    A("s_mov_b32 exec_lo, 0xff\ns_mov_b32 exec_hi, 0xff")
    A("buffer_store_dwordx4 v[%d:%d], v14, %s, s99 offen %s" % (PUB, PUB + 3, WS, stpol))
    A("s_mov_b64 exec, -1")
    ST("pubY")
    A("s_cmp_lt_u32 s%d, 96\ns_cbranch_scc1 L_exit" % sREST)
    A("v_lshrrev_b32 v15, 2, v%d\nv_lshlrev_b32 v15, 11, v15\nv_and_b32 v9, 3, v%d\nv_lshl_add_u32 v15, v9, 4, v15" % (vL, vL))
    A("s_lshl_b32 s100, s%d, 7\ns_lshl_b32 s63, s3, 4\ns_add_u32 s100, s100, s63\ns_lshl_b32 s100, s100, 11\ns_sub_u32 s64, s%d, 96\ns_lshl_b32 s63, s64, 6\ns_add_u32 s100, s100, s63\ns_add_u32 s100, s100, %d" % (sB, sREST, WS_YP))
    A(opl)
    A("v_lshlrev_b32 v9, 4, v9\nv_lshrrev_b32 v10, 4, v%d\nv_lshl_add_u32 v9, v10, 2, v9\ns_lshl_b32 s63, s3, 6\nv_add_u32 v9, s63, v9" % vL)
    A("v_and_b32 v10, 7, v%d\nv_lshlrev_b32 v11, 3, v10\nv_lshrrev_b32 v12, 1, v10\nv_and_b32 v10, 1, v10\nv_lshlrev_b32 v10, 2, v10\nv_lshl_add_u32 v10, v12, 4, v10" % vL)
    A("s_lshl_b32 s63, s%d, 10\ns_lshr_b32 s65, s64, 2\ns_lshl_b32 s65, s65, 7\ns_add_u32 s63, s63, s65\ns_and_b32 s65, s64, 1\ns_lshl_b32 s65, s65, 6\ns_add_u32 s63, s63, s65\ns_and_b32 s65, s64, 2\ns_lshl_b32 s65, s65, 2\ns_add_u32 s63, s63, s65\nv_add_u32 v10, s63, v10" % sB)
    poll([opl], [x(1), x(3)], sleep2, first=False)
    ST("yg")
    red4(["row_ror:4", "row_ror:8"])
    A("ds_write_b32 v9, v%d offset:%d\ns_waitcnt lgkmcnt(0)\ns_barrier" % (x(4), LDS_R))
    only_wave(0, "L_exit")
    for w in range(8):
        A("ds_read_b64 v[%d:%d], v11 offset:%d" % (64 + 2 * w, 65 + 2 * w, LDS_R + 64 * w))
    A("s_waitcnt lgkmcnt(4)\nv_pk_add_f32 v[64:65], v[64:65], v[66:67]\nv_pk_add_f32 v[68:69], v[68:69], v[70:71]\nv_pk_add_f32 v[64:65], v[64:65], v[68:69]")
    A("s_waitcnt lgkmcnt(0)\nv_pk_add_f32 v[72:73], v[72:73], v[74:75]\nv_pk_add_f32 v[76:77], v[76:77], v[78:79]\nv_pk_add_f32 v[72:73], v[72:73], v[76:77]\nv_pk_add_f32 v[64:65], v[64:65], v[72:73]")
    A("s_mov_b64 exec, 0xff\nv_cvt_pk_bf16_f32 v64, v64, v65")
    A("global_store_dword v10, v64, s[24:25] %s" % outpol)
    A("s_mov_b64 exec, -1")
    A("L_exit:")
    if skewprobe:
        only_wave(7, "L_sk1")
        A("s_waitcnt lgkmcnt(0)\ns_lshl_b32 s63, s2, 7\ns_add_u32 s63, s63, %d\nv_mov_b32 v20, s70\nv_mov_b32 v21, s%d\nv_mov_b32 v22, 0" % (WS_MK, sTAG))
        A("s_mov_b64 exec, 1\nbuffer_store_dwordx2 v[20:21], v22, %s, s63 offen sc1\ns_mov_b64 exec, -1" % WS)
        A("s_cmp_lg_u32 s2, 255\ns_cbranch_scc1 L_sk1")
        A("v_lshlrev_b32 v48, 9, v%d\ns_mov_b32 s64, %d" % (vL, WS_MK))
        poll(["buffer_load_dwordx2 v[%d:%d], v48, %s, s64 offen offset:%d sc1" % (32 + 2 * a, 33 + 2 * a, WS, 128 * a) for a in range(4)], [33, 35, 37, 39], 8)
        for a in range(4): A("v_subrev_u32 v%d, s70, v%d" % (32 + 2 * a, 32 + 2 * a))
        A("v_min_i32 v40, v32, v34\nv_min_i32 v41, v36, v38\nv_min_i32 v40, v40, v41\nv_max_i32 v42, v32, v34\nv_max_i32 v41, v36, v38\nv_max_i32 v42, v42, v41\ns_nop 1")
        for r, op in ((40, "v_min_i32"), (42, "v_max_i32")):
            for c in ("quad_perm:[1,0,3,2]", "quad_perm:[2,3,0,1]", "row_half_mirror", "row_mirror"):
                dpp(op, r, r, r, c); A("s_nop 1")
            xrows(op, r, 44)
        A("v_sub_u32 v42, v42, v40\ns_nop 0\nv_readfirstlane_b32 s63, v42\nv_readfirstlane_b32 s62, v40\ns_mul_i32 s63, s63, %d\ns_add_u32 s63, s63, 6000\ns_add_u32 s63, s63, s62" % (skewprobe - 1))
        A("L_skl:\ns_sleep 4\ns_memrealtime s[64:65]\ns_waitcnt lgkmcnt(0)\ns_sub_u32 s64, s64, s70\ns_cmp_lt_u32 s64, s63\ns_cbranch_scc1 L_skl")
        A("L_sk1:")
    if probe:
        ST("end")
        name, sign, waves = probe
        A("s_waitcnt lgkmcnt(0)")
        A("s_lshl_b32 s63, 1, s3\ns_and_b32 s63, s63, %d\ns_cbranch_scc0 L_pe" % waves)
        A("s_and_b32 s63, s2, 7\ns_lshl_b32 s63, 1, s63\ns_and_b32 s63, s63, %d\ns_cbranch_scc0 L_pe" % pslot)
        if prow is not None: A("s_lshr_b32 s63, s2, 3\ns_cmp_lg_u32 s63, %d\ns_cbranch_scc1 L_pe" % prow)
        if name == "W": A("s_cmp_ge_u32 s%d, 120\ns_cbranch_scc1 L_pe" % sREST)
        if name == "yg": A("s_cmp_lt_u32 s%d, 96\ns_cbranch_scc1 L_pe" % sREST)
        A("s_sub_u32 s63, s%d, s70" % stn[name])
        if sign < 0: A("s_sub_u32 s63, 4000, s63")
        A("s_add_u32 s63, s63, %d" % pbase)
        A("L_pl:\ns_sleep 4\ns_memrealtime s[64:65]\ns_waitcnt lgkmcnt(0)\ns_sub_u32 s64, s64, s70\ns_cmp_lt_u32 s64, s63\ns_cbranch_scc1 L_pl")
        A("L_pe:")
    if stamp:
        ST("end")
        A("s_waitcnt lgkmcnt(0)")
        A("s_lshl_b32 s63, s2, 3\ns_add_u32 s63, s63, s3\ns_lshl_b32 s63, s63, 6\ns_add_u32 s63, s63, %d\nv_mov_b32 v9, 0" % WS_STAMP)
        for i in range(0, 16, 4):
            for j in range(4):
                A("v_mov_b32 v%d, s%d" % (20 + j, 70 + 2 * (i + j)) if i + j < len(names) else "v_mov_b32 v%d, s71" % (20 + j))
            A("buffer_store_dwordx4 v[20:23], v9, %s, s63 offen offset:%d\ns_nop 1" % (WS, 4 * i))
    A("s_endpgm")
    A("L_bail:")
    A("s_mov_b64 exec, 1\nv_mov_b32 v9, 0\nv_mov_b32 v10, 0xdead\nglobal_store_dword v9, v10, s[26:27]")
    A("L_end:\ns_endpgm")
    L.append('.section .rodata,"a"\n.p2align 6\n.amdhsa_kernel %s_kernel' % NAME)
    L.append("  .amdhsa_next_free_vgpr 256\n  .amdhsa_next_free_sgpr 102\n  .amdhsa_accum_offset 256\n  .amdhsa_group_segment_fixed_size 0\n  .amdhsa_kernarg_size 104\n  .amdhsa_user_sgpr_count 2\n  .amdhsa_user_sgpr_kernarg_segment_ptr 1\n  .amdhsa_system_sgpr_workgroup_id_x 1\n.end_amdhsa_kernel")
    return "\n".join(L) + "\n"
```

```python
import re, sys
def regs(tok):
    tok = tok.strip().lstrip("-")
    m = re.fullmatch(r"([vsa])(\d+)", tok)
    if m: return {(m.group(1), int(m.group(2)))}
    m = re.fullmatch(r"([vsa])\[(\d+):(\d+)\]", tok)
    if m: return {(m.group(1), i) for i in range(int(m.group(2)), int(m.group(3)) + 1)}
    if tok == "vcc": return {("s", "vcc")}
    if tok in ("exec", "exec_lo", "exec_hi"): return {("s", "exec")}
    if tok == "m0": return {("s", "m0")}
    return set()
TRANS = ("v_exp_", "v_log_", "v_rcp_", "v_rsq_", "v_sqrt_", "v_sin_", "v_cos_")
class I:
    def __init__(s, text, n):
        s.text, s.n = text, n
        p = text.split(None, 1); s.op = p[0]
        ops = [x.strip() for x in (p[1] if len(p) > 1 else "").split(",")]
        last = ops[-1].split() if ops and ops[-1] else []
        s.mods = " ".join(last[1:]) if last else ""
        if last: ops[-1] = last[0]
        s.ops = ops
        op = s.op
        s.mfma = op.startswith("v_mfma")
        s.valu = op.startswith("v_") and not s.mfma
        s.dpp = "_dpp" in op
        s.perml = op.startswith("v_permlane")
        s.trans = op.startswith(TRANS)
        s.dot = op.startswith("v_dot")
        s.vmem = op.startswith(("buffer_", "global_", "flat_"))
        s.ds = op.startswith("ds_")
        s.salu = op.startswith("s_")
        R = [regs(o) for o in ops]
        s.w, s.r = set(), set()
        if s.mfma:
            s.w = R[0]; s.a, s.b, s.c = R[1], R[2], R[3]; s.r = R[1] | R[2] | R[3]
            s.passes = 8 if "32x32" in op else 4
        elif s.valu:
            s.w = set(R[0]); s.r = set().union(*R[1:]) if len(R) > 1 else set()
            if op.startswith(("v_fmac", "v_dot2c")) or s.perml: s.r |= R[0]
            if s.perml: s.w |= R[1]
            if op.startswith(("v_add_co", "v_addc_co", "v_sub_co")): s.w |= R[1]
        elif s.vmem:
            if "load" in op and "lds" not in s.mods.split():
                s.w = R[0]; s.r = set().union(*R[1:])
            else: s.r = set().union(*R)
            s.wide = "store" in op and ("x4" in op or "x3" in op)
            if "store" in op: s.data = R[0] if op.startswith("buffer_") else R[1]
        elif s.ds:
            if "read" in op: s.w = R[0]; s.r = set().union(*R[1:])
            else: s.r = set().union(*R)
        elif s.salu:
            if R and not op.startswith(("s_cmp", "s_cbranch", "s_branch", "s_waitcnt", "s_nop", "s_barrier", "s_endpgm", "s_sleep", "s_setprio")):
                s.w = R[0]; s.r = set().union(*R[1:]) if len(R) > 1 else set()
            else: s.r = set().union(*R) if R else set()
        s.states = int(ops[0], 0) + 1 if op == "s_nop" else 1
def need(p, c):
    n = 0
    vw = {x for x in p.w if x[0] in "va"}; sw = {x for x in p.w if x[0] == "s"}
    if p.valu:
        if c.mfma and vw & c.r: n = max(n, 2)
        if c.dpp and vw & regs(c.ops[1]): n = max(n, 2)
        if c.perml and vw & c.r: n = max(n, 2)
        if c.op.startswith(("v_readlane", "v_readfirstlane")) and vw & c.r: n = max(n, 1)
        if p.trans and c.valu and not c.trans and vw & c.r: n = max(n, 1)
        if p.dot and (c.valu or c.mfma) and vw & (c.r | c.w):
            if not (c.op == p.op and len(c.ops) > 3 and vw & regs(c.ops[3]) and not vw & (regs(c.ops[1]) | regs(c.ops[2]))): n = max(n, 3)
        if sw and c.valu and sw & c.r: n = max(n, 2)
        if sw and c.vmem and sw & c.r: n = max(n, 5)
        if "sdwa" in p.op or "op_sel" in p.mods:
            if c.valu and vw & c.r: n = max(n, 1)
    if p.mfma:
        t = {4: (0, 6, 8, 8), 8: (0, 10, 12, 12)}[p.passes]
        if c.mfma:
            if c.c & p.w and c.c != p.w: n = max(n, t[1])
            if c.c == p.w and c.passes != p.passes: n = max(n, t[1])
            if (c.a | c.b) & p.w: n = max(n, t[2])
        elif (c.valu and (c.r | c.w) & p.w) or ((c.vmem or c.ds) and (c.r | c.w) & p.w): n = max(n, t[3])
        if c.valu and c.w & p.c: n = max(n, {4: 3, 8: 7}[p.passes])
    if p.vmem and getattr(p, "wide", False) and (c.valu or c.mfma) and c.w & p.data: n = max(n, 2)
    if p.salu and ("s", "m0") in p.w and c.vmem and "lds" in c.mods.split(): n = max(n, 1)
    return n
def check(path):
    ins, labels = [], {}
    for n, line in enumerate(open(path), 1):
        t = line.split(";")[0].strip()
        if not t or t.startswith("."):
            if t.startswith(".section"): break
            continue
        if t.endswith(":"): labels[t[:-1]] = len(ins); continue
        ins.append(I(t, n))
    def succ(i):
        x = ins[i]
        if x.op == "s_endpgm": return []
        if x.op == "s_branch": return [labels[x.ops[0]]]
        out = [i + 1] if i + 1 < len(ins) else []
        if x.op.startswith("s_cbranch"): out.append(labels[x.ops[0]])
        return out
    bad = 0
    for i, p in enumerate(ins):
        if not (p.valu or p.mfma or p.vmem or p.salu): continue
        stack = [(j, 0) for j in succ(i)]; seen = set()
        while stack:
            j, d = stack.pop()
            if (j, d) in seen or d >= 13 or j >= len(ins): continue
            seen.add((j, d))
            c = ins[j]; k = need(p, c)
            if k > d:
                print("HAZARD need %d have %d: line %d '%s' -> line %d '%s'" % (k, d, p.n, p.text, c.n, c.text)); bad += 1
            for q in succ(j): stack.append((q, d + c.states))
    return bad
if __name__ == "__main__":
    r = sum(check(p) for p in sys.argv[1:]); print("hazards:", r); sys.exit(1 if r else 0)
```

```python
import sys, json, gen4, asmlib, hazard, os
os.makedirs("k", exist_ok=True)
for a in sys.argv[1:]:
    n, j = a.split("=", 1)
    p = "k/%s.s" % n
    open(p, "w").write(gen4.gen(**json.loads(j)))
    asmlib.build(p)
    assert hazard.check(p) == 0
```

```python
import sys, struct
NAME = "gated_mix__gqa_block_cached__glu_gated_glu__decode"
def f2u(x): return struct.unpack("<I", struct.pack("<f", x))[0]
LOG2E = 1.4426950408889634

WS_EPOCH = 0
WS_QG = 0x1000
WS_ML = 0x20000
WS_OP = 0x40000
WS_YP = 0xC0000
WS_MK = 0x140000
WS_STAMP = 0x400000
WS_USED = 0x180000
LDS_A = 0
LDS_Q = 4096
LDS_M = 5120
LDS_L = 5184
LDS_F = 5248
LDS_H = 5312
LDS_C = 5376
LDS_o = 5632
LDS_R = 5888
HFS = 1152
WVS = 2304
LDS_O = 6400
LDS_K = LDS_O + 4 * WVS
assert LDS_K % 256 == 0
LDS_END = LDS_K + 4 * 12288

class VM:
    def __init__(self): self.ops = []
    def issue(self, name, counted=True, w=None): self.ops.append((name, counted, (1.0 if counted else None) if w is None else w))
    def after(self, name):
        idx = max(i for i, (n, c, w) in enumerate(self.ops) if n == name)
        return sum(1 for n, c, w in self.ops[idx + 1:] if c)
    def pace_n(self, room):
        n = 0; tot = 0.0
        for name, c, w in reversed(self.ops):
            if w is None: continue
            if tot + w > room: return n, True
            tot += w; n += 1
        return n, False

def gen(d=5, dpat=None, d0=None, pol="nt", kpol=None, wpol="nt", w2pol="", stamp=False, wd_pre=True, wo_pre=False, lock=0,
        p1=22, p2=100, pe=123, qk_at=37, outpol="", stpol="sc1", ldpol="sc1", spin=200000, header=None, probe=None, pbase=6000,
        sleep1=0, sleep2=0, nap=2, sprio=1, dend=None, lds_pad=0, adapt=None, db=7, alev=None, win=8, mkstr=7, npeer=16, adelay=True, aw=6, skewprobe=0, pslot=255, prow=None, p0=None, thr=None, pm=16, pend=126, noside=None, pub4=True, ns1=1, ns2=1, stag=3, amp=1, aoff=2000):
    if kpol is None: kpol = pol
    if d0 is None: d0 = d
    L = []
    def A(s):
        for line in s.strip("\n").split("\n"):
            t = line.strip()
            L.append(t if t.endswith(":") else "    " + t)
    vm = VM()
    diag = stamp or probe or skewprobe
    names = ["start", "W", "pubA", "qw", "q", "exp", "pubML", "V7", "B5", "pubO", "og", "pubY", "yg", "end"]
    stn = {n: 70 + 2 * i for i, n in enumerate(names)}
    def ST(name):
        if diag: A("s_memrealtime s[%d:%d]" % (stn[name], stn[name] + 1))
    def wait(name, extra=0):
        n = vm.after(name) + extra
        assert n <= 63
        A("s_waitcnt vmcnt(%d)" % n)
    npace = [0]; amode = [False]
    def pace(dd=None, w=1.0):
        if amode[0] and dd is None:
            l1 = newlabel("pc")
            dd = dpat[npace[0] % len(dpat)] if dpat else d
            npace[0] += 1
            A("s_waitcnt vmcnt(%d)\ns_cbranch_vccnz %s\ns_waitcnt vmcnt(%d)\n%s:" % (vm.pace_n(db - w)[0], l1, vm.pace_n(dd - w)[0], l1))
            return
        if dd is None:
            dd = dpat[npace[0] % len(dpat)] if dpat else d
            npace[0] += 1
        n, need = vm.pace_n(dd - w)
        if need: A("s_waitcnt vmcnt(%d)" % n)
    lab = [0]
    def newlabel(p):
        lab[0] += 1; return "L_%s%d" % (p, lab[0])

    vL, vVO, vSP, vG = 1, 3, 4, 8
    Q0, O0, AX0, S0 = 16, 16, 24, 32
    vKS, vKR = 88, 92
    YA, PUB, vWO, vWD2, vHH = 64, 72, 76, 77, 78
    WOR, WDR, WOF, T = 128, 144, 160, 192
    def buf(i): return 96 + 16 * (i % 10)
    def Kreg(t): return buf(t)
    def Vreg(t): return buf(t + 6)
    sK, sV, sW, sWS, sWO, sWD = 32, 36, 40, 44, 48, 52
    sB, sREST, sTAG, sSTR = 30, 31, 56, 58
    sKO, sVO, sSLOT, sM0 = 66, 67, 59, 101
    WS = "s[%d:%d]" % (sWS, sWS + 3)
    tstep = 4 * 4096

    def dpp(op, dst, a, b, ctrl):
        A("%s_dpp v%d, v%d, v%d %s row_mask:0xf bank_mask:0xf" % (op, dst, a, b, ctrl))
    def xrows(op, x, t):
        A("v_mov_b32 v%d, v%d\ns_nop 1\nv_permlane16_swap_b32 v%d, v%d\n%s v%d, v%d, v%d" % (t, x, t, x, op, x, t, x))
        A("v_mov_b32 v%d, v%d\ns_nop 1\nv_permlane32_swap_b32 v%d, v%d\n%s v%d, v%d, v%d" % (t, x, t, x, op, x, t, x))
    def cmpn(tagregs):
        A("v_cmp_ne_u32 vcc, s%d, v%d" % (sTAG, tagregs[0]))
        for r in tagregs[1:]:
            A("v_cmp_ne_u32 s[68:69], s%d, v%d\ns_or_b64 vcc, vcc, s[68:69]" % (sTAG, r))
    def poll(loads, tagregs, sleep=0, first=True):
        lo, lc = newlabel("spin"), newlabel("chk")
        A("s_mov_b32 s62, 0")
        if not first: A("s_branch %s" % lc)
        elif sleep: A("s_branch %s_n" % lo)
        A("%s:" % lo)
        if sleep: A("s_sleep %d\n%s_n:" % (sleep, lo))
        for s in loads: A(s)
        A("s_add_u32 s62, s62, 1\ns_cmp_gt_u32 s62, %d\ns_cbranch_scc1 L_bail" % spin)
        A("%s:" % lc)
        A("s_waitcnt vmcnt(0)")
        cmpn(tagregs)
        A("s_wqm_b64 exec, vcc\ns_cbranch_scc1 %s" % lo)
        A("s_mov_b64 exec, -1")
    def bump(off):
        A("v_mov_b32 v12, 0\nv_mov_b32 v13, 1\ns_mov_b64 exec, 1\nds_add_u32 v12, v13 offset:%d\ns_mov_b64 exec, -1" % off)
    def await_lds(off, val, sleep):
        lo = newlabel("lw")
        A("v_mov_b32 v12, 0\ns_mov_b32 s62, 0\ns_branch %s_n\n%s:" % (lo, lo))
        if sleep: A("s_sleep %d" % sleep)
        A("%s_n:\nds_read_b32 v13, v12 offset:%d\ns_add_u32 s62, s62, 1\ns_cmp_gt_u32 s62, %d\ns_cbranch_scc1 L_bail" % (lo, off, spin * 8))
        A("s_waitcnt lgkmcnt(0)\nv_readfirstlane_b32 s63, v13\ns_cmp_lt_u32 s63, %d\ns_cbranch_scc1 %s" % (val, lo))
    def only_wave(w, skip): A("s_cmp_lg_u32 s3, %d\ns_cbranch_scc1 %s" % (w, skip))

    def srds2():
        A("s_mov_b32 s%d, s28\ns_mov_b32 s%d, s29\ns_mov_b32 s%d, %d\ns_mov_b32 s%d, 0x20000" % (sWS, sWS + 1, sWS + 2, 0x500000 if stamp else WS_USED, sWS + 3))
        A("s_mov_b32 s%d, s12\ns_mov_b32 s%d, s13\ns_mov_b32 s%d, 0x400000\ns_mov_b32 s%d, 0x20000" % (sWO, sWO + 1, sWO + 2, sWO + 3))
        A("s_mov_b32 s%d, s20\ns_mov_b32 s%d, s21\ns_mov_b32 s%d, 1835008\ns_mov_b32 s%d, 0x20000" % (sWD, sWD + 1, sWD + 2, sWD + 3))
    def tag():
        A("s_waitcnt lgkmcnt(0)")
        A("s_mul_i32 s%d, s%d, 0x9e3779b5\ns_add_u32 s%d, s%d, 0x7f4a7c15" % (sTAG, sTAG, sTAG, sTAG))
    def w2_prep():
        A("v_lshrrev_b32 v9, 3, v%d\nv_and_b32 v12, 7, v%d\nv_lshlrev_b32 v%d, 4, v12\nv_lshl_add_u32 v%d, v9, 10, v%d" % (vL, vL, vWO, vWO, vWO))
        A("v_cmp_gt_u32 s[68:69], 6, v9\nv_mov_b32 v13, 0x10000000\ns_mul_i32 s58, s%d, %d\ns_lshl_b32 s64, s3, 7\ns_add_u32 s58, s58, s64" % (sREST, 14 * 1024))
        A("v_cndmask_b32 v%d, v13, v%d, s[68:69]\ns_lshl_b32 s57, s%d, 15\ns_add_u32 s57, s57, s64" % (vWD2, vWO, sREST))
    def load_wo(a):
        A("buffer_load_dwordx4 v[%d:%d], v%d, s[%d:%d], s57 offen %s" % (WOR + 4 * a, WOR + 4 * a + 3, vWO, sWO, sWO + 3, w2pol))
        vm.issue("wo")
        if a < 3: A("s_add_u32 s57, s57, 8192")
    def load_wd(a):
        if a == 1: A("s_add_u32 s58, s58, 8192")
        A("buffer_load_dwordx4 v[%d:%d], v%d, s[%d:%d], s58 offen %s" % (WDR + 4 * a, WDR + 4 * a + 3, vWD2 if a else vWO, sWD, sWD + 3, w2pol)); vm.issue("wd")

    L.append((header or "") + "; @launch grid=(256,1,1) block=(512,1,1) lds=%d" % (LDS_END + lds_pad))
    if stamp: L.append("; stamps: " + " ".join(names))
    L.append('.amdgcn_target "amdgcn-amd-amdhsa--gfx950"\n.text\n.globl %s_kernel\n.p2align 8\n.type %s_kernel,@function\n%s_kernel:' % (NAME, NAME, NAME))
    A("s_cmp_ge_u32 s2, 256\ns_cbranch_scc1 L_end")
    A("s_load_dwordx16 s[4:19], s[0:1], 0\ns_load_dwordx8 s[20:27], s[0:1], 64\ns_load_dwordx2 s[28:29], s[0:1], 96")
    ST("start")
    A("v_lshrrev_b32 v9, 6, v0\nv_and_b32 v%d, 63, v0\nv_readfirstlane_b32 s3, v9" % vL)
    A("s_bfe_u32 s%d, s2, 0x10003" % sB)
    A("s_and_b32 s%d, s2, 7\ns_lshr_b32 s63, s2, 4\ns_lshl_b32 s63, s63, 3\ns_or_b32 s%d, s%d, s63" % (sREST, sREST, sREST))
    A("s_lshl_b32 s%d, s%d, 7\ns_add_u32 s%d, s%d, s%d" % (sSLOT, sB, sSLOT, sSLOT, sREST))
    A("v_lshrrev_b32 v10, 4, v%d\nv_and_b32 v11, 15, v%d\nv_lshlrev_b32 v%d, 4, v%d" % (vL, vL, vVO, vL))
    A("s_cmp_ge_u32 s3, 4\ns_cbranch_scc1 L_helper")

    if sprio: A("s_setprio %d" % sprio)
    A("v_lshlrev_b32 v12, 2, v10\nv_xor_b32 v12, v12, v11\nv_lshlrev_b32 v12, 4, v12\nv_lshl_add_u32 v%d, v10, 8, v12" % vKS)
    for i in range(1, 4): A("v_xor_b32 v%d, %d, v%d" % (vKS + i, 16 * i, vKS))
    A("s_lshl_b32 s%d, s3, 12\ns_mov_b32 s%d, s%d" % (sKO, sVO, sKO))
    A("s_lshl_b32 s65, s%d, 18" % sSLOT)
    A("s_mul_i32 s%d, s3, 12288\ns_add_u32 s%d, s%d, %d" % (sM0, sM0, sM0, LDS_K))
    A("s_movk_i32 s%d, 3584\ns_cmp_lt_u32 s%d, 64\ns_cselect_b32 s%d, 8192, s%d" % (sSTR, sREST, sSTR, sSTR))
    A("s_lshl_b32 s63, s%d, 4\nv_mul_u32_u24 v12, s63, v10\nv_lshl_add_u32 v12, v11, 3, v12" % sSTR)
    A("s_lshl_b32 s62, s%d, 2\ns_add_u32 s62, s62, s3\ns_lshl_b32 s62, s62, 6" % sB)
    A("v_bfe_u32 v13, v11, 2, 1\nv_lshlrev_b32 v13, 10, v13\nv_lshl_add_u32 v13, v10, 5, v13\ns_lshl_b32 s63, s62, 1\nv_add_u32 v13, s63, v13")
    A("s_mul_i32 s63, s62, s%d" % sSTR)
    A("s_sub_u32 s64, s%d, 64\ns_cmp_lt_u32 s%d, 64\ns_cselect_b32 s64, s%d, s64\ns_sub_u32 s62, s%d, 92\ns_cmp_ge_u32 s%d, 92\ns_cselect_b32 s64, s62, s64\ns_lshl_b32 s64, s64, 7" % (sREST, sREST, sREST, sREST, sREST))
    A("s_mul_i32 s%d, s%d, 511\ns_add_u32 s%d, s%d, 128\ns_mov_b32 s%d, 0x20000" % (sW + 2, sSTR, sW + 2, sW + 2, sW + 3))
    A("s_mov_b32 s%d, 0x40000\ns_mov_b32 s%d, 0x20000" % (sK + 2, sK + 3))
    A("s_waitcnt lgkmcnt(0)")
    A("s_add_u32 s%d, s6, s65\ns_addc_u32 s%d, s7, 0" % (sK, sK + 1))
    A("s_cmp_ge_u32 s%d, 120\ns_cbranch_scc1 L_noA1" % sREST)
    A("s_cmp_lt_u32 s%d, 64\ns_cselect_b32 s%d, s10, s16\ns_cselect_b32 s%d, s11, s17" % (sREST, sW, sW + 1))
    A("s_cmp_ge_u32 s%d, 92\ns_cselect_b32 s%d, s18, s%d\ns_cselect_b32 s%d, s19, s%d" % (sREST, sW, sW, sW + 1, sW + 1))
    A("s_add_u32 s%d, s%d, s64\ns_addc_u32 s%d, s%d, 0" % (sW, sW, sW + 1, sW + 1))
    A("global_load_dwordx4 v[64:67], v13, s[4:5]\nglobal_load_dwordx4 v[68:71], v13, s[4:5] offset:16")
    vm.issue("X", False); vm.issue("X", False)
    for q in range(16):
        pace(d0, 0.5)
        A("buffer_load_dwordx2 v[%d:%d], v12, s[%d:%d], s63 offen %s" % (32 + 2 * q, 33 + 2 * q, sW, sW + 3, wpol))
        vm.issue("W%d" % q, False, 0.5)
        if q < 15: A("s_add_u32 s63, s63, s%d" % sSTR)
    A("L_noA1:")
    slots = {}
    def at(i, f): slots.setdefault(i, []).append(f)
    def loadK(t, i):
        if i == 0:
            A("s_add_u32 s63, s%d, %d\ns_mov_b32 m0, s63" % (sM0, (t % 3) * 4096))
            A("s_waitcnt lgkmcnt(0)" if t >= 3 else "s_nop 0")
        A("buffer_load_dwordx4 v%d, s[%d:%d], s%d offen offset:%d %s lds" % (vKS + i, sK, sK + 3, sKO, 1024 * i, kpol))
        vm.issue("K%d" % t)
        if i == 3 and t < 15: A("s_add_u32 s%d, s%d, %d" % (sKO, sKO, tstep))
    def readK(t):
        wait("K%d" % t)
        for i in range(4):
            A("ds_read_b128 v[%d:%d], v%d offset:%d" % (Kreg(t) + 4 * i, Kreg(t) + 4 * i + 3, vKR + i, (t % 3) * 4096))
    def loadV(t, i):
        A("buffer_load_dwordx4 v[%d:%d], v%d, s[%d:%d], s%d offen offset:%d %s" % (Vreg(t) + 4 * i, Vreg(t) + 4 * i + 3, vVO, sV, sV + 3, sVO, 1024 * i, pol))
        vm.issue("V%d.%d" % (t, i))
        if i == 3 and t < 15: A("s_add_u32 s%d, s%d, %d" % (sVO, sVO, tstep))
    def setup2():
        A("s_load_dword s%d, s[28:29], %d" % (sTAG, WS_EPOCH))
        A("s_barrier")
        A("s_add_u32 s%d, s8, s65\ns_addc_u32 s%d, s9, 0\ns_mov_b32 s%d, 0x40000\ns_mov_b32 s%d, 0x20000" % (sV, sV + 1, sV + 2, sV + 3))
        A("v_and_b32 v9, 1, v%d\nv_cmp_eq_u32 vcc, 1, v9\nv_mov_b32 v12, 0x0c0c0100\nv_mov_b32 v9, 0x01000c0c\nv_mov_b32 v13, 0x0c0c0302\nv_mov_b32 v15, 0x03020c0c" % vL)
        A("v_cndmask_b32 v12, v12, v9, vcc\nv_cndmask_b32 v13, v13, v15, vcc")
        A("v_and_b32 v9, 2, v%d\nv_cmp_eq_u32 vcc, 2, v9\nv_mov_b32 v15, 0x0c0c0c0c\ns_nop 0" % vL)
        A("v_cndmask_b32 v%d, v12, v15, vcc\nv_cndmask_b32 v%d, v15, v12, vcc\nv_cndmask_b32 v%d, v13, v15, vcc\nv_cndmask_b32 v%d, v15, v13, vcc" % (vSP, vSP + 1, vSP + 2, vSP + 3))
        A("v_and_b32 v12, 3, v11\nv_lshlrev_b32 v12, 10, v12\nv_lshrrev_b32 v13, 2, v11\nv_lshl_add_u32 v12, v13, 8, v12\nv_xor_b32 v13, v10, v11\nv_lshl_add_u32 v12, v13, 4, v12\nv_add_u32 v%d, s%d, v12" % (vKR, sM0))
        for i in range(1, 4): A("v_xor_b32 v%d, %d, v%d" % (vKR + i, 64 * i, vKR))
    def phaseA(half):
        def f():
            l1 = newlabel("skipA")
            A("s_cmp_ge_u32 s%d, 120\ns_cbranch_scc1 %s" % (sREST, l1))
            A("s_waitcnt vmcnt(%d)" % (vm.after("W15") + (8 if half == 0 else 0)))
            for u in range(8 * half, 8 * half + 8):
                for j2 in range(2):
                    A("v_perm_b32 v%d, v%d, v%d, v%d" % (96 + 2 * (u & 7) + j2, 64 + (u >> 1), 64 + (u >> 1), vSP + 2 * (u & 1) + j2))
            for u in range(8 * half, 8 * half + 8):
                A("v_mfma_f32_16x16x16_bf16 v[72:75], v[%d:%d], v[%d:%d], %s" % (96 + 2 * (u & 7), 97 + 2 * (u & 7), 32 + 2 * u, 33 + 2 * u, "0" if u == 0 else "v[72:75]"))
            if half == 1:
                ST("W")
                A("s_lshl_b32 s63, s3, 10\nv_add_u32 v9, s63, v%d\ns_nop 6" % vVO)
                A("ds_write_b128 v9, v[72:75] offset:%d" % LDS_A)
                bump(LDS_C)
            A("%s:" % l1)
        return f
    def progress(val):
        def f():
            l1 = newlabel("pg")
            only_wave(0, l1)
            A("v_mov_b32 v12, 0\nv_mov_b32 v13, %d\nds_write_b32 v12, v13 offset:%d" % (val, LDS_C + 12))
            A("%s:" % l1)
        return f
    def q_wait():
        ST("qw")
        A("v_lshrrev_b32 v9, 2, v11\nv_lshlrev_b32 v9, 8, v9\nv_lshl_add_u32 v9, v10, 4, v9")
        await_lds(LDS_C + 8, 4, 0)
        for i in range(4):
            A("ds_read_b128 v[%d:%d], v9 offset:%d" % (Q0 + 4 * i, Q0 + 4 * i + 3, LDS_Q + 64 * i))
    def qk(ts):
        def f():
            A("s_waitcnt lgkmcnt(0)")
            for t in ts:
                for i in range(4):
                    A("v_mfma_f32_16x16x32_bf16 v[%d:%d], v[%d:%d], v[%d:%d], %s" % (S0 + 4 * t, S0 + 4 * t + 3, Kreg(t) + 4 * i, Kreg(t) + 4 * i + 3, Q0 + 4 * i, Q0 + 4 * i + 3,
                      "0" if i == 0 else "v[%d:%d]" % (S0 + 4 * t, S0 + 4 * t + 3)))
        return f
    def smax():
        A("v_max3_f32 v9, v32, v33, v34\nv_max3_f32 v14, v35, v36, v37")
        rs = list(range(38, 96))
        for k in range(0, len(rs), 2): A("v_max3_f32 v%d, v%d, v%d, v%d" % ((9, 14)[(k >> 1) & 1], (9, 14)[(k >> 1) & 1], rs[k], rs[k + 1]))
        A("v_max_f32 v9, v9, v14")
        A("s_mov_b32 s65, 0x%08x" % f2u(128 ** -0.5 * LOG2E))
        xrows("v_max_f32", 9, 12)
        A("v_mul_f32 v9, s65, v9")
    def sexp(lo, hi):
        def f():
            for r in range(lo, hi): A("v_fma_f32 v%d, v%d, s65, -v9" % (r, r))
            for r in range(lo, hi): A("v_exp_f32 v%d, v%d" % (r, r))
            if hi == 96: ST("exp")
        return f
    def ssum(lo, hi):
        def f():
            for r in range(lo, hi, 2):
                if r == 32: A("v_mov_b32 v14, v32\nv_mov_b32 v15, v33")
                else: A("v_pk_add_f32 v[14:15], v[14:15], v[%d:%d]" % (r, r + 1))
            for r in range(lo, hi, 2): A("v_cvt_pk_bf16_f32 v%d, v%d, v%d" % (32 + (r - 32) // 2, r, r + 1))
            if hi == 96:
                A("v_add_f32 v15, v15, v14")
                xrows("v_add_f32", 15, 14)
                A("v_lshrrev_b32 v14, 2, v11\nv_lshlrev_b32 v14, 4, v14\ns_lshl_b32 s63, s3, 2\nv_add_u32 v14, s63, v14")
                A("ds_write_b32 v14, v9 offset:%d\nds_write_b32 v14, v15 offset:%d" % (LDS_M, LDS_L))
                bump(LDS_C + 4)
        return f
    def expand(t):
        for r in range(4):
            for j2 in range(2):
                A("v_perm_b32 v%d, v%d, v%d, v%d" % (AX0 + 2 * r + j2, 32 + 2 * t + (r >> 1), 32 + 2 * t + (r >> 1), vSP + 2 * (r & 1) + j2))
    def pvm(t, r):
        for hf in range(2):
            A("v_mfma_f32_16x16x16_bf16 v[%d:%d], v[%d:%d], v[%d:%d], %s" % (O0 + 4 * hf, O0 + 4 * hf + 3, AX0 + 2 * r, AX0 + 2 * r + 1,
              Vreg(t) + 4 * r + 2 * hf, Vreg(t) + 4 * r + 2 * hf + 1, "0" if (t == 0 and r == 0) else "v[%d:%d]" % (O0 + 4 * hf, O0 + 4 * hf + 3)))
    def pv(t):
        def f():
            expand(t); wait("V%d.3" % t)
            for r in range(4): pvm(t, r)
        return f
    def s_prep():
        srds2(); tag(); w2_prep()
        A("v_lshlrev_b32 v10, 4, v%d\ns_mul_i32 s63, s3, %d\nv_add_u32 v10, s63, v10" % (vL, WVS))
        A("v_lshlrev_b32 v15, 11, v9\nv_lshl_add_u32 v15, v12, 4, v15")
        A("s_and_b32 s100, s%d, 0xf0\ns_and_b32 s63, s3, 1\ns_lshl_b32 s63, s63, 3\ns_add_u32 s100, s100, s63\ns_lshl_b32 s100, s100, 11\ns_and_b32 s63, s%d, 15\ns_lshl_b32 s63, s63, 7\ns_add_u32 s100, s100, s63\ns_add_u32 s100, s100, %d" % (sSLOT, sREST, WS_OP))
        A("s_cmp_ge_u32 s3, 2\ns_cselect_b32 s63, 0, -1\nv_and_b32 v15, s63, v15")
        A("v_mov_b32 v%d, s%d\nv_mov_b32 v%d, s%d" % (PUB + 1, sTAG, PUB + 3, sTAG))
    dm = max(dpat) if dpat else d
    if adapt or p0 is not None: dm = max(dm, db)
    dmv = max(dm, dend[1]) if dend else dm
    assert 4 <= dm <= 8
    at(0, setup2)
    at(1, phaseA(0)); at(min(dm, 6), phaseA(1))
    assert min(dm, 6) < 3 + dm
    for t in range(16): at(4 * t + 3 + dm, lambda t=t: readK(t))
    for p in sorted(set([p1, p2, pe] + (adapt or []) + ([p0] if p0 is not None else []))): at(p, progress(p))
    if p0 is not None:
        at(pm - 1, lambda: A("v_mov_b32 v2, 0\nds_read_b32 v0, v2 offset:%d" % (LDS_C + 16)))
        at(pm, lambda: A("s_waitcnt lgkmcnt(0)" + ("\nv_readfirstlane_b32 s71, v0" if stamp else "")))
        for j, p in enumerate(range(pm, pend, win)):
            at(p, lambda j=j: A("v_cmp_le_u32 vcc, %d, v0" % thr[j % len(thr)]))
        at(pend, lambda: A("s_mov_b64 vcc, 0"))
    if adapt:
        a0 = adapt[0] + win
        at(a0 - 1, lambda: A("s_mov_b64 vcc, 0"))
        for j, p in enumerate(range(a0, 126, win)):
            at(p, lambda: A("v_mov_b32 v2, 0\nds_read_b32 v0, v2 offset:%d" % (LDS_C + 16)))
            at(p + 1, lambda j=j: A("s_waitcnt lgkmcnt(0)\nv_and_b32 v0, %d, v0\nv_cmp_ne_u32 vcc, 0, v0" % (1 << (j % 8))))
    at(qk_at - 1, q_wait)
    t = 0; s = qk_at
    while t < 16:
        ts = [u for u in (t, t + 1) if u < 16 and 4 * u + 3 + dm < s and (u < 14 or s >= 64)]
        if ts:
            assert all(s < 4 * (u + 10) + 3 + dm for u in ts)
            at(s, qk(ts)); t += len(ts); slast = s
        s += 1
    at(slast + 1, smax)
    for k in range(4): at(slast + 2 + k, sexp(32 + 16 * k, 48 + 16 * k))
    at(slast + 6, ssum(32, 64)); at(slast + 7, ssum(64, 96))
    nxt = slast + 8; late = []
    for t in range(15):
        nxt = max(nxt, 67 + 4 * t + dmv)
        if nxt <= 127: at(nxt, pv(t))
        else: late.append(t)
        assert t + 10 > 15 or nxt < 64 + 4 * (t + 10)
        nxt += 1
    at(113, s_prep)
    if stamp:
        at(16, lambda: ST("pubA")); at(96, lambda: ST("pubML")); at(112, lambda: ST("yg")); at(56, lambda: ST("q"))
    for i in range(128):
        if adapt and i == adapt[0] + win: amode[0] = True
        if p0 is not None and i == pm + 1: amode[0] = True
        if dend and i >= dend[0]: pace(dend[1])
        else: pace()
        if i < 64: loadK(i >> 2, i & 3)
        else: loadV((i - 64) >> 2, i & 3)
        for f in slots.get(i, []): f()
    amode[0] = False
    pre = ([lambda: load_wd(0), lambda: load_wd(1)] if wd_pre else []) + ([lambda a=a: load_wo(a) for a in range(4)] if wo_pre else [])
    for t in late:
        pv(t)()
        if pre: pre.pop(0)()
    expand(15)
    for r in range(4):
        wait("V15.%d" % r)
        if r == 3: ST("V7")
        pvm(15, r)
        k = (len(pre) + 2 - r) // (3 - r) if r < 3 else 0
        for _ in range(k): pre.pop(0)()
    assert not pre
    A("s_nop 6")
    A("ds_write_b128 v10, v[16:19] offset:%d\nds_write_b128 v10, v[20:23] offset:%d" % (LDS_O, LDS_O + HFS))
    A("s_waitcnt lgkmcnt(0)\ns_barrier")
    ST("B5")
    opl = "buffer_load_dwordx4 v[%d:%d], v15, %s, s100 offen %s" % (T, T + 3, WS, ldpol)
    A(opl)
    A("s_branch L_join")

    A("L_helper:")
    A("v_mov_b32 v12, 0\nv_mov_b32 v13, 0\nv_mov_b32 v14, 0\nv_mov_b32 v15, 0\nds_write_b128 v12, v[12:15] offset:%d\nds_write_b32 v12, v12 offset:%d" % (LDS_C, LDS_C + 16))
    A("s_waitcnt lgkmcnt(0)")
    A("s_load_dword s%d, s[28:29], %d" % (sTAG, WS_EPOCH))
    A("s_barrier")
    srds2()
    only_wave(5, "L_nox")
    A("s_lshl_b32 s63, s%d, 10\nv_add_u32 v9, s63, v%d" % (sB, vVO))
    A("global_load_dwordx4 v[32:35], v9, s[4:5]\nglobal_load_dwordx4 v[36:39], v%d, s[22:23]" % vVO)
    A("s_waitcnt vmcnt(0)")
    A("v_dot2_f32_bf16 v%d, v32, v36, 0" % vG)
    for i in range(1, 4): A("v_dot2_f32_bf16 v%d, v%d, v%d, v%d" % (vG, 32 + i, 36 + i, vG))
    A("s_nop 2")
    for c in ("quad_perm:[1,0,3,2]", "quad_perm:[2,3,0,1]", "row_half_mirror", "row_mirror"):
        dpp("v_add_f32", vG, vG, vG, c); A("s_nop 1")
    xrows("v_add_f32", vG, 9)
    A("v_mul_f32 v%d, 0x%08x, v%d\nv_exp_f32 v%d, v%d\ns_nop 0\nv_add_f32 v%d, 1.0, v%d\nv_rcp_f32 v%d, v%d" % (vG, f2u(-LOG2E), vG, vG, vG, vG, vG, vG, vG))
    A("L_nox:")
    tag()
    only_wave(4, "L_noA2")
    A("s_cmp_ge_u32 s%d, 120\ns_cbranch_scc1 L_noA2" % sREST)
    if pub4:
        A("v_and_b32 v14, 31, v%d\nv_lshlrev_b32 v9, 4, v14\nv_lshrrev_b32 v15, 5, v%d\nv_lshl_add_u32 v9, v15, 3, v9" % (vL, vL))
        A("v_lshrrev_b32 v14, 4, v14\nv_mul_u32_u24 v14, %d, v14\nv_add_u32 v14, v14, v%d" % (30720 - 256, vVO))
    else:
        A("v_lshlrev_b32 v9, 3, v%d\nv_lshrrev_b32 v14, 5, v%d\nv_mul_u32_u24 v14, %d, v14\nv_add_u32 v14, v14, v9" % (vL, vL, 30720 - 256))
    A("s_mul_i32 s64, s%d, 61440\ns_lshl_b32 s65, s%d, 8\ns_add_u32 s64, s64, s65\ns_add_u32 s64, s64, %d" % (sB, sREST, WS_QG))
    await_lds(LDS_C, 4, 1)
    for w in range(4):
        A("ds_read_b64 v[%d:%d], v9 offset:%d" % (32 + 2 * w, 33 + 2 * w, LDS_A + 1024 * w))
    A("s_waitcnt lgkmcnt(0)\nv_pk_add_f32 v[32:33], v[32:33], v[34:35]\nv_pk_add_f32 v[36:37], v[36:37], v[38:39]\nv_pk_add_f32 v[32:33], v[32:33], v[36:37]")
    if pub4:
        A("v_cvt_pk_bf16_f32 v36, v32, v33\nv_cvt_pk_bf16_f32 v38, v32, v33\nv_mov_b32 v37, s%d\nv_mov_b32 v39, s%d\nv_permlane32_swap_b32 v36, v38\ns_mov_b32 exec_hi, 0" % (sTAG, sTAG))
        A("buffer_store_dwordx4 v[36:39], v14, %s, s64 offen %s\ns_mov_b32 exec_hi, -1" % (WS, stpol))
    else:
        A("v_cvt_pk_bf16_f32 v32, v32, v33\nv_mov_b32 v33, s%d" % sTAG)
        A("buffer_store_dwordx2 v[32:33], v14, %s, s64 offen %s" % (WS, stpol))
    A("L_noA2:")
    ST("pubA")
    def adapt_cps(cs, setup=False):
        l1 = newlabel("noad")
        if setup:
            nrow = npeer // 8; span = 32 // nrow
            A("s_lshr_b32 s64, s2, 3\ns_and_b32 s60, s64, %d\ns_mul_i32 s60, s60, %d\ns_lshr_b32 s64, s64, %d\ns_lshl_b32 s64, s64, 3\ns_and_b32 s63, s2, 7\ns_add_u32 s64, s64, s63\ns_add_u32 s64, s64, s60" % (span - 1, npeer, span.bit_length() - 1))
            A("s_lshl_b32 s64, s64, %d\ns_add_u32 s66, s64, %d\ns_lshl_b32 s60, s60, %d\ns_add_u32 s60, s60, %d" % (mkstr, WS_MK, mkstr, WS_MK))
            A("v_and_b32 v50, %d, v%d\nv_lshlrev_b32 v50, %d, v50\nv_mov_b32 v51, 0\nv_mov_b32 v52, s%d" % (npeer - 1, vL, mkstr, sTAG))
            if stamp: A("s_mov_b32 s71, 0")
        only_wave(aw, l1)
        for c in cs:
            await_lds(LDS_C + 12, adapt[c], 1)
            A("s_mov_b64 exec, 1\nbuffer_store_dword v52, v51, %s, s66 offen %s\ns_mov_b64 exec, -1" % (WS, stpol))
            if adelay: A("s_waitcnt vmcnt(0)")
            A("buffer_load_dword v53, v50, %s, s60 offen %s" % (WS, ldpol))
            A("s_add_u32 s66, s66, 32768\ns_add_u32 s60, s60, 32768\ns_waitcnt vmcnt(0)")
            A("v_cmp_eq_u32 vcc, s%d, v53\ns_bcnt1_i32_b64 s63, vcc\ns_mov_b32 s61, 0" % sTAG)
            for thr, m in alev:
                A("s_cmp_ge_u32 s63, %d\ns_cselect_b32 s61, %d, s61" % (thr, m))
            A("v_mov_b32 v53, s61\nds_write_b32 v51, v53 offset:%d" % (LDS_C + 16))
            if stamp: A("s_min_u32 s63, s63, 63\ns_lshl_b32 s63, s63, %d\ns_or_b32 s71, s71, s63" % (6 * c))
        A("%s:" % l1)
    if adapt: adapt_cps([c for c, cp in enumerate(adapt) if cp < p1], True)
    A("v_lshrrev_b32 v40, 5, v%d\nv_mul_u32_u24 v40, %d, v40\nv_add_u32 v40, v40, v%d" % (vL, 61440 - 512, vVO))
    A("s_mul_i32 s98, s%d, 30720\ns_lshr_b32 s64, s%d, 4\ns_lshl_b32 s64, s64, 11\ns_add_u32 s98, s98, s64\ns_and_b32 s65, s3, 3\ns_lshl_b32 s64, s65, 9\ns_add_u32 s98, s98, s64\ns_add_u32 s98, s98, %d" % (sB, sREST, WS_QG))
    qld = "buffer_load_dwordx4 v[32:35], v40, %s, s98 offen %s" % (WS, ldpol)
    if p0 is None:
        await_lds(LDS_C + 12, p1, nap)
        poll([qld], [33, 35], 4)
    else:
        await_lds(LDS_C + 12, p0, 1)
        A(qld + "\ns_waitcnt vmcnt(0)")
        cmpn([33, 35])
        A("s_wqm_b64 s[60:61], vcc\ns_bcnt0_i32_b64 s63, s[60:61]\nv_mov_b32 v12, 0\nv_mov_b32 v13, s63\ns_mov_b64 exec, 1\nds_add_u32 v12, v13 offset:%d\ns_mov_b64 exec, -1" % (LDS_C + 16))
        A("s_cmp_eq_u32 s63, 64\ns_cbranch_scc1 L_qok")
        await_lds(LDS_C + 12, p1, nap)
        A("s_mov_b64 exec, s[60:61]")
        poll([qld], [33, 35], 4)
        A("L_qok:")
    A("v_mov_b32 v36, v32\nv_mov_b32 v37, v34\ns_lshl_b32 s63, s65, 8\ns_add_u32 s63, s63, %d\nv_permlane32_swap_b32 v36, v32\nv_permlane32_swap_b32 v37, v34" % LDS_Q)
    for a, b in ((36, 32), (37, 34)):
        A("v_lshlrev_b32 v12, 16, v%d\nv_lshlrev_b32 v13, 16, v%d\nv_and_b32 v14, 0xffff0000, v%d\nv_and_b32 v15, 0xffff0000, v%d" % (a, b, a, b))
        A("v_add_f32 v12, v12, v13\nv_add_f32 v14, v14, v15\nv_cvt_pk_bf16_f32 v%d, v12, v14" % a)
    A("v_and_b32 v9, 31, v%d\nv_lshl_add_u32 v9, v9, 3, s63" % vL)
    A("ds_write2_b32 v9, v36, v37 offset0:0 offset1:1")
    bump(LDS_C + 8)
    only_wave(5, "L_noside")
    A("v_min_u32 v40, 13, v11\nv_lshrrev_b32 v40, 1, v40\nv_lshlrev_b32 v40, 3, v40")
    A("s_mul_i32 s63, s%d, 7\ns_mul_i32 s64, s%d, 3840\ns_add_u32 s63, s63, s64\ns_lshl_b32 s63, s63, 3\ns_add_u32 s63, s63, %d" % (sREST, sB, WS_QG + 2048 * 8))
    A("v_and_b32 v41, 1, v10\nv_mul_u32_u24 v41, 61440, v41\nv_lshrrev_b32 v42, 1, v10\nv_mul_u32_u24 v42, %d, v42\nv_add3_u32 v40, v40, v41, v42\nv_add_u32 v40, s63, v40" % (896 * 8))
    poll(["buffer_load_dwordx2 v[32:33], v40, %s, 0 offen %s" % (WS, ldpol)], [33], 4)
    A("v_and_b32 v34, 1, v%d\nv_cmp_eq_u32 vcc, 1, v34\nv_lshlrev_b32 v34, 16, v32\nv_and_b32 v35, 0xffff0000, v32" % vL)
    A("v_cndmask_b32 v34, v34, v35, vcc\nv_cmp_gt_u32 vcc, 14, v11\nv_mov_b32 v35, v34\ns_nop 1\nv_permlane16_swap_b32 v35, v34\nv_add_f32 v34, v34, v35")
    A("v_mov_b32 v36, v34\ns_nop 1\nv_permlane32_swap_b32 v34, v36")
    A("v_mul_f32 v34, 0x%08x, v34\nv_exp_f32 v34, v34\nv_sub_f32 v37, 1.0, v%d\nv_add_f32 v34, 1.0, v34\nv_rcp_f32 v34, v34\nv_mul_f32 v36, v36, v37" % (f2u(-LOG2E), vG))
    A("v_mul_f32 v34, v34, v36\nv_cndmask_b32 v34, 0, v34, vcc")
    A("v_and_b32 v35, 7, v11\nv_lshlrev_b32 v35, 3, v35\nv_lshrrev_b32 v36, 3, v11\nv_lshl_add_u32 v35, v36, 2, v35")
    A("ds_write_b32 v35, v34 offset:%d" % LDS_H)
    A("v_and_b32 v40, 3, v%d\nv_lshlrev_b32 v40, 4, v40\nv_bfe_u32 v41, v%d, 2, 1\nv_lshl_add_u32 v41, v41, 6, v40" % (vL, vL))
    A("s_lshl_b32 s64, s%d, 7\ns_add_u32 s64, s64, %d\nv_mov_b32 v45, s%d\nv_mov_b32 v47, s%d" % (sSLOT, WS_ML, sTAG, sTAG))
    await_lds(LDS_C + 4, 4, nap)
    A("ds_read_b128 v[32:35], v40 offset:%d\nds_read_b128 v[36:39], v40 offset:%d" % (LDS_M, LDS_L))
    A("v_and_b32 v42, 12, v%d\nv_add_u32 v42, v42, v40\nds_read_b32 v43, v42 offset:%d" % (vL, LDS_M))
    A("s_waitcnt lgkmcnt(0)\nv_max3_f32 v44, v32, v33, v34\nv_max_f32 v44, v44, v35")
    for w in range(4): A("v_sub_f32 v%d, v%d, v44" % (32 + w, 32 + w))
    for w in range(4): A("v_exp_f32 v%d, v%d" % (32 + w, 32 + w))
    A("v_mul_f32 v46, v32, v36")
    for w in range(1, 4): A("v_fmac_f32 v46, v%d, v%d" % (32 + w, 36 + w))
    A("s_mov_b64 exec, 0xff")
    A("buffer_store_dwordx4 v[44:47], v41, %s, s64 offen %s" % (WS, stpol))
    A("s_mov_b64 exec, -1")
    ST("pubML")
    A("s_and_b32 s64, s%d, 0xf0\ns_lshl_b32 s64, s64, 7\ns_add_u32 s64, s64, %d" % (sSLOT, WS_ML))
    A("v_lshrrev_b32 v41, 2, v%d\nv_lshl_add_u32 v41, v41, 7, v40" % vL)
    await_lds(LDS_C + 12, p2, nap)
    poll(["buffer_load_dwordx4 v[32:35], v41, %s, s64 offen %s" % (WS, ldpol)], [33, 35], 4)
    A("v_mov_b32 v36, v32\ns_nop 1")
    for c in ("row_ror:4", "row_ror:8"):
        dpp("v_max_f32", 36, 36, 36, c); A("s_nop 1")
    xrows("v_max_f32", 36, 37)
    A("v_sub_f32 v37, v32, v36\nv_exp_f32 v37, v37\ns_nop 0\nv_mul_f32 v37, v37, v34\ns_nop 1")
    for c in ("row_ror:4", "row_ror:8"):
        dpp("v_add_f32", 37, 37, 37, c); A("s_nop 1")
    xrows("v_add_f32", 37, 38)
    A("v_sub_f32 v43, v43, v36\nv_rcp_f32 v37, v37\nv_exp_f32 v43, v43\nv_mul_f32 v37, v37, v%d\nv_mul_f32 v43, v43, v37" % vG)
    A("ds_write_b32 v42, v43 offset:%d" % LDS_F)
    A("L_noside:")
    if adapt: adapt_cps([c for c, cp in enumerate(adapt) if cp >= p1])
    A("s_cmp_lg_u32 s2, 255\ns_cbranch_scc1 L_noep")
    only_wave(7, "L_noep")
    A("v_lshlrev_b32 v48, 9, v%d\ns_mov_b32 s64, %d" % (vL, WS_ML))
    await_lds(LDS_C + 12, pe, nap)
    poll(["buffer_load_dwordx4 v[%d:%d], v48, %s, s64 offen offset:%d %s" % (32 + 4 * a, 35 + 4 * a, WS, 128 * a, ldpol) for a in range(4)], [33 + 2 * a for a in range(8)], 8)
    A("v_mov_b32 v48, %d\nv_mov_b32 v49, s%d\ns_mov_b64 exec, 1" % (WS_EPOCH, sTAG))
    A("buffer_store_dword v49, v48, %s, 0 offen %s" % (WS, stpol))
    A("s_mov_b64 exec, -1")
    A("L_noep:")
    w2_prep()
    A("v_bfe_u32 v11, v%d, 1, 4\nv_lshlrev_b32 v11, 4, v11\nv_and_b32 v12, 1, v%d\nv_mul_u32_u24 v12, %d, v12" % (vL, vL, HFS))
    A("v_lshrrev_b32 v13, 5, v%d\nv_lshlrev_b32 v13, 3, v13\nv_add3_u32 v11, v11, v12, v13" % vL)
    A("s_and_b32 s65, s3, 3\ns_lshl_b32 s63, s65, 8\nv_add_u32 v11, s63, v11\ns_lshl_b32 s63, s65, 4\nv_mov_b32 v14, s63")
    A("s_lshl_b32 s99, s%d, 11\ns_lshl_b32 s63, s65, 9\ns_add_u32 s99, s99, s63\ns_add_u32 s99, s99, %d" % (sSLOT, WS_OP))
    A("v_mov_b32 v%d, s%d\nv_mov_b32 v%d, s%d\nv_mov_b32 v15, 0" % (PUB + 1, sTAG, PUB + 3, sTAG))
    save = list(vm.ops)
    if wd_pre or wo_pre:
        await_lds(LDS_C + 12, pe, nap)
        if wd_pre: load_wd(0); load_wd(1)
        if wo_pre:
            for a in range(4): load_wo(a)
    vm.ops = save
    A("s_waitcnt lgkmcnt(0)\ns_barrier")
    ST("B5")
    A("ds_read_b128 v[%d:%d], v14 offset:%d" % (T + 8, T + 11, LDS_F))
    for w in range(4):
        A("ds_read_b64 v[%d:%d], v11 offset:%d" % (T + 2 * w, T + 2 * w + 1, LDS_O + w * WVS))
    x = lambda k: T + k
    A("s_waitcnt lgkmcnt(2)\nv_mul_f32 v%d, v%d, v%d\nv_mul_f32 v%d, v%d, v%d\nv_fmac_f32 v%d, v%d, v%d\nv_fmac_f32 v%d, v%d, v%d" % (x(0), x(0), x(8), x(1), x(1), x(8), x(0), x(2), x(9), x(1), x(3), x(9)))
    A("s_waitcnt lgkmcnt(0)\nv_fmac_f32 v%d, v%d, v%d\nv_fmac_f32 v%d, v%d, v%d\nv_fmac_f32 v%d, v%d, v%d\nv_fmac_f32 v%d, v%d, v%d" % (x(0), x(4), x(10), x(1), x(5), x(10), x(0), x(6), x(11), x(1), x(7), x(11)))
    A("v_cvt_pk_bf16_f32 v%d, v%d, v%d\nv_cvt_pk_bf16_f32 v%d, v%d, v%d\ns_nop 1\nv_permlane32_swap_b32 v%d, v%d" % (PUB + 2, x(0), x(1), PUB, x(0), x(1), PUB, PUB + 2))
    A("s_mov_b32 exec_hi, 0")
    A("buffer_store_dwordx4 v[%d:%d], v%d, %s, s99 offen %s" % (PUB, PUB + 3, vVO, WS, stpol))
    A("s_mov_b32 exec_hi, -1")

    A("L_join:")
    vm.issue("x1")
    ST("pubO")
    if not wd_pre: load_wd(0); load_wd(1)
    if not wo_pre:
        for a in range(4): load_wo(a)
    A("v_lshlrev_b32 v13, 3, v9\nds_read_b64 v[%d:%d], v13 offset:%d" % (vHH, vHH + 1, LDS_H))
    A("v_lshlrev_b32 v13, 4, v9")
    A("v_and_b32 v12, 7, v%d\nv_lshrrev_b32 v80, 4, v%d" % (vL, vL))
    A("v_lshlrev_b32 v14, 4, v12\nv_lshrrev_b32 v81, 1, v80\nv_lshl_add_u32 v14, v81, 7, v14")
    A("s_lshl_b32 s99, s%d, 11\ns_lshl_b32 s63, s3, 8\ns_add_u32 s99, s99, s63\ns_add_u32 s99, s99, %d" % (sSLOT, WS_YP))
    A("v_and_b32 v11, 1, v12\nv_lshlrev_b32 v11, 6, v11\nv_lshl_add_u32 v11, v80, 4, v11\nv_lshrrev_b32 v12, 1, v12\nv_lshl_add_u32 v11, v12, 2, v11\ns_and_b32 s63, s3, 1\ns_lshl_b32 s63, s63, 7\nv_add_u32 v11, s63, v11")
    wait("wd")
    A("s_waitcnt lgkmcnt(0)")
    for a in range(2):
        for j in range(4):
            A("v_lshlrev_b32 v80, 16, v%d\nv_and_b32 v81, 0xffff0000, v%d" % (WDR + 4 * a + j, WDR + 4 * a + j))
            op = "v_mul_f32" if a == 0 else "v_fmac_f32"
            A("%s v%d, v%d, v80\n%s v%d, v%d, v81" % (op, YA + 2 * j, vHH + a, op, YA + 2 * j + 1, vHH + a))
    wait("wo")
    for r in range(16):
        A("v_lshlrev_b32 v%d, 16, v%d\nv_and_b32 v%d, 0xffff0000, v%d" % (WOF + 2 * r, WOR + r, WOF + 2 * r + 1, WOR + r))
    def unpack4(b):
        A("v_lshlrev_b32 v%d, 16, v%d\nv_lshlrev_b32 v%d, 16, v%d\nv_and_b32 v%d, 0xffff0000, v%d\nv_and_b32 v%d, 0xffff0000, v%d\ns_nop 0" % (x(4), b, x(6), b + 2, x(5), b, x(7), b + 2))
    def mpoll(ns, sleep):
        if ns == 1:
            poll([opl], [x(1), x(3)], sleep, first=False); unpack4(x(0)); return
        base = [x(0)] + [x(8 + 4 * k) for k in range(ns - 1)]
        ld = lambda k: "buffer_load_dwordx4 v[%d:%d], v15, %s, s100 offen %s" % (base[k], base[k] + 3, WS, ldpol)
        pend = [60, 40, 42, 32][:ns]
        lo, fin = newlabel("mp"), newlabel("mf")
        A("s_waitcnt vmcnt(0)")
        cmpn([base[0] + 1, base[0] + 3])
        A("s_wqm_b64 exec, vcc\ns_cbranch_scc0 %s_0\ns_mov_b32 s62, 0" % fin)
        A("s_mov_b64 s[%d:%d], exec" % (pend[0], pend[0] + 1))
        A(ld(0))
        A("s_mov_b64 exec, -1")
        for k in range(1, ns):
            A("s_mov_b64 s[%d:%d], -1\ns_sleep %d" % (pend[k], pend[k] + 1, stag)); A(ld(k))
        A("%s:" % lo)
        for k in range(ns):
            A("s_mov_b64 exec, s[%d:%d]\ns_waitcnt vmcnt(%d)" % (pend[k], pend[k] + 1, ns - 1))
            cmpn([base[k] + 1, base[k] + 3])
            A("s_wqm_b64 exec, vcc\ns_cbranch_scc0 %s_%d" % (fin, k))
            A("s_mov_b64 s[%d:%d], exec" % (pend[k], pend[k] + 1))
            A(ld(k))
        A("s_add_u32 s62, s62, 1\ns_cmp_gt_u32 s62, %d\ns_cbranch_scc0 %s\ns_branch L_bail" % (spin, lo))
        for k in range(ns - 1, -1, -1):
            A("%s_%d:\ns_mov_b64 exec, -1" % (fin, k)); unpack4(base[k])
            if k: A("s_branch %s" % fin)
        A("%s:" % fin)
    def red4(steps):
        A("v_permlane32_swap_b32 v%d, v%d\nv_permlane32_swap_b32 v%d, v%d\nv_add_f32 v%d, v%d, v%d\nv_add_f32 v%d, v%d, v%d\ns_nop 1" % (x(4), x(6), x(5), x(7), x(4), x(4), x(6), x(5), x(5), x(7)))
        A("v_permlane16_swap_b32 v%d, v%d\nv_add_f32 v%d, v%d, v%d" % (x(4), x(5), x(4), x(4), x(5)))
        for c in steps:
            A("s_nop 1"); dpp("v_add_f32", x(4), x(4), x(4), c)
    A("s_cmp_ge_u32 s3, 2\ns_cbranch_scc1 L_nog2")
    mpoll(ns1, sleep1)
    red4(["row_ror:8"])
    A("ds_write_b32 v11, v%d offset:%d\ns_waitcnt lgkmcnt(0)" % (x(4), LDS_o))
    A("L_nog2:")
    ST("og")
    A("s_barrier")
    y = lambda k: T + 24 + k
    A("ds_read_b128 v[%d:%d], v13 offset:%d\nds_read_b128 v[%d:%d], v13 offset:%d" % (y(0), y(3), LDS_o, y(4), y(7), LDS_o + 128))
    A("s_waitcnt lgkmcnt(0)")
    A("v_pk_add_f32 v[%d:%d], v[%d:%d], v[%d:%d]\nv_pk_add_f32 v[%d:%d], v[%d:%d], v[%d:%d]" % (y(0), y(1), y(0), y(1), y(4), y(5), y(2), y(3), y(2), y(3), y(6), y(7)))
    for a in range(4):
        for j in range(0, 8, 2):
            lo = a & 1
            A("v_pk_fma_f32 v[%d:%d], v[%d:%d], v[%d:%d], v[%d:%d] op_sel:[0,%d,0] op_sel_hi:[1,%d,1]" % (YA + j, YA + j + 1, WOF + 8 * a + j, WOF + 8 * a + j + 1, y(a & 2), y((a & 2) + 1), YA + j, YA + j + 1, lo, lo))
    A("s_nop 1")
    for k in range(4): A("v_permlane32_swap_b32 v%d, v%d" % (YA + k, YA + k + 4))
    for k in range(4): A("v_add_f32 v%d, v%d, v%d" % (YA + k, YA + k, YA + k + 4))
    A("s_nop 0\nv_permlane16_swap_b32 v%d, v%d\nv_permlane16_swap_b32 v%d, v%d" % (YA, YA + 2, YA + 1, YA + 3))
    A("v_add_f32 v%d, v%d, v%d\nv_add_f32 v%d, v%d, v%d\ns_nop 0" % (YA, YA, YA + 2, YA + 1, YA + 1, YA + 3))
    dpp("v_add_f32", YA, YA, YA, "row_ror:8"); dpp("v_add_f32", YA + 1, YA + 1, YA + 1, "row_ror:8")
    A("v_cvt_pk_bf16_f32 v%d, v%d, v%d\nv_cvt_pk_bf16_f32 v%d, v%d, v%d\ns_nop 1\nv_permlane16_swap_b32 v%d, v%d" % (PUB + 2, YA, YA + 1, PUB, YA, YA + 1, PUB, PUB + 2))
    A("s_mov_b32 exec_lo, 0xff\ns_mov_b32 exec_hi, 0xff")
    A("buffer_store_dwordx4 v[%d:%d], v14, %s, s99 offen %s" % (PUB, PUB + 3, WS, stpol))
    A("s_mov_b64 exec, -1")
    ST("pubY")
    A("s_cmp_lt_u32 s%d, 96\ns_cbranch_scc1 L_exit" % sREST)
    A("v_lshrrev_b32 v15, 2, v%d\nv_lshlrev_b32 v15, 11, v15\nv_and_b32 v9, 3, v%d\nv_lshl_add_u32 v15, v9, 4, v15" % (vL, vL))
    A("s_lshl_b32 s100, s%d, 7\ns_lshl_b32 s63, s3, 4\ns_add_u32 s100, s100, s63\ns_lshl_b32 s100, s100, 11\ns_sub_u32 s64, s%d, 96\ns_lshl_b32 s63, s64, 6\ns_add_u32 s100, s100, s63\ns_add_u32 s100, s100, %d" % (sB, sREST, WS_YP))
    A(opl)
    A("v_lshlrev_b32 v9, 4, v9\nv_lshrrev_b32 v10, 4, v%d\nv_lshl_add_u32 v9, v10, 2, v9\ns_lshl_b32 s63, s3, 6\nv_add_u32 v9, s63, v9" % vL)
    A("v_and_b32 v10, 7, v%d\nv_lshlrev_b32 v11, 3, v10\nv_lshrrev_b32 v12, 1, v10\nv_and_b32 v10, 1, v10\nv_lshlrev_b32 v10, 2, v10\nv_lshl_add_u32 v10, v12, 4, v10" % vL)
    A("s_lshl_b32 s63, s%d, 10\ns_lshr_b32 s65, s64, 2\ns_lshl_b32 s65, s65, 7\ns_add_u32 s63, s63, s65\ns_and_b32 s65, s64, 1\ns_lshl_b32 s65, s65, 6\ns_add_u32 s63, s63, s65\ns_and_b32 s65, s64, 2\ns_lshl_b32 s65, s65, 2\ns_add_u32 s63, s63, s65\nv_add_u32 v10, s63, v10" % sB)
    mpoll(ns2, sleep2)
    ST("yg")
    red4(["row_ror:4", "row_ror:8"])
    A("ds_write_b32 v9, v%d offset:%d\ns_waitcnt lgkmcnt(0)\ns_barrier" % (x(4), LDS_R))
    only_wave(0, "L_exit")
    for w in range(8):
        A("ds_read_b64 v[%d:%d], v11 offset:%d" % (64 + 2 * w, 65 + 2 * w, LDS_R + 64 * w))
    A("s_waitcnt lgkmcnt(4)\nv_pk_add_f32 v[64:65], v[64:65], v[66:67]\nv_pk_add_f32 v[68:69], v[68:69], v[70:71]\nv_pk_add_f32 v[64:65], v[64:65], v[68:69]")
    A("s_waitcnt lgkmcnt(0)\nv_pk_add_f32 v[72:73], v[72:73], v[74:75]\nv_pk_add_f32 v[76:77], v[76:77], v[78:79]\nv_pk_add_f32 v[72:73], v[72:73], v[76:77]\nv_pk_add_f32 v[64:65], v[64:65], v[72:73]")
    A("s_mov_b64 exec, 0xff\nv_cvt_pk_bf16_f32 v64, v64, v65")
    A("global_store_dword v10, v64, s[24:25] %s" % outpol)
    A("s_mov_b64 exec, -1")
    A("L_exit:")
    if skewprobe:
        only_wave(7, "L_sk1")
        A("s_waitcnt lgkmcnt(0)\ns_lshl_b32 s63, s2, 7\ns_add_u32 s63, s63, %d\nv_mov_b32 v20, s70\nv_mov_b32 v21, s%d\nv_mov_b32 v22, 0" % (WS_MK, sTAG))
        A("s_mov_b64 exec, 1\nbuffer_store_dwordx2 v[20:21], v22, %s, s63 offen sc1\ns_mov_b64 exec, -1" % WS)
        A("s_cmp_lg_u32 s2, 255\ns_cbranch_scc1 L_sk1")
        A("v_lshlrev_b32 v48, 9, v%d\ns_mov_b32 s64, %d" % (vL, WS_MK))
        poll(["buffer_load_dwordx2 v[%d:%d], v48, %s, s64 offen offset:%d sc1" % (32 + 2 * a, 33 + 2 * a, WS, 128 * a) for a in range(4)], [33, 35, 37, 39], 8)
        for a in range(4): A("v_subrev_u32 v%d, s70, v%d" % (32 + 2 * a, 32 + 2 * a))
        A("v_min_i32 v40, v32, v34\nv_min_i32 v41, v36, v38\nv_min_i32 v40, v40, v41\nv_max_i32 v42, v32, v34\nv_max_i32 v41, v36, v38\nv_max_i32 v42, v42, v41\ns_nop 1")
        for r, op in ((40, "v_min_i32"), (42, "v_max_i32")):
            for c in ("quad_perm:[1,0,3,2]", "quad_perm:[2,3,0,1]", "row_half_mirror", "row_mirror"):
                dpp(op, r, r, r, c); A("s_nop 1")
            xrows(op, r, 44)
        A("v_sub_u32 v42, v42, v40\ns_nop 0\nv_readfirstlane_b32 s63, v42\nv_readfirstlane_b32 s62, v40\ns_mul_i32 s63, s63, %d\ns_add_u32 s63, s63, 6000\ns_add_u32 s63, s63, s62" % (skewprobe - 1))
        A("L_skl:\ns_sleep 4\ns_memrealtime s[64:65]\ns_waitcnt lgkmcnt(0)\ns_sub_u32 s64, s64, s70\ns_cmp_lt_u32 s64, s63\ns_cbranch_scc1 L_skl")
        A("L_sk1:")
    if probe:
        ST("end")
        name, sign, waves = probe
        A("s_waitcnt lgkmcnt(0)")
        A("s_lshl_b32 s63, 1, s3\ns_and_b32 s63, s63, %d\ns_cbranch_scc0 L_pe" % waves)
        A("s_and_b32 s63, s2, 7\ns_lshl_b32 s63, 1, s63\ns_and_b32 s63, s63, %d\ns_cbranch_scc0 L_pe" % pslot)
        if prow is not None: A("s_lshr_b32 s63, s2, 3\ns_cmp_lg_u32 s63, %d\ns_cbranch_scc1 L_pe" % prow)
        if name == "W": A("s_cmp_ge_u32 s%d, 120\ns_cbranch_scc1 L_pe" % sREST)
        if name == "yg": A("s_cmp_lt_u32 s%d, 96\ns_cbranch_scc1 L_pe" % sREST)
        A("s_sub_u32 s63, s%d, s70" % stn[name])
        if amp > 1: A("s_sub_u32 s63, s63, %d\ns_max_i32 s63, s63, 0\ns_mul_i32 s63, s63, %d" % (aoff, amp))
        if sign < 0: A("s_sub_u32 s63, 4000, s63")
        A("s_add_u32 s63, s63, %d" % pbase)
        A("L_pl:\ns_sleep 4\ns_memrealtime s[64:65]\ns_waitcnt lgkmcnt(0)\ns_sub_u32 s64, s64, s70\ns_cmp_lt_u32 s64, s63\ns_cbranch_scc1 L_pl")
        A("L_pe:")
    if stamp:
        ST("end")
        A("s_waitcnt lgkmcnt(0)")
        A("s_lshl_b32 s63, s2, 3\ns_add_u32 s63, s63, s3\ns_lshl_b32 s63, s63, 6\ns_add_u32 s63, s63, %d\nv_mov_b32 v9, 0" % WS_STAMP)
        for i in range(0, 16, 4):
            for j in range(4):
                A("v_mov_b32 v%d, s%d" % (20 + j, 70 + 2 * (i + j)) if i + j < len(names) else "v_mov_b32 v%d, s71" % (20 + j))
            A("buffer_store_dwordx4 v[20:23], v9, %s, s63 offen offset:%d\ns_nop 1" % (WS, 4 * i))
    A("s_endpgm")
    A("L_bail:")
    A("s_mov_b64 exec, 1\nv_mov_b32 v9, 0\nv_mov_b32 v10, 0xdead\nglobal_store_dword v9, v10, s[26:27]")
    A("L_end:\ns_endpgm")
    L.append('.section .rodata,"a"\n.p2align 6\n.amdhsa_kernel %s_kernel' % NAME)
    L.append("  .amdhsa_next_free_vgpr 256\n  .amdhsa_next_free_sgpr 102\n  .amdhsa_accum_offset 256\n  .amdhsa_group_segment_fixed_size 0\n  .amdhsa_kernarg_size 104\n  .amdhsa_user_sgpr_count 2\n  .amdhsa_user_sgpr_kernarg_segment_ptr 1\n  .amdhsa_system_sgpr_workgroup_id_x 1\n.end_amdhsa_kernel")
    if noside:
        out = []; inh = False
        for i, ln in enumerate(L):
            if ln == "L_helper:": inh = True
            if ln == "L_noep:": inh = False
            if inh:
                t = ln.strip()
                if t.startswith("buffer_store") and "s" in noside: continue
                if t.startswith("buffer_load") and "l" in noside: continue
                if t.startswith("global_load") and "x" in noside: continue
                if t.startswith("s_wqm_b64 exec, vcc"): ln = "    s_and_b64 vcc, 0, 0"
            out.append(ln)
        L[:] = out
    return "\n".join(L) + "\n"
```

```python
import sys, struct
NAME = "gated_mix__gqa_block_cached__glu_gated_glu__decode"
def f2u(x): return struct.unpack("<I", struct.pack("<f", x))[0]
LOG2E = 1.4426950408889634

WS_EPOCH = 0
WS_QG = 0x1000
WS_ML = 0x20000
WS_OP = 0x40000
WS_YP = 0xC0000
WS_MK = 0x140000
WS_STAMP = 0x400000
WS_USED = 0x180000
LDS_A = 0
LDS_Q = 4096
LDS_M = 5120
LDS_L = 5184
LDS_F = 5248
LDS_H = 5312
LDS_C = 5376
LDS_o = 5632
LDS_R = 5888
HFS = 1152
WVS = 2304
LDS_O = 6400
LDS_K = LDS_O + 4 * WVS
assert LDS_K % 256 == 0
LDS_END = LDS_K + 4 * 12288

class VM:
    def __init__(self): self.ops = []
    def issue(self, name, counted=True, w=None): self.ops.append((name, counted, (1.0 if counted else None) if w is None else w))
    def after(self, name):
        idx = max(i for i, (n, c, w) in enumerate(self.ops) if n == name)
        return sum(1 for n, c, w in self.ops[idx + 1:] if c)
    def pace_n(self, room):
        n = 0; tot = 0.0
        for name, c, w in reversed(self.ops):
            if w is None: continue
            if tot + w > room: return n, True
            tot += w; n += 1
        return n, False

def gen(d=5, dpat=None, d0=None, pol="nt", kpol=None, wpol="nt", w2pol="", stamp=False,
        p1=22, p2=100, pe=123, qk_at=37, outpol="", stpol="sc1", ldpol="sc1", spin=200000, header=None, probe=None, pbase=6000,
        sleep1=0, sleep2=0, nap=2, sprio=1, dend=None, lds_pad=0, adapt=None, db=7, alev=None, win=8, mkstr=7, npeer=16, adelay=True, aw=6, skewprobe=0, gprobe=None, pslot=255, prow=None, p0=None, thr=None, pm=16, pend=126, noside=None, pub4=True, ns1=1, ns2=1, stag=3, amp=1, aoff=2000, preG=True, preP=False, b5b=True, ssl=0, now2=False, touch=0, pt=116, tx=1, tpol="", tearly=False, tout=False, par=0, dodd=None, nred=64, plate=0, pbase0=0):
    if kpol is None: kpol = pol
    if d0 is None: d0 = d
    L = []
    def A(s):
        for line in s.strip("\n").split("\n"):
            t = line.strip()
            L.append(t if t.endswith(":") else "    " + t)
    vm = VM()
    diag = stamp or probe or skewprobe or gprobe
    names = ["start", "W", "pubA", "qw", "q", "exp", "pubML", "V7", "B5", "pubO", "og", "pubY", "yg", "end"]
    stn = {n: 70 + 2 * i for i, n in enumerate(names)}
    def ST(name):
        if diag and (not gprobe or name in ("start", "end", gprobe[0])): A("s_memrealtime s[%d:%d]" % (stn[name], stn[name] + 1))
    def wait(name, extra=0):
        n = vm.after(name) + extra
        assert n <= 63
        A("s_waitcnt vmcnt(%d)" % n)
    npace = [0]; amode = [False]
    def pace(dd=None, w=1.0):
        if dodd and dd is None:
            de = dpat[npace[0] % len(dpat)] if dpat else d
            do = dodd[npace[0] % len(dodd)]
            npace[0] += 1
            (ne, need_e), (no, need_o) = vm.pace_n(de - w), vm.pace_n(do - w)
            if max(ne, no) != min(ne, no):
                l1 = newlabel("pc")
                if need_e and need_o: A("s_waitcnt vmcnt(%d)" % max(ne, no))
                A("s_cbranch_%s %s\ns_waitcnt vmcnt(%d)\n%s:" % ("vccnz" if ne < no else "vccz", l1, min(ne, no), l1))
            elif need_e: A("s_waitcnt vmcnt(%d)" % ne)
            return
        if amode[0] and dd is None:
            l1 = newlabel("pc")
            dd = dpat[npace[0] % len(dpat)] if dpat else d
            npace[0] += 1
            A("s_waitcnt vmcnt(%d)\ns_cbranch_vccnz %s\ns_waitcnt vmcnt(%d)\n%s:" % (vm.pace_n(db - w)[0], l1, vm.pace_n(dd - w)[0], l1))
            return
        if dd is None:
            dd = dpat[npace[0] % len(dpat)] if dpat else d
            npace[0] += 1
        n, need = vm.pace_n(dd - w)
        if need: A("s_waitcnt vmcnt(%d)" % n)
    lab = [0]
    def newlabel(p):
        lab[0] += 1; return "L_%s%d" % (p, lab[0])

    vL, vVO, vSP, vG = 1, 3, 4, 8
    Q0, O0, AX0, S0 = 16, 16, 24, 32
    vKS, vKR = 88, 92
    YA, PUB, vWO, vWD2, vHH = 64, 72, 76, 77, 78
    WOR, WDR, WOF, T = 128, 144, 160, 192
    def buf(i): return 96 + 16 * (i % 10)
    def Kreg(t): return buf(t)
    def Vreg(t): return buf(t + 6)
    sK, sV, sW, sWS, sWO, sWD = 32, 36, 40, 44, 48, 52
    sB, sREST, sTAG, sSTR = 30, 31, 56, 58
    sKO, sVO, sSLOT, sM0 = 66, 67, 59, 101
    WS = "s[%d:%d]" % (sWS, sWS + 3)
    tstep = 4 * 4096

    def dpp(op, dst, a, b, ctrl):
        A("%s_dpp v%d, v%d, v%d %s row_mask:0xf bank_mask:0xf" % (op, dst, a, b, ctrl))
    def xrows(op, x, t):
        A("v_mov_b32 v%d, v%d\ns_nop 1\nv_permlane16_swap_b32 v%d, v%d\n%s v%d, v%d, v%d" % (t, x, t, x, op, x, t, x))
        A("v_mov_b32 v%d, v%d\ns_nop 1\nv_permlane32_swap_b32 v%d, v%d\n%s v%d, v%d, v%d" % (t, x, t, x, op, x, t, x))
    def cmpn(tagregs):
        A("v_cmp_ne_u32 vcc, s%d, v%d" % (sTAG, tagregs[0]))
        for r in tagregs[1:]:
            A("v_cmp_ne_u32 s[68:69], s%d, v%d\ns_or_b64 vcc, vcc, s[68:69]" % (sTAG, r))
    def poll(loads, tagregs, sleep=0, first=True):
        lo, lc = newlabel("spin"), newlabel("chk")
        A("s_mov_b32 s62, 0")
        if not first: A("s_branch %s" % lc)
        elif sleep: A("s_branch %s_n" % lo)
        A("%s:" % lo)
        if sleep: A("s_sleep %d\n%s_n:" % (sleep, lo))
        for s in loads: A(s)
        A("s_add_u32 s62, s62, 1\ns_cmp_gt_u32 s62, %d\ns_cbranch_scc1 L_bail" % spin)
        A("%s:" % lc)
        A("s_waitcnt vmcnt(0)")
        cmpn(tagregs)
        A("s_wqm_b64 exec, vcc\ns_cbranch_scc1 %s" % lo)
        A("s_mov_b64 exec, -1")
    def bump(off):
        A("v_mov_b32 v12, 0\nv_mov_b32 v13, 1\ns_mov_b64 exec, 1\nds_add_u32 v12, v13 offset:%d\ns_mov_b64 exec, -1" % off)
    def await_lds(off, val, sleep):
        lo = newlabel("lw")
        A("v_mov_b32 v12, 0\ns_mov_b32 s62, 0\ns_branch %s_n\n%s:" % (lo, lo))
        if sleep: A("s_sleep %d" % sleep)
        A("%s_n:\nds_read_b32 v13, v12 offset:%d\ns_add_u32 s62, s62, 1\ns_cmp_gt_u32 s62, %d\ns_cbranch_scc1 L_bail" % (lo, off, spin * 8))
        A("s_waitcnt lgkmcnt(0)\nv_readfirstlane_b32 s63, v13\ns_cmp_lt_u32 s63, %d\ns_cbranch_scc1 %s" % (val, lo))
    def only_wave(w, skip): A("s_cmp_lg_u32 s3, %d\ns_cbranch_scc1 %s" % (w, skip))

    def srds2():
        A("s_mov_b32 s%d, s28\ns_mov_b32 s%d, s29\ns_mov_b32 s%d, %d\ns_mov_b32 s%d, 0x20000" % (sWS, sWS + 1, sWS + 2, 0x500000 if stamp else WS_USED, sWS + 3))
        A("s_mov_b32 s%d, s12\ns_mov_b32 s%d, s13\ns_mov_b32 s%d, 0x400000\ns_mov_b32 s%d, 0x20000" % (sWO, sWO + 1, sWO + 2, sWO + 3))
        A("s_mov_b32 s%d, s20\ns_mov_b32 s%d, s21\ns_mov_b32 s%d, 1835008\ns_mov_b32 s%d, 0x20000" % (sWD, sWD + 1, sWD + 2, sWD + 3))
    def tag():
        A("s_waitcnt lgkmcnt(0)")
        A("s_mul_i32 s%d, s%d, 0x9e3779b5\ns_add_u32 s%d, s%d, 0x7f4a7c15" % (sTAG, sTAG, sTAG, sTAG))
    def w2_prep():
        A("v_lshrrev_b32 v9, 3, v%d\nv_and_b32 v12, 7, v%d\nv_lshlrev_b32 v%d, 4, v12\nv_lshl_add_u32 v%d, v9, 10, v%d" % (vL, vL, vWO, vWO, vWO))
        A("v_cmp_gt_u32 s[68:69], 6, v9\nv_mov_b32 v13, 0x10000000\ns_mul_i32 s58, s%d, %d\ns_lshl_b32 s64, s3, 7\ns_add_u32 s58, s58, s64" % (sREST, 14 * 1024))
        A("v_cndmask_b32 v%d, v13, v%d, s[68:69]\ns_lshl_b32 s57, s%d, 15\ns_add_u32 s57, s57, s64" % (vWD2, vWO, sREST))
    def load_wo(a):
        A("buffer_load_dwordx4 v[%d:%d], v%d, s[%d:%d], s57 offen %s" % (WOR + 4 * a, WOR + 4 * a + 3, vWO, sWO, sWO + 3, w2pol))
        vm.issue("wo")
        if a < 3: A("s_add_u32 s57, s57, 8192")
    def load_wd(a):
        if a == 1: A("s_add_u32 s58, s58, 8192")
        A("buffer_load_dwordx4 v[%d:%d], v%d, s[%d:%d], s58 offen %s" % (WDR + 4 * a, WDR + 4 * a + 3, vWD2 if a else vWO, sWD, sWD + 3, w2pol)); vm.issue("wd")

    L.append((header or "") + "; @launch grid=(256,1,1) block=(512,1,1) lds=%d" % (LDS_END + lds_pad))
    if stamp: L.append("; stamps: " + " ".join(names))
    L.append('.amdgcn_target "amdgcn-amd-amdhsa--gfx950"\n.text\n.globl %s_kernel\n.p2align 8\n.type %s_kernel,@function\n%s_kernel:' % (NAME, NAME, NAME))
    A("s_cmp_ge_u32 s2, 256\ns_cbranch_scc1 L_end")
    A("s_load_dwordx16 s[4:19], s[0:1], 0\ns_load_dwordx8 s[20:27], s[0:1], 64\ns_load_dwordx2 s[28:29], s[0:1], 96")
    ST("start")
    A("v_lshrrev_b32 v9, 6, v0\nv_and_b32 v%d, 63, v0\nv_readfirstlane_b32 s3, v9" % vL)
    A("s_bfe_u32 s%d, s2, 0x10003" % sB)
    A("s_and_b32 s%d, s2, 7\ns_lshr_b32 s63, s2, 4\ns_lshl_b32 s63, s63, 3\ns_or_b32 s%d, s%d, s63" % (sREST, sREST, sREST))
    A("s_lshl_b32 s%d, s%d, 7\ns_add_u32 s%d, s%d, s%d" % (sSLOT, sB, sSLOT, sSLOT, sREST))
    A("v_lshrrev_b32 v10, 4, v%d\nv_and_b32 v11, 15, v%d\nv_lshlrev_b32 v%d, 4, v%d" % (vL, vL, vVO, vL))
    A("s_cmp_ge_u32 s3, 4\ns_cbranch_scc1 L_helper")

    if sprio: A("s_setprio %d" % sprio)
    A("v_lshlrev_b32 v12, 2, v10\nv_xor_b32 v12, v12, v11\nv_lshlrev_b32 v12, 4, v12\nv_lshl_add_u32 v%d, v10, 8, v12" % vKS)
    for i in range(1, 4): A("v_xor_b32 v%d, %d, v%d" % (vKS + i, 16 * i, vKS))
    A("s_lshl_b32 s%d, s3, 12\ns_mov_b32 s%d, s%d" % (sKO, sVO, sKO))
    A("s_lshl_b32 s65, s%d, 18" % sSLOT)
    A("s_mul_i32 s%d, s3, 12288\ns_add_u32 s%d, s%d, %d" % (sM0, sM0, sM0, LDS_K))
    A("s_movk_i32 s%d, 3584\ns_cmp_lt_u32 s%d, 64\ns_cselect_b32 s%d, 8192, s%d" % (sSTR, sREST, sSTR, sSTR))
    A("s_lshl_b32 s63, s%d, 4\nv_mul_u32_u24 v12, s63, v10\nv_lshl_add_u32 v12, v11, 3, v12" % sSTR)
    A("s_lshl_b32 s62, s%d, 2\ns_add_u32 s62, s62, s3\ns_lshl_b32 s62, s62, 6" % sB)
    A("v_bfe_u32 v13, v11, 2, 1\nv_lshlrev_b32 v13, 10, v13\nv_lshl_add_u32 v13, v10, 5, v13\ns_lshl_b32 s63, s62, 1\nv_add_u32 v13, s63, v13")
    A("s_mul_i32 s63, s62, s%d" % sSTR)
    A("s_sub_u32 s64, s%d, 64\ns_cmp_lt_u32 s%d, 64\ns_cselect_b32 s64, s%d, s64\ns_sub_u32 s62, s%d, 92\ns_cmp_ge_u32 s%d, 92\ns_cselect_b32 s64, s62, s64\ns_lshl_b32 s64, s64, 7" % (sREST, sREST, sREST, sREST, sREST))
    A("s_mul_i32 s%d, s%d, 511\ns_add_u32 s%d, s%d, 128\ns_mov_b32 s%d, 0x20000" % (sW + 2, sSTR, sW + 2, sW + 2, sW + 3))
    A("s_mov_b32 s%d, 0x40000\ns_mov_b32 s%d, 0x20000" % (sK + 2, sK + 3))
    A("s_waitcnt lgkmcnt(0)")
    A("s_add_u32 s%d, s6, s65\ns_addc_u32 s%d, s7, 0" % (sK, sK + 1))
    A("s_cmp_ge_u32 s%d, 120\ns_cbranch_scc1 L_noA1" % sREST)
    A("s_cmp_lt_u32 s%d, 64\ns_cselect_b32 s%d, s10, s16\ns_cselect_b32 s%d, s11, s17" % (sREST, sW, sW + 1))
    A("s_cmp_ge_u32 s%d, 92\ns_cselect_b32 s%d, s18, s%d\ns_cselect_b32 s%d, s19, s%d" % (sREST, sW, sW, sW + 1, sW + 1))
    A("s_add_u32 s%d, s%d, s64\ns_addc_u32 s%d, s%d, 0" % (sW, sW, sW + 1, sW + 1))
    A("global_load_dwordx4 v[64:67], v13, s[4:5]\nglobal_load_dwordx4 v[68:71], v13, s[4:5] offset:16")
    vm.issue("X", False); vm.issue("X", False)
    for q in range(16):
        pace(d0, 0.5)
        A("buffer_load_dwordx2 v[%d:%d], v12, s[%d:%d], s63 offen %s" % (32 + 2 * q, 33 + 2 * q, sW, sW + 3, wpol))
        vm.issue("W%d" % q, False, 0.5)
        if q < 15: A("s_add_u32 s63, s63, s%d" % sSTR)
    A("L_noA1:")
    slots = {}
    def at(i, f): slots.setdefault(i, []).append(f)
    def loadK(t, i):
        if i == 0:
            A("s_add_u32 s63, s%d, %d\ns_mov_b32 m0, s63" % (sM0, (t % 3) * 4096))
            A("s_waitcnt lgkmcnt(0)" if t >= 3 else "s_nop 0")
        A("buffer_load_dwordx4 v%d, s[%d:%d], s%d offen offset:%d %s lds" % (vKS + i, sK, sK + 3, sKO, 1024 * i, kpol))
        vm.issue("K%d" % t)
        if i == 3 and t < 15: A("s_add_u32 s%d, s%d, %d" % (sKO, sKO, tstep))
    def readK(t):
        wait("K%d" % t)
        for i in range(4):
            A("ds_read_b128 v[%d:%d], v%d offset:%d" % (Kreg(t) + 4 * i, Kreg(t) + 4 * i + 3, vKR + i, (t % 3) * 4096))
    def loadV(t, i):
        A("buffer_load_dwordx4 v[%d:%d], v%d, s[%d:%d], s%d offen offset:%d %s" % (Vreg(t) + 4 * i, Vreg(t) + 4 * i + 3, vVO, sV, sV + 3, sVO, 1024 * i, pol))
        vm.issue("V%d.%d" % (t, i))
        if i == 3 and t < 15: A("s_add_u32 s%d, s%d, %d" % (sVO, sVO, tstep))
    def setup2():
        A("s_load_dword s%d, s[28:29], %d" % (sTAG, WS_EPOCH))
        A("s_barrier")
        A("s_add_u32 s%d, s8, s65\ns_addc_u32 s%d, s9, 0\ns_mov_b32 s%d, 0x40000\ns_mov_b32 s%d, 0x20000" % (sV, sV + 1, sV + 2, sV + 3))
        A("v_and_b32 v9, 1, v%d\nv_cmp_eq_u32 vcc, 1, v9\nv_mov_b32 v12, 0x0c0c0100\nv_mov_b32 v9, 0x01000c0c\nv_mov_b32 v13, 0x0c0c0302\nv_mov_b32 v15, 0x03020c0c" % vL)
        A("v_cndmask_b32 v12, v12, v9, vcc\nv_cndmask_b32 v13, v13, v15, vcc")
        A("v_and_b32 v9, 2, v%d\nv_cmp_eq_u32 vcc, 2, v9\nv_mov_b32 v15, 0x0c0c0c0c\ns_nop 0" % vL)
        A("v_cndmask_b32 v%d, v12, v15, vcc\nv_cndmask_b32 v%d, v15, v12, vcc\nv_cndmask_b32 v%d, v13, v15, vcc\nv_cndmask_b32 v%d, v15, v13, vcc" % (vSP, vSP + 1, vSP + 2, vSP + 3))
        A("v_and_b32 v12, 3, v11\nv_lshlrev_b32 v12, 10, v12\nv_lshrrev_b32 v13, 2, v11\nv_lshl_add_u32 v12, v13, 8, v12\nv_xor_b32 v13, v10, v11\nv_lshl_add_u32 v12, v13, 4, v12\nv_add_u32 v%d, s%d, v12" % (vKR, sM0))
        for i in range(1, 4): A("v_xor_b32 v%d, %d, v%d" % (vKR + i, 64 * i, vKR))
        if dodd: A("s_getreg_b32 s63, hwreg(HW_REG_XCC_ID, 0, 1)\ns_cmp_eq_u32 s63, 1\ns_cselect_b64 vcc, -1, 0")
    def phaseA(half):
        def f():
            l1 = newlabel("skipA")
            A("s_cmp_ge_u32 s%d, 120\ns_cbranch_scc1 %s" % (sREST, l1))
            A("s_waitcnt vmcnt(%d)" % (vm.after("W15") + (8 if half == 0 else 0)))
            for u in range(8 * half, 8 * half + 8):
                for j2 in range(2):
                    A("v_perm_b32 v%d, v%d, v%d, v%d" % (96 + 2 * (u & 7) + j2, 64 + (u >> 1), 64 + (u >> 1), vSP + 2 * (u & 1) + j2))
            for u in range(8 * half, 8 * half + 8):
                A("v_mfma_f32_16x16x16_bf16 v[72:75], v[%d:%d], v[%d:%d], %s" % (96 + 2 * (u & 7), 97 + 2 * (u & 7), 32 + 2 * u, 33 + 2 * u, "0" if u == 0 else "v[72:75]"))
            if half == 1:
                ST("W")
                A("s_lshl_b32 s63, s3, 10\nv_add_u32 v9, s63, v%d\ns_nop 6" % vVO)
                A("ds_write_b128 v9, v[72:75] offset:%d" % LDS_A)
                bump(LDS_C)
            A("%s:" % l1)
        return f
    def progress(val):
        def f():
            l1 = newlabel("pg")
            only_wave(0, l1)
            A("v_mov_b32 v12, 0\nv_mov_b32 v13, %d\nds_write_b32 v12, v13 offset:%d" % (val, LDS_C + 12))
            A("%s:" % l1)
        return f
    def q_wait():
        ST("qw")
        A("v_lshrrev_b32 v9, 2, v11\nv_lshlrev_b32 v9, 8, v9\nv_lshl_add_u32 v9, v10, 4, v9")
        await_lds(LDS_C + 8, 4, 0)
        for i in range(4):
            A("ds_read_b128 v[%d:%d], v9 offset:%d" % (Q0 + 4 * i, Q0 + 4 * i + 3, LDS_Q + 64 * i))
    def qk(ts):
        def f():
            A("s_waitcnt lgkmcnt(0)")
            for t in ts:
                for i in range(4):
                    A("v_mfma_f32_16x16x32_bf16 v[%d:%d], v[%d:%d], v[%d:%d], %s" % (S0 + 4 * t, S0 + 4 * t + 3, Kreg(t) + 4 * i, Kreg(t) + 4 * i + 3, Q0 + 4 * i, Q0 + 4 * i + 3,
                      "0" if i == 0 else "v[%d:%d]" % (S0 + 4 * t, S0 + 4 * t + 3)))
        return f
    def smax():
        A("v_max3_f32 v9, v32, v33, v34\nv_max3_f32 v14, v35, v36, v37")
        rs = list(range(38, 96))
        for k in range(0, len(rs), 2): A("v_max3_f32 v%d, v%d, v%d, v%d" % ((9, 14)[(k >> 1) & 1], (9, 14)[(k >> 1) & 1], rs[k], rs[k + 1]))
        A("v_max_f32 v9, v9, v14")
        A("s_mov_b32 s65, 0x%08x" % f2u(128 ** -0.5 * LOG2E))
        xrows("v_max_f32", 9, 12)
        A("v_mul_f32 v9, s65, v9")
    def sexp(lo, hi):
        def f():
            for r in range(lo, hi): A("v_fma_f32 v%d, v%d, s65, -v9" % (r, r))
            for r in range(lo, hi): A("v_exp_f32 v%d, v%d" % (r, r))
            if hi == 96: ST("exp")
        return f
    def ssum(lo, hi):
        def f():
            for r in range(lo, hi, 2):
                if r == 32: A("v_mov_b32 v14, v32\nv_mov_b32 v15, v33")
                else: A("v_pk_add_f32 v[14:15], v[14:15], v[%d:%d]" % (r, r + 1))
            for r in range(lo, hi, 2): A("v_cvt_pk_bf16_f32 v%d, v%d, v%d" % (32 + (r - 32) // 2, r, r + 1))
            if hi == 96:
                A("v_add_f32 v15, v15, v14")
                xrows("v_add_f32", 15, 14)
                A("v_lshrrev_b32 v14, 2, v11\nv_lshlrev_b32 v14, 4, v14\ns_lshl_b32 s63, s3, 2\nv_add_u32 v14, s63, v14")
                A("ds_write_b32 v14, v9 offset:%d\nds_write_b32 v14, v15 offset:%d" % (LDS_M, LDS_L))
                bump(LDS_C + 4)
        return f
    def expand(t):
        for r in range(4):
            for j2 in range(2):
                A("v_perm_b32 v%d, v%d, v%d, v%d" % (AX0 + 2 * r + j2, 32 + 2 * t + (r >> 1), 32 + 2 * t + (r >> 1), vSP + 2 * (r & 1) + j2))
    def pvm(t, r):
        for hf in range(2):
            A("v_mfma_f32_16x16x16_bf16 v[%d:%d], v[%d:%d], v[%d:%d], %s" % (O0 + 4 * hf, O0 + 4 * hf + 3, AX0 + 2 * r, AX0 + 2 * r + 1,
              Vreg(t) + 4 * r + 2 * hf, Vreg(t) + 4 * r + 2 * hf + 1, "0" if (t == 0 and r == 0) else "v[%d:%d]" % (O0 + 4 * hf, O0 + 4 * hf + 3)))
    def pv(t):
        def f():
            expand(t); wait("V%d.3" % t)
            for r in range(4): pvm(t, r)
        return f
    def s_prep():
        srds2(); tag(); w2_prep()
        A("v_lshlrev_b32 v10, 4, v%d\ns_mul_i32 s63, s3, %d\nv_add_u32 v10, s63, v10" % (vL, WVS))
        A("v_mov_b32 v15, 0\ns_mov_b32 s60, 1")
        A("v_mov_b32 v%d, s%d\nv_mov_b32 v%d, s%d" % (PUB + 1, sTAG, PUB + 3, sTAG))
    dm = max(dpat) if dpat else d
    if adapt or p0 is not None or par: dm = max(dm, db)
    if dodd: dm = max(dm, max(dodd))
    dmv = max(dm, dend[1]) if dend else dm
    assert 4 <= dm <= 8
    at(0, setup2)
    at(1, phaseA(0)); at(min(dm, 6), phaseA(1))
    assert min(dm, 6) < 3 + dm
    for t in range(16): at(4 * t + 3 + dm, lambda t=t: readK(t))
    for p in sorted(set([p1, p2, pe] + ([pt] if touch else []) + (adapt or []) + ([p0] if p0 is not None else []))): at(p, progress(p))
    if p0 is not None or par:
        if p0 is not None:
            at(pm - 1, lambda: A("v_mov_b32 v2, 0\nds_read_b32 v0, v2 offset:%d" % (LDS_C + 16)))
            at(pm, lambda: A("s_waitcnt lgkmcnt(0)"))
        else: at(pm, lambda: A("v_mov_b32 v0, 0"))
        if par: at(pm, lambda: A("s_getreg_b32 s63, hwreg(HW_REG_XCC_ID, 0, 1)\ns_mul_i32 s63, s63, %d\ns_getreg_b32 s64, hwreg(HW_REG_XCC_ID, 2, 1)\ns_mul_i32 s64, s64, %d\ns_add_u32 s63, s63, s64\ns_add_u32 s63, s63, %d\nv_add_u32 v0, s63, v0" % (par, plate, pbase0)))
        if stamp: at(pm, lambda: A("s_nop 0\nv_readfirstlane_b32 s71, v0"))
        for j, p in enumerate(range(pm, pend, win)):
            at(p, lambda j=j: A("v_cmp_le_u32 vcc, %d, v0" % thr[j % len(thr)]))
        at(pend, lambda: A("s_mov_b64 vcc, 0"))
    if adapt:
        a0 = adapt[0] + win
        at(a0 - 1, lambda: A("s_mov_b64 vcc, 0"))
        for j, p in enumerate(range(a0, 126, win)):
            at(p, lambda: A("v_mov_b32 v2, 0\nds_read_b32 v0, v2 offset:%d" % (LDS_C + 16)))
            at(p + 1, lambda j=j: A("s_waitcnt lgkmcnt(0)\nv_and_b32 v0, %d, v0\nv_cmp_ne_u32 vcc, 0, v0" % (1 << (j % 8))))
    at(qk_at - 1, q_wait)
    t = 0; s = qk_at
    while t < 16:
        ts = [u for u in (t, t + 1) if u < 16 and 4 * u + 3 + dm < s and (u < 14 or s >= 64)]
        if ts:
            assert all(s < 4 * (u + 10) + 3 + dm for u in ts)
            at(s, qk(ts)); t += len(ts); slast = s
        s += 1
    at(slast + 1, smax)
    for k in range(4): at(slast + 2 + k, sexp(32 + 16 * k, 48 + 16 * k))
    at(slast + 6, ssum(32, 64)); at(slast + 7, ssum(64, 96))
    nxt = slast + 8; late = []
    for t in range(15):
        nxt = max(nxt, 67 + 4 * t + dmv)
        if nxt <= 127: at(nxt, pv(t))
        else: late.append(t)
        assert t + 10 > 15 or nxt < 64 + 4 * (t + 10)
        nxt += 1
    at(113, s_prep)
    if stamp:
        at(16, lambda: ST("pubA")); at(96, lambda: ST("pubML")); at(112, lambda: ST("yg")); at(56, lambda: ST("q"))
    for i in range(128):
        if adapt and i == adapt[0] + win: amode[0] = True
        if (p0 is not None or par) and i == pm + 1: amode[0] = True
        if dodd and i == 0: pace(d0)
        elif dend and i >= dend[0]: pace(dend[1])
        else: pace()
        if i < 64: loadK(i >> 2, i & 3)
        else: loadV((i - 64) >> 2, i & 3)
        for f in slots.get(i, []): f()
    amode[0] = False
    for t in late: pv(t)()
    expand(15)
    for r in range(4):
        wait("V15.%d" % r)
        if r == 3: ST("V7")
        pvm(15, r)
    A("s_nop 6")
    A("ds_write_b128 v10, v[16:19] offset:%d\nds_write_b128 v10, v[20:23] offset:%d" % (LDS_O, LDS_O + HFS))
    A("s_waitcnt lgkmcnt(0)\ns_barrier")
    ST("B5")
    if ssl: A("s_sleep %d" % ssl)
    opl = "buffer_load_dwordx4 v[%d:%d], v15, %s, s100 offen %s" % (T, T + 3, WS, ldpol)
    A("s_branch L_join")

    A("L_helper:")
    A("v_mov_b32 v12, 0\nv_mov_b32 v13, 0\nv_mov_b32 v14, 0\nv_mov_b32 v15, 0\nds_write_b128 v12, v[12:15] offset:%d\nds_write_b32 v12, v12 offset:%d" % (LDS_C, LDS_C + 16))
    A("s_waitcnt lgkmcnt(0)")
    A("s_load_dword s%d, s[28:29], %d" % (sTAG, WS_EPOCH))
    A("s_barrier")
    srds2()
    only_wave(5, "L_nox")
    A("s_lshl_b32 s63, s%d, 10\nv_add_u32 v9, s63, v%d" % (sB, vVO))
    A("global_load_dwordx4 v[32:35], v9, s[4:5]\nglobal_load_dwordx4 v[36:39], v%d, s[22:23]" % vVO)
    if tearly:
        A("s_lshl_b32 s63, s%d, 7\ns_add_u32 s63, s63, %d\nv_mov_b32 v12, 0\nbuffer_load_dword v44, v12, %s, s63 offen %s" % (sSLOT, WS_ML, WS, tpol))
    A("s_waitcnt vmcnt(0)")
    A("v_dot2_f32_bf16 v%d, v32, v36, 0" % vG)
    for i in range(1, 4): A("v_dot2_f32_bf16 v%d, v%d, v%d, v%d" % (vG, 32 + i, 36 + i, vG))
    A("s_nop 2")
    for c in ("quad_perm:[1,0,3,2]", "quad_perm:[2,3,0,1]", "row_half_mirror", "row_mirror"):
        dpp("v_add_f32", vG, vG, vG, c); A("s_nop 1")
    xrows("v_add_f32", vG, 9)
    A("v_mul_f32 v%d, 0x%08x, v%d\nv_exp_f32 v%d, v%d\ns_nop 0\nv_add_f32 v%d, 1.0, v%d\nv_rcp_f32 v%d, v%d" % (vG, f2u(-LOG2E), vG, vG, vG, vG, vG, vG, vG))
    A("L_nox:")
    tag()
    only_wave(4, "L_noA2")
    A("s_cmp_ge_u32 s%d, 120\ns_cbranch_scc1 L_noA2" % sREST)
    if pub4:
        A("v_and_b32 v14, 31, v%d\nv_lshlrev_b32 v9, 4, v14\nv_lshrrev_b32 v15, 5, v%d\nv_lshl_add_u32 v9, v15, 3, v9" % (vL, vL))
        A("v_lshrrev_b32 v14, 4, v14\nv_mul_u32_u24 v14, %d, v14\nv_add_u32 v14, v14, v%d" % (30720 - 256, vVO))
    else:
        A("v_lshlrev_b32 v9, 3, v%d\nv_lshrrev_b32 v14, 5, v%d\nv_mul_u32_u24 v14, %d, v14\nv_add_u32 v14, v14, v9" % (vL, vL, 30720 - 256))
    A("s_mul_i32 s64, s%d, 61440\ns_lshl_b32 s65, s%d, 8\ns_add_u32 s64, s64, s65\ns_add_u32 s64, s64, %d" % (sB, sREST, WS_QG))
    if tearly:
        A("s_mov_b32 exec_hi, 0\nbuffer_load_dwordx4 v[44:47], v14, %s, s64 offen %s\ns_mov_b32 exec_hi, -1" % (WS, tpol))
    await_lds(LDS_C, 4, 1)
    for w in range(4):
        A("ds_read_b64 v[%d:%d], v9 offset:%d" % (32 + 2 * w, 33 + 2 * w, LDS_A + 1024 * w))
    A("s_waitcnt lgkmcnt(0)\nv_pk_add_f32 v[32:33], v[32:33], v[34:35]\nv_pk_add_f32 v[36:37], v[36:37], v[38:39]\nv_pk_add_f32 v[32:33], v[32:33], v[36:37]")
    if pub4:
        A("v_cvt_pk_bf16_f32 v36, v32, v33\nv_cvt_pk_bf16_f32 v38, v32, v33\nv_mov_b32 v37, s%d\nv_mov_b32 v39, s%d\nv_permlane32_swap_b32 v36, v38\ns_mov_b32 exec_hi, 0" % (sTAG, sTAG))
        A("buffer_store_dwordx4 v[36:39], v14, %s, s64 offen %s\ns_mov_b32 exec_hi, -1" % (WS, stpol))
    else:
        A("v_cvt_pk_bf16_f32 v32, v32, v33\nv_mov_b32 v33, s%d" % sTAG)
        A("buffer_store_dwordx2 v[32:33], v14, %s, s64 offen %s" % (WS, stpol))
    A("L_noA2:")
    ST("pubA")
    def adapt_cps(cs, setup=False):
        l1 = newlabel("noad")
        if setup:
            nrow = npeer // 8; span = 32 // nrow
            A("s_lshr_b32 s64, s2, 3\ns_and_b32 s60, s64, %d\ns_mul_i32 s60, s60, %d\ns_lshr_b32 s64, s64, %d\ns_lshl_b32 s64, s64, 3\ns_and_b32 s63, s2, 7\ns_add_u32 s64, s64, s63\ns_add_u32 s64, s64, s60" % (span - 1, npeer, span.bit_length() - 1))
            A("s_lshl_b32 s64, s64, %d\ns_add_u32 s66, s64, %d\ns_lshl_b32 s60, s60, %d\ns_add_u32 s60, s60, %d" % (mkstr, WS_MK, mkstr, WS_MK))
            A("v_and_b32 v50, %d, v%d\nv_lshlrev_b32 v50, %d, v50\nv_mov_b32 v51, 0\nv_mov_b32 v52, s%d" % (npeer - 1, vL, mkstr, sTAG))
            if stamp: A("s_mov_b32 s71, 0")
        only_wave(aw, l1)
        for c in cs:
            await_lds(LDS_C + 12, adapt[c], 1)
            A("s_mov_b64 exec, 1\nbuffer_store_dword v52, v51, %s, s66 offen %s\ns_mov_b64 exec, -1" % (WS, stpol))
            if adelay: A("s_waitcnt vmcnt(0)")
            A("buffer_load_dword v53, v50, %s, s60 offen %s" % (WS, ldpol))
            A("s_add_u32 s66, s66, 32768\ns_add_u32 s60, s60, 32768\ns_waitcnt vmcnt(0)")
            A("v_cmp_eq_u32 vcc, s%d, v53\ns_bcnt1_i32_b64 s63, vcc\ns_mov_b32 s61, 0" % sTAG)
            for thr, m in alev:
                A("s_cmp_ge_u32 s63, %d\ns_cselect_b32 s61, %d, s61" % (thr, m))
            A("v_mov_b32 v53, s61\nds_write_b32 v51, v53 offset:%d" % (LDS_C + 16))
            if stamp: A("s_min_u32 s63, s63, 63\ns_lshl_b32 s63, s63, %d\ns_or_b32 s71, s71, s63" % (6 * c))
        A("%s:" % l1)
    if adapt: adapt_cps([c for c, cp in enumerate(adapt) if cp < p1], True)
    A("v_lshrrev_b32 v40, 5, v%d\nv_mul_u32_u24 v40, %d, v40\nv_add_u32 v40, v40, v%d" % (vL, 61440 - 512, vVO))
    A("s_mul_i32 s98, s%d, 30720\ns_lshr_b32 s64, s%d, 4\ns_lshl_b32 s64, s64, 11\ns_add_u32 s98, s98, s64\ns_and_b32 s65, s3, 3\ns_lshl_b32 s64, s65, 9\ns_add_u32 s98, s98, s64\ns_add_u32 s98, s98, %d" % (sB, sREST, WS_QG))
    qld = "buffer_load_dwordx4 v[32:35], v40, %s, s98 offen %s" % (WS, ldpol)
    if p0 is None:
        await_lds(LDS_C + 12, p1, nap)
        poll([qld], [33, 35], 4)
    else:
        await_lds(LDS_C + 12, p0, 1)
        A(qld + "\ns_waitcnt vmcnt(0)")
        cmpn([33, 35])
        A("s_wqm_b64 s[60:61], vcc\ns_bcnt0_i32_b64 s63, s[60:61]\nv_mov_b32 v12, 0\nv_mov_b32 v13, s63\ns_mov_b64 exec, 1\nds_add_u32 v12, v13 offset:%d\ns_mov_b64 exec, -1" % (LDS_C + 16))
        A("s_cmp_eq_u32 s63, 64\ns_cbranch_scc1 L_qok")
        await_lds(LDS_C + 12, p1, nap)
        A("s_mov_b64 exec, s[60:61]")
        poll([qld], [33, 35], 4)
        A("L_qok:")
    A("v_mov_b32 v36, v32\nv_mov_b32 v37, v34\ns_lshl_b32 s63, s65, 8\ns_add_u32 s63, s63, %d\nv_permlane32_swap_b32 v36, v32\nv_permlane32_swap_b32 v37, v34" % LDS_Q)
    for a, b in ((36, 32), (37, 34)):
        A("v_lshlrev_b32 v12, 16, v%d\nv_lshlrev_b32 v13, 16, v%d\nv_and_b32 v14, 0xffff0000, v%d\nv_and_b32 v15, 0xffff0000, v%d" % (a, b, a, b))
        A("v_add_f32 v12, v12, v13\nv_add_f32 v14, v14, v15\nv_cvt_pk_bf16_f32 v%d, v12, v14" % a)
    A("v_and_b32 v9, 31, v%d\nv_lshl_add_u32 v9, v9, 3, s63" % vL)
    A("ds_write2_b32 v9, v36, v37 offset0:0 offset1:1")
    bump(LDS_C + 8)
    only_wave(5, "L_noside")
    A("v_min_u32 v40, 13, v11\nv_lshrrev_b32 v40, 1, v40\nv_lshlrev_b32 v40, 3, v40")
    A("s_mul_i32 s63, s%d, 7\ns_mul_i32 s64, s%d, 3840\ns_add_u32 s63, s63, s64\ns_lshl_b32 s63, s63, 3\ns_add_u32 s63, s63, %d" % (sREST, sB, WS_QG + 2048 * 8))
    A("v_and_b32 v41, 1, v10\nv_mul_u32_u24 v41, 61440, v41\nv_lshrrev_b32 v42, 1, v10\nv_mul_u32_u24 v42, %d, v42\nv_add3_u32 v40, v40, v41, v42\nv_add_u32 v40, s63, v40" % (896 * 8))
    poll(["buffer_load_dwordx2 v[32:33], v40, %s, 0 offen %s" % (WS, ldpol)], [33], 4)
    A("v_and_b32 v34, 1, v%d\nv_cmp_eq_u32 vcc, 1, v34\nv_lshlrev_b32 v34, 16, v32\nv_and_b32 v35, 0xffff0000, v32" % vL)
    A("v_cndmask_b32 v34, v34, v35, vcc\nv_cmp_gt_u32 vcc, 14, v11\nv_mov_b32 v35, v34\ns_nop 1\nv_permlane16_swap_b32 v35, v34\nv_add_f32 v34, v34, v35")
    A("v_mov_b32 v36, v34\ns_nop 1\nv_permlane32_swap_b32 v34, v36")
    A("v_mul_f32 v34, 0x%08x, v34\nv_exp_f32 v34, v34\nv_sub_f32 v37, 1.0, v%d\nv_add_f32 v34, 1.0, v34\nv_rcp_f32 v34, v34\nv_mul_f32 v36, v36, v37" % (f2u(-LOG2E), vG))
    A("v_mul_f32 v34, v34, v36\nv_cndmask_b32 v34, 0, v34, vcc")
    A("v_and_b32 v35, 7, v11\nv_lshlrev_b32 v35, 3, v35\nv_lshrrev_b32 v36, 3, v11\nv_lshl_add_u32 v35, v36, 2, v35")
    A("ds_write_b32 v35, v34 offset:%d" % LDS_H)
    A("v_and_b32 v40, 3, v%d\nv_lshlrev_b32 v40, 4, v40\nv_bfe_u32 v41, v%d, 2, 1\nv_lshl_add_u32 v41, v41, 6, v40" % (vL, vL))
    A("s_lshl_b32 s64, s%d, 7\ns_add_u32 s64, s64, %d\nv_mov_b32 v45, s%d\nv_mov_b32 v47, s%d" % (sSLOT, WS_ML, sTAG, sTAG))
    await_lds(LDS_C + 4, 4, nap)
    A("ds_read_b128 v[32:35], v40 offset:%d\nds_read_b128 v[36:39], v40 offset:%d" % (LDS_M, LDS_L))
    A("v_and_b32 v42, 12, v%d\nv_add_u32 v42, v42, v40\nds_read_b32 v43, v42 offset:%d" % (vL, LDS_M))
    A("s_waitcnt lgkmcnt(0)\nv_max3_f32 v44, v32, v33, v34\nv_max_f32 v44, v44, v35")
    for w in range(4): A("v_sub_f32 v%d, v%d, v44" % (32 + w, 32 + w))
    for w in range(4): A("v_exp_f32 v%d, v%d" % (32 + w, 32 + w))
    A("v_mul_f32 v46, v32, v36")
    for w in range(1, 4): A("v_fmac_f32 v46, v%d, v%d" % (32 + w, 36 + w))
    A("s_mov_b64 exec, 0xff")
    A("buffer_store_dwordx4 v[44:47], v41, %s, s64 offen %s" % (WS, stpol))
    A("s_mov_b64 exec, -1")
    ST("pubML")
    A("s_and_b32 s64, s%d, 0xf0\ns_lshl_b32 s64, s64, 7\ns_add_u32 s64, s64, %d" % (sSLOT, WS_ML))
    A("v_lshrrev_b32 v41, 2, v%d\nv_lshl_add_u32 v41, v41, 7, v40" % vL)
    await_lds(LDS_C + 12, p2, nap)
    poll(["buffer_load_dwordx4 v[32:35], v41, %s, s64 offen %s" % (WS, ldpol)], [33, 35], 4)
    A("v_mov_b32 v36, v32\ns_nop 1")
    for c in ("row_ror:4", "row_ror:8"):
        dpp("v_max_f32", 36, 36, 36, c); A("s_nop 1")
    xrows("v_max_f32", 36, 37)
    A("v_sub_f32 v37, v32, v36\nv_exp_f32 v37, v37\ns_nop 0\nv_mul_f32 v37, v37, v34\ns_nop 1")
    for c in ("row_ror:4", "row_ror:8"):
        dpp("v_add_f32", 37, 37, 37, c); A("s_nop 1")
    xrows("v_add_f32", 37, 38)
    A("v_sub_f32 v43, v43, v36\nv_rcp_f32 v37, v37\nv_exp_f32 v43, v43\nv_mul_f32 v37, v37, v%d\nv_mul_f32 v43, v43, v37" % vG)
    A("ds_write_b32 v42, v43 offset:%d" % LDS_F)
    A("L_noside:")
    if adapt: adapt_cps([c for c, cp in enumerate(adapt) if cp >= p1])
    A("s_cmp_lg_u32 s2, 255\ns_cbranch_scc1 L_noep")
    only_wave(7, "L_noep")
    A("v_lshlrev_b32 v48, 9, v%d\ns_mov_b32 s64, %d" % (vL, WS_ML))
    await_lds(LDS_C + 12, pe, nap)
    poll(["buffer_load_dwordx4 v[%d:%d], v48, %s, s64 offen offset:%d %s" % (32 + 4 * a, 35 + 4 * a, WS, 128 * a, ldpol) for a in range(4)], [33 + 2 * a for a in range(8)], 8)
    A("v_mov_b32 v48, %d\nv_mov_b32 v49, s%d\ns_mov_b64 exec, 1" % (WS_EPOCH, sTAG))
    A("buffer_store_dword v49, v48, %s, 0 offen %s" % (WS, stpol))
    A("s_mov_b64 exec, -1")
    A("L_noep:")
    w2_prep()
    A("v_lshrrev_b32 v11, 1, v%d\nv_lshlrev_b32 v11, 4, v11\nv_and_b32 v13, 1, v%d\nv_mul_u32_u24 v13, %d, v13" % (vL, vL, HFS))
    A("s_and_b32 s65, s3, 1\ns_lshl_b32 s63, s65, 9\nv_add3_u32 v11, v11, v13, s63")
    A("v_lshrrev_b32 v14, 5, v%d\nv_lshlrev_b32 v14, 4, v14\ns_lshl_b32 s63, s65, 5\nv_add_u32 v14, s63, v14" % vL)
    A("s_lshl_b32 s99, s%d, 11\ns_lshl_b32 s63, s65, 10\ns_add_u32 s99, s99, s63\ns_add_u32 s99, s99, %d" % (sSLOT, WS_OP))
    A("v_lshlrev_b32 v15, 11, v9\nv_lshl_add_u32 v15, v12, 4, v15")
    A("s_and_b32 s100, s%d, 0xf0\ns_lshl_b32 s63, s65, 3\ns_add_u32 s100, s100, s63\ns_lshl_b32 s100, s100, 11\ns_and_b32 s63, s%d, 15\ns_lshl_b32 s63, s63, 7\ns_add_u32 s100, s100, s63\ns_add_u32 s100, s100, %d" % (sSLOT, sREST, WS_OP))
    A("v_mov_b32 v%d, s%d\nv_mov_b32 v%d, s%d" % (PUB + 1, sTAG, PUB + 3, sTAG))
    if touch:
        await_lds(LDS_C + 12, pt, nap)
        if touch & 1:
            A("s_cmp_ge_u32 s3, 6\ns_cbranch_scc0 L_t1")
            A(opl)
            A("L_t1:")
        if touch & 4:
            A("s_xor_b32 s63, s%d, %d\ns_lshl_b32 s63, s63, 11\ns_and_b32 s64, s3, 1\ns_lshl_b32 s64, s64, 10\ns_add_u32 s63, s63, s64\ns_add_u32 s63, s63, %d" % (sSLOT, tx, WS_OP))
            A("s_and_b32 s64, s3, 2\ns_mul_i32 s64, s64, %d\ns_add_u32 s63, s63, s64" % ((WS_YP - WS_OP) // 2))
            A("buffer_load_dwordx4 v[%d:%d], v%d, %s, s63 offen %s" % (T + 20, T + 23, vVO, WS, tpol))
        if tout:
            A("s_cmp_lt_u32 s%d, 96\ns_cbranch_scc1 L_t3\ns_lshl_b32 s63, s%d, 10\ns_sub_u32 s64, s%d, 96\ns_lshr_b32 s64, s64, 2\ns_lshl_b32 s64, s64, 7\ns_add_u32 s63, s63, s64\nv_mov_b32 v12, s63" % (sREST, sB, sREST))
            only_wave(4, "L_t3")
            A("global_load_dword v%d, v12, s[24:25]\nL_t3:" % (T + 21))
        if touch & 2:
            A("s_cmp_lt_u32 s%d, 96\ns_cbranch_scc1 L_t2" % sREST)
            A("v_lshrrev_b32 v12, 2, v%d\nv_lshlrev_b32 v12, 11, v12\nv_and_b32 v13, 3, v%d\nv_lshl_add_u32 v12, v13, 4, v12" % (vL, vL))
            A("s_lshl_b32 s64, s%d, 7\ns_and_b32 s63, s3, 3\ns_lshl_b32 s63, s63, 5\ns_add_u32 s64, s64, s63\ns_lshl_b32 s64, s64, 11\ns_sub_u32 s63, s%d, 96\ns_lshl_b32 s63, s63, 6\ns_add_u32 s64, s64, s63\ns_add_u32 s64, s64, %d\ns_add_u32 s63, s64, 32768" % (sB, sREST, WS_YP))
            A("buffer_load_dwordx4 v[%d:%d], v12, %s, s64 offen %s\nbuffer_load_dwordx4 v[%d:%d], v12, %s, s63 offen %s" % (T + 20, T + 23, WS, ldpol, T + 20, T + 23, WS, ldpol))
            A("L_t2:")
    A("s_cmp_ge_u32 s3, 6\ns_cselect_b32 s60, %d, %d" % (0 if preG else 1, 0 if preP else 1))
    if preG or preP:
        A("s_cmp_eq_u32 s60, 1\ns_cbranch_scc1 L_nopre")
        await_lds(LDS_C + 12, pe, nap)
        load_wd(0); load_wd(1)
        for a in range(4): load_wo(a)
        A("L_nopre:")
    A("s_waitcnt lgkmcnt(0)\ns_barrier")
    ST("B5")
    x = lambda k: T + k
    A("s_cmp_ge_u32 s3, 6\ns_cbranch_scc0 L_pub")
    A(opl)
    A("s_branch L_join\nL_pub:")
    A("ds_read_b128 v[%d:%d], v14 offset:%d" % (x(16), x(19), LDS_F))
    for w in range(4):
        A("ds_read_b128 v[%d:%d], v11 offset:%d" % (x(4 * w), x(4 * w + 3), LDS_O + w * WVS))
    for w in range(4):
        A("s_waitcnt lgkmcnt(%d)" % (3 - w))
        for j in (0, 2):
            sel = "op_sel:[0,%d,0] op_sel_hi:[1,%d,1]" % (w & 1, w & 1)
            if w == 0: A("v_pk_mul_f32 v[%d:%d], v[%d:%d], v[%d:%d] op_sel:[0,0] op_sel_hi:[1,0]" % (x(j), x(j + 1), x(j), x(j + 1), x(16), x(17)))
            else: A("v_pk_fma_f32 v[%d:%d], v[%d:%d], v[%d:%d], v[%d:%d] %s" % (x(j), x(j + 1), x(4 * w + j), x(4 * w + j + 1), x(16 + (w & 2)), x(17 + (w & 2)), x(j), x(j + 1), sel))
    A("v_cvt_pk_bf16_f32 v%d, v%d, v%d\nv_cvt_pk_bf16_f32 v%d, v%d, v%d" % (PUB, x(0), x(1), PUB + 2, x(2), x(3)))
    A("buffer_store_dwordx4 v[%d:%d], v%d, %s, s99 offen %s" % (PUB, PUB + 3, vVO, WS, stpol))

    A("L_join:")
    ST("pubO")
    if b5b: A("s_barrier")
    A("s_cmp_eq_u32 s60, 0\ns_cbranch_scc1 L_nopost")
    load_wd(0); load_wd(1)
    for a in range(4): load_wo(a)
    A("L_nopost:")
    A("v_lshlrev_b32 v13, 3, v9\nds_read_b64 v[%d:%d], v13 offset:%d" % (vHH, vHH + 1, LDS_H))
    A("v_lshlrev_b32 v13, 4, v9")
    A("v_and_b32 v12, 7, v%d\nv_lshrrev_b32 v80, 4, v%d" % (vL, vL))
    A("v_lshlrev_b32 v14, 4, v12\nv_lshrrev_b32 v81, 1, v80\nv_lshl_add_u32 v14, v81, 7, v14")
    A("s_lshl_b32 s99, s%d, 11\ns_lshl_b32 s63, s3, 8\ns_add_u32 s99, s99, s63\ns_add_u32 s99, s99, %d" % (sSLOT, WS_YP))
    A("v_and_b32 v11, 1, v12\nv_lshlrev_b32 v11, 6, v11\nv_lshl_add_u32 v11, v80, 4, v11\nv_lshrrev_b32 v12, 1, v12\nv_lshl_add_u32 v11, v12, 2, v11\ns_and_b32 s63, s3, 1\ns_lshl_b32 s63, s63, 7\nv_add_u32 v11, s63, v11")
    A("s_waitcnt vmcnt(4)\ns_cmp_eq_u32 s60, 1\ns_cbranch_scc1 L_wd\ns_waitcnt vmcnt(1)\nL_wd:")
    A("s_waitcnt lgkmcnt(0)")
    for a in range(2):
        for j in range(4):
            A("v_lshlrev_b32 v80, 16, v%d\nv_and_b32 v81, 0xffff0000, v%d" % (WDR + 4 * a + j, WDR + 4 * a + j))
            op = "v_mul_f32" if a == 0 else "v_fmac_f32"
            A("%s v%d, v%d, v80\n%s v%d, v%d, v81" % (op, YA + 2 * j, vHH + a, op, YA + 2 * j + 1, vHH + a))
    A("s_cmp_eq_u32 s60, 0\ns_cbranch_scc1 L_wo\ns_waitcnt vmcnt(0)\nL_wo:")
    for r in range(16):
        A("v_lshlrev_b32 v%d, 16, v%d\nv_and_b32 v%d, 0xffff0000, v%d" % (WOF + 2 * r, WOR + r, WOF + 2 * r + 1, WOR + r))
    def unpack4(b):
        A("v_lshlrev_b32 v%d, 16, v%d\nv_lshlrev_b32 v%d, 16, v%d\nv_and_b32 v%d, 0xffff0000, v%d\nv_and_b32 v%d, 0xffff0000, v%d\ns_nop 0" % (x(4), b, x(6), b + 2, x(5), b, x(7), b + 2))
    def mpoll(ns, sleep):
        if ns == 1:
            poll([opl], [x(1), x(3)], sleep, first=False); unpack4(x(0)); return
        base = [x(0)] + [x(8 + 4 * k) for k in range(ns - 1)]
        ld = lambda k: "buffer_load_dwordx4 v[%d:%d], v15, %s, s100 offen %s" % (base[k], base[k] + 3, WS, ldpol)
        pend = [34, 40, 42, 32][:ns]
        lo, fin = newlabel("mp"), newlabel("mf")
        A("s_waitcnt vmcnt(0)")
        cmpn([base[0] + 1, base[0] + 3])
        A("s_wqm_b64 exec, vcc\ns_cbranch_scc0 %s_0\ns_mov_b32 s62, 0" % fin)
        A("s_mov_b64 s[%d:%d], exec" % (pend[0], pend[0] + 1))
        A(ld(0))
        A("s_mov_b64 exec, -1")
        for k in range(1, ns):
            A("s_mov_b64 s[%d:%d], -1\ns_sleep %d" % (pend[k], pend[k] + 1, stag)); A(ld(k))
        A("%s:" % lo)
        for k in range(ns):
            A("s_mov_b64 exec, s[%d:%d]\ns_waitcnt vmcnt(%d)" % (pend[k], pend[k] + 1, ns - 1))
            cmpn([base[k] + 1, base[k] + 3])
            A("s_wqm_b64 exec, vcc\ns_cbranch_scc0 %s_%d" % (fin, k))
            A("s_mov_b64 s[%d:%d], exec" % (pend[k], pend[k] + 1))
            A(ld(k))
        A("s_add_u32 s62, s62, 1\ns_cmp_gt_u32 s62, %d\ns_cbranch_scc0 %s\ns_branch L_bail" % (spin, lo))
        for k in range(ns - 1, -1, -1):
            A("%s_%d:\ns_mov_b64 exec, -1" % (fin, k)); unpack4(base[k])
            if k: A("s_branch %s" % fin)
        A("%s:" % fin)
    def red4(steps):
        A("v_permlane32_swap_b32 v%d, v%d\nv_permlane32_swap_b32 v%d, v%d\nv_add_f32 v%d, v%d, v%d\nv_add_f32 v%d, v%d, v%d\ns_nop 1" % (x(4), x(6), x(5), x(7), x(4), x(4), x(6), x(5), x(5), x(7)))
        A("v_permlane16_swap_b32 v%d, v%d\nv_add_f32 v%d, v%d, v%d" % (x(4), x(5), x(4), x(4), x(5)))
        for c in steps:
            A("s_nop 1"); dpp("v_add_f32", x(4), x(4), x(4), c)
    A("s_cmp_lt_u32 s3, 6\ns_cbranch_scc1 L_nog2")
    mpoll(ns1, sleep1)
    red4(["row_ror:8"])
    A("ds_write_b32 v11, v%d offset:%d\ns_waitcnt lgkmcnt(0)" % (x(4), LDS_o))
    A("L_nog2:")
    ST("og")
    A("s_barrier")
    y = lambda k: T + 24 + k
    A("ds_read_b128 v[%d:%d], v13 offset:%d\nds_read_b128 v[%d:%d], v13 offset:%d" % (y(0), y(3), LDS_o, y(4), y(7), LDS_o + 128))
    A("s_waitcnt lgkmcnt(0)")
    A("v_pk_add_f32 v[%d:%d], v[%d:%d], v[%d:%d]\nv_pk_add_f32 v[%d:%d], v[%d:%d], v[%d:%d]" % (y(0), y(1), y(0), y(1), y(4), y(5), y(2), y(3), y(2), y(3), y(6), y(7)))
    for a in range(4):
        for j in range(0, 8, 2):
            lo = a & 1
            A("v_pk_fma_f32 v[%d:%d], v[%d:%d], v[%d:%d], v[%d:%d] op_sel:[0,%d,0] op_sel_hi:[1,%d,1]" % (YA + j, YA + j + 1, WOF + 8 * a + j, WOF + 8 * a + j + 1, y(a & 2), y((a & 2) + 1), YA + j, YA + j + 1, lo, lo))
    A("s_nop 1")
    for k in range(4): A("v_permlane32_swap_b32 v%d, v%d" % (YA + k, YA + k + 4))
    for k in range(4): A("v_add_f32 v%d, v%d, v%d" % (YA + k, YA + k, YA + k + 4))
    A("s_nop 0\nv_permlane16_swap_b32 v%d, v%d\nv_permlane16_swap_b32 v%d, v%d" % (YA, YA + 2, YA + 1, YA + 3))
    A("v_add_f32 v%d, v%d, v%d\nv_add_f32 v%d, v%d, v%d\ns_nop 0" % (YA, YA, YA + 2, YA + 1, YA + 1, YA + 3))
    dpp("v_add_f32", YA, YA, YA, "row_ror:8"); dpp("v_add_f32", YA + 1, YA + 1, YA + 1, "row_ror:8")
    A("v_cvt_pk_bf16_f32 v%d, v%d, v%d\nv_cvt_pk_bf16_f32 v%d, v%d, v%d\ns_nop 1\nv_permlane16_swap_b32 v%d, v%d" % (PUB + 2, YA, YA + 1, PUB, YA, YA + 1, PUB, PUB + 2))
    A("s_mov_b32 exec_lo, 0xff\ns_mov_b32 exec_hi, 0xff")
    A("buffer_store_dwordx4 v[%d:%d], v14, %s, s99 offen %s" % (PUB, PUB + 3, WS, stpol))
    A("s_mov_b64 exec, -1")
    ST("pubY")
    if nred == 64:
        A("s_cmp_lt_u32 s%d, 96\ns_cbranch_scc1 L_exit" % sREST)
        A("v_lshrrev_b32 v15, 2, v%d\nv_lshlrev_b32 v15, 11, v15\nv_and_b32 v9, 3, v%d\nv_lshl_add_u32 v15, v9, 4, v15" % (vL, vL))
        A("s_lshl_b32 s100, s%d, 7\ns_lshl_b32 s63, s3, 4\ns_add_u32 s100, s100, s63\ns_lshl_b32 s100, s100, 11\ns_sub_u32 s64, s%d, 96\ns_lshl_b32 s63, s64, 6\ns_add_u32 s100, s100, s63\ns_add_u32 s100, s100, %d" % (sB, sREST, WS_YP))
        A(opl)
        A("v_lshlrev_b32 v9, 4, v9\nv_lshrrev_b32 v10, 4, v%d\nv_lshl_add_u32 v9, v10, 2, v9\ns_lshl_b32 s63, s3, 6\nv_add_u32 v9, s63, v9" % vL)
        A("v_and_b32 v10, 7, v%d\nv_lshlrev_b32 v11, 3, v10\nv_lshrrev_b32 v12, 1, v10\nv_and_b32 v10, 1, v10\nv_lshlrev_b32 v10, 2, v10\nv_lshl_add_u32 v10, v12, 4, v10" % vL)
        A("s_lshl_b32 s63, s%d, 10\ns_lshr_b32 s65, s64, 2\ns_lshl_b32 s65, s65, 7\ns_add_u32 s63, s63, s65\ns_and_b32 s65, s64, 1\ns_lshl_b32 s65, s65, 6\ns_add_u32 s63, s63, s65\ns_and_b32 s65, s64, 2\ns_lshl_b32 s65, s65, 2\ns_add_u32 s63, s63, s65\nv_add_u32 v10, s63, v10" % sB)
        mpoll(ns2, sleep2)
        ST("yg")
        red4(["row_ror:4", "row_ror:8"])
        A("ds_write_b32 v9, v%d offset:%d\ns_waitcnt lgkmcnt(0)\ns_barrier" % (x(4), LDS_R))
        only_wave(0, "L_exit")
        for w in range(8):
            A("ds_read_b64 v[%d:%d], v11 offset:%d" % (64 + 2 * w, 65 + 2 * w, LDS_R + 64 * w))
        A("s_waitcnt lgkmcnt(4)\nv_pk_add_f32 v[64:65], v[64:65], v[66:67]\nv_pk_add_f32 v[68:69], v[68:69], v[70:71]\nv_pk_add_f32 v[64:65], v[64:65], v[68:69]")
        A("s_waitcnt lgkmcnt(0)\nv_pk_add_f32 v[72:73], v[72:73], v[74:75]\nv_pk_add_f32 v[76:77], v[76:77], v[78:79]\nv_pk_add_f32 v[72:73], v[72:73], v[76:77]\nv_pk_add_f32 v[64:65], v[64:65], v[72:73]")
        A("s_mov_b64 exec, 0xff\nv_cvt_pk_bf16_f32 v64, v64, v65")
    else:
        A("s_cmp_lt_u32 s%d, 112\ns_cbranch_scc1 L_exit" % sREST)
        A("v_lshrrev_b32 v15, 3, v%d\nv_lshlrev_b32 v15, 11, v15\nv_and_b32 v9, 7, v%d\nv_lshl_add_u32 v15, v9, 4, v15" % (vL, vL))
        A("s_lshl_b32 s100, s%d, 7\ns_lshl_b32 s63, s3, 4\ns_add_u32 s100, s100, s63\ns_lshl_b32 s100, s100, 11\ns_sub_u32 s64, s%d, 112\ns_lshl_b32 s63, s64, 7\ns_add_u32 s100, s100, s63\ns_add_u32 s100, s100, %d\ns_add_u32 s99, s100, 16384" % (sB, sREST, WS_YP))
        fl = [opl, "buffer_load_dwordx4 v[%d:%d], v15, %s, s99 offen %s" % (x(8), x(11), WS, ldpol)]
        A(fl[0]); A(fl[1])
        A("v_lshlrev_b32 v9, 4, v9\nv_lshrrev_b32 v10, 4, v%d\nv_lshl_add_u32 v9, v10, 2, v9\ns_lshl_b32 s63, s3, 7\nv_add_u32 v9, s63, v9" % vL)
        A("v_and_b32 v10, 15, v%d\nv_lshlrev_b32 v11, 3, v10\nv_lshrrev_b32 v12, 1, v10\nv_and_b32 v10, 1, v10\nv_lshlrev_b32 v10, 2, v10\nv_lshl_add_u32 v10, v12, 4, v10" % vL)
        A("s_lshl_b32 s63, s%d, 10\ns_lshr_b32 s65, s64, 1\ns_lshl_b32 s65, s65, 7\ns_add_u32 s63, s63, s65\ns_and_b32 s65, s64, 1\ns_lshl_b32 s65, s65, 3\ns_add_u32 s63, s63, s65\nv_add_u32 v10, s63, v10" % sB)
        poll(fl, [x(1), x(3), x(9), x(11)], sleep2, first=False)
        ST("yg")
        A("v_lshlrev_b32 v%d, 16, v%d\nv_lshlrev_b32 v%d, 16, v%d\nv_and_b32 v%d, 0xffff0000, v%d\nv_and_b32 v%d, 0xffff0000, v%d" % (x(12), x(8), x(14), x(10), x(13), x(8), x(15), x(10)))
        unpack4(x(0))
        A("v_pk_add_f32 v[%d:%d], v[%d:%d], v[%d:%d]\nv_pk_add_f32 v[%d:%d], v[%d:%d], v[%d:%d]\ns_nop 1" % (x(4), x(5), x(4), x(5), x(12), x(13), x(6), x(7), x(6), x(7), x(14), x(15)))
        red4(["row_ror:8"])
        A("ds_write_b32 v9, v%d offset:%d\ns_waitcnt lgkmcnt(0)\ns_barrier" % (x(4), LDS_A))
        only_wave(0, "L_exit")
        for w in range(8):
            A("ds_read_b64 v[%d:%d], v11 offset:%d" % (64 + 2 * w, 65 + 2 * w, LDS_A + 128 * w))
        A("s_waitcnt lgkmcnt(4)\nv_pk_add_f32 v[64:65], v[64:65], v[66:67]\nv_pk_add_f32 v[68:69], v[68:69], v[70:71]\nv_pk_add_f32 v[64:65], v[64:65], v[68:69]")
        A("s_waitcnt lgkmcnt(0)\nv_pk_add_f32 v[72:73], v[72:73], v[74:75]\nv_pk_add_f32 v[76:77], v[76:77], v[78:79]\nv_pk_add_f32 v[72:73], v[72:73], v[76:77]\nv_pk_add_f32 v[64:65], v[64:65], v[72:73]")
        A("s_mov_b64 exec, 0xffff\nv_cvt_pk_bf16_f32 v64, v64, v65")
    A("global_store_dword v10, v64, s[24:25] %s" % outpol)
    A("s_mov_b64 exec, -1")
    A("L_exit:")
    if gprobe:
        name, ref = gprobe
        only_wave(0, "L_gp1")
        ST("end")
        A("s_waitcnt lgkmcnt(0)\ns_lshl_b32 s63, s2, 7\ns_add_u32 s63, s63, %d\nv_mov_b32 v20, s70\nv_mov_b32 v21, s%d\nv_mov_b32 v22, s%d\nv_mov_b32 v23, s%d\nv_mov_b32 v24, 0" % (WS_MK, sTAG, stn[name], sTAG))
        A("s_mov_b64 exec, 1\nbuffer_store_dwordx4 v[20:23], v24, %s, s63 offen sc1\ns_mov_b64 exec, -1" % WS)
        A("L_gp1:")
        only_wave(7, "L_gp2")
        A("s_cmp_lg_u32 s2, 0\ns_cbranch_scc1 L_gp2")
        A("L_gpw:\ns_sleep 16\ns_memrealtime s[64:65]\ns_waitcnt lgkmcnt(0)\ns_sub_u32 s64, s64, s70\ns_cmp_lt_u32 s64, 3500\ns_cbranch_scc1 L_gpw")
        A("v_lshlrev_b32 v48, 9, v%d\ns_mov_b32 s64, %d" % (vL, WS_MK))
        poll(["buffer_load_dwordx4 v[%d:%d], v48, %s, s64 offen offset:%d sc1" % (32 + 4 * a, 35 + 4 * a, WS, 128 * a) for a in range(4)], [33 + 2 * a for a in range(8)], 8)
        for a in range(8): A("v_subrev_u32 v%d, s70, v%d" % (32 + 2 * a, 32 + 2 * a))
        op0 = "v_max_i32" if ref == "late" else "v_min_i32"
        A("%s v50, v32, v36\n%s v51, v40, v44\n%s v50, v50, v51\nv_max_i32 v52, v34, v38\nv_max_i32 v51, v42, v46\nv_max_i32 v52, v52, v51\ns_nop 1" % (op0, op0, op0))
        for r, op in ((50, op0), (52, "v_max_i32")):
            for c in ("quad_perm:[1,0,3,2]", "quad_perm:[2,3,0,1]", "row_half_mirror", "row_mirror"):
                dpp(op, r, r, r, c); A("s_nop 1")
            xrows(op, r, 54)
        A("v_sub_u32 v52, v52, v50\ns_nop 0\nv_readfirstlane_b32 s63, v52\ns_sub_u32 s63, s63, %d\ns_max_i32 s63, s63, 0\ns_mul_i32 s63, s63, 10\ns_add_u32 s63, s63, 6000" % aoff)
        A("L_gpl:\ns_sleep 4\ns_memrealtime s[64:65]\ns_waitcnt lgkmcnt(0)\ns_sub_u32 s64, s64, s70\ns_cmp_lt_u32 s64, s63\ns_cbranch_scc1 L_gpl")
        A("L_gp2:")
    if skewprobe:
        only_wave(7, "L_sk1")
        A("s_waitcnt lgkmcnt(0)\ns_lshl_b32 s63, s2, 7\ns_add_u32 s63, s63, %d\nv_mov_b32 v20, s70\nv_mov_b32 v21, s%d\nv_mov_b32 v22, 0" % (WS_MK, sTAG))
        A("s_mov_b64 exec, 1\nbuffer_store_dwordx2 v[20:21], v22, %s, s63 offen sc1\ns_mov_b64 exec, -1" % WS)
        A("s_cmp_lg_u32 s2, 255\ns_cbranch_scc1 L_sk1")
        A("v_lshlrev_b32 v48, 9, v%d\ns_mov_b32 s64, %d" % (vL, WS_MK))
        poll(["buffer_load_dwordx2 v[%d:%d], v48, %s, s64 offen offset:%d sc1" % (32 + 2 * a, 33 + 2 * a, WS, 128 * a) for a in range(4)], [33, 35, 37, 39], 8)
        for a in range(4): A("v_subrev_u32 v%d, s70, v%d" % (32 + 2 * a, 32 + 2 * a))
        A("v_min_i32 v40, v32, v34\nv_min_i32 v41, v36, v38\nv_min_i32 v40, v40, v41\nv_max_i32 v42, v32, v34\nv_max_i32 v41, v36, v38\nv_max_i32 v42, v42, v41\ns_nop 1")
        for r, op in ((40, "v_min_i32"), (42, "v_max_i32")):
            for c in ("quad_perm:[1,0,3,2]", "quad_perm:[2,3,0,1]", "row_half_mirror", "row_mirror"):
                dpp(op, r, r, r, c); A("s_nop 1")
            xrows(op, r, 44)
        A("v_sub_u32 v42, v42, v40\ns_nop 0\nv_readfirstlane_b32 s63, v42\nv_readfirstlane_b32 s62, v40\ns_mul_i32 s63, s63, %d\ns_add_u32 s63, s63, 6000\ns_add_u32 s63, s63, s62" % (skewprobe - 1))
        A("L_skl:\ns_sleep 4\ns_memrealtime s[64:65]\ns_waitcnt lgkmcnt(0)\ns_sub_u32 s64, s64, s70\ns_cmp_lt_u32 s64, s63\ns_cbranch_scc1 L_skl")
        A("L_sk1:")
    if probe:
        ST("end")
        name, sign, waves = probe
        A("s_waitcnt lgkmcnt(0)")
        A("s_lshl_b32 s63, 1, s3\ns_and_b32 s63, s63, %d\ns_cbranch_scc0 L_pe" % waves)
        A("s_and_b32 s63, s2, 7\ns_lshl_b32 s63, 1, s63\ns_and_b32 s63, s63, %d\ns_cbranch_scc0 L_pe" % pslot)
        if prow is not None: A("s_lshr_b32 s63, s2, 3\ns_cmp_lg_u32 s63, %d\ns_cbranch_scc1 L_pe" % prow)
        if name == "W": A("s_cmp_ge_u32 s%d, 120\ns_cbranch_scc1 L_pe" % sREST)
        if name == "yg": A("s_cmp_lt_u32 s%d, 96\ns_cbranch_scc1 L_pe" % sREST)
        A("s_sub_u32 s63, s%d, s70" % stn[name])
        if amp > 1: A("s_sub_u32 s63, s63, %d\ns_max_i32 s63, s63, 0\ns_mul_i32 s63, s63, %d" % (aoff, amp))
        if sign < 0: A("s_sub_u32 s63, 4000, s63")
        A("s_add_u32 s63, s63, %d" % pbase)
        A("L_pl:\ns_sleep 4\ns_memrealtime s[64:65]\ns_waitcnt lgkmcnt(0)\ns_sub_u32 s64, s64, s70\ns_cmp_lt_u32 s64, s63\ns_cbranch_scc1 L_pl")
        A("L_pe:")
    if stamp:
        ST("end")
        A("s_waitcnt lgkmcnt(0)")
        A("s_lshl_b32 s63, s2, 3\ns_add_u32 s63, s63, s3\ns_lshl_b32 s63, s63, 6\ns_add_u32 s63, s63, %d\nv_mov_b32 v9, 0" % WS_STAMP)
        for i in range(0, 16, 4):
            for j in range(4):
                A("v_mov_b32 v%d, s%d" % (20 + j, 70 + 2 * (i + j)) if i + j < len(names) else "v_mov_b32 v%d, s71" % (20 + j))
            A("buffer_store_dwordx4 v[20:23], v9, %s, s63 offen offset:%d\ns_nop 1" % (WS, 4 * i))
    A("s_endpgm")
    A("L_bail:")
    A("s_mov_b64 exec, 1\nv_mov_b32 v9, 0\nv_mov_b32 v10, 0xdead\nglobal_store_dword v9, v10, s[26:27]")
    A("L_end:\ns_endpgm")
    L.append('.section .rodata,"a"\n.p2align 6\n.amdhsa_kernel %s_kernel' % NAME)
    L.append("  .amdhsa_next_free_vgpr 256\n  .amdhsa_next_free_sgpr 102\n  .amdhsa_accum_offset 256\n  .amdhsa_group_segment_fixed_size 0\n  .amdhsa_kernarg_size 104\n  .amdhsa_user_sgpr_count 2\n  .amdhsa_user_sgpr_kernarg_segment_ptr 1\n  .amdhsa_system_sgpr_workgroup_id_x 1\n.end_amdhsa_kernel")
    if now2:
        L[:] = [ln for ln in L if not (ln.strip().startswith("buffer_load") and ("s[48:51]" in ln or "s[52:55]" in ln))]
    if noside:
        out = []; inh = False
        for i, ln in enumerate(L):
            if ln == "L_helper:": inh = True
            if ln == "L_noep:": inh = False
            if inh:
                t = ln.strip()
                if t.startswith("buffer_store") and "s" in noside: continue
                if t.startswith("buffer_load") and "l" in noside: continue
                if t.startswith("global_load") and "x" in noside: continue
                if t.startswith("s_wqm_b64 exec, vcc"): ln = "    s_and_b64 vcc, 0, 0"
            out.append(ln)
        L[:] = out
    return "\n".join(L) + "\n"
```

```python
import gen5, asmlib, hazard, json, sys, shutil
ref = open("gated_mix__gqa_block_cached__glu_gated_glu__decode.s.ref").read().split("\n")
layout = "\n".join(l for l in ref if l.startswith("; Kernarg") or l.startswith(";   offset")) + "\n"
doc = """;
; Hand-offs go through d_ws as 8-byte {payload, tag} granules, sc1 stores and sc1 polling loads. The tag is a bijective
"""
cfg = dict(d=6, p1=30, p2=110, qk_at=44, touch=4, pt=50, tx=0, tpol="sc1", dend=[122, 12], spin=2000000)
if len(sys.argv) > 2: cfg.update(json.loads(sys.argv[2]))
out = sys.argv[1]
open(out, "w").write(gen5.gen(header=layout + doc, **cfg))
asmlib.build(out)
assert hazard.check(out) == 0
```

```python
import sys, struct
NAME = "gated_mix__gqa_block_cached__glu_gated_glu__decode"
def f2u(x): return struct.unpack("<I", struct.pack("<f", x))[0]
LOG2E = 1.4426950408889634

WS_EPOCH = 0
WS_QG = 0x1000
WS_ML = 0x20000
WS_OP = 0x40000
WS_YP = 0xC0000
WS_MK = 0x140000
WS_STAMP = 0x400000
WS_USED = 0x180000
LDS_A = 0
LDS_Q = 4096
LDS_M = 5120
LDS_L = 5184
LDS_F = 5248
LDS_H = 5312
LDS_C = 5376
LDS_o = 5632
LDS_R = 5888
HFS = 1152
WVS = 2304
LDS_O = 6400
LDS_K = LDS_O + 4 * WVS
assert LDS_K % 256 == 0
LDS_END = LDS_K + 4 * 12288

class VM:
    def __init__(self): self.ops = []
    def issue(self, name, counted=True, w=None): self.ops.append((name, counted, (1.0 if counted else None) if w is None else w))
    def after(self, name):
        idx = max(i for i, (n, c, w) in enumerate(self.ops) if n == name)
        return sum(1 for n, c, w in self.ops[idx + 1:] if c)
    def pace_n(self, room):
        n = 0; tot = 0.0
        for name, c, w in reversed(self.ops):
            if w is None: continue
            if tot + w > room: return n, True
            tot += w; n += 1
        return n, False

def gen(d=5, dpat=None, d0=None, pol="nt", kpol=None, wpol="nt", w2pol="", stamp=False,
        p1=22, p2=100, pe=123, qk_at=37, outpol="", stpol="sc1", ldpol="sc1", spin=200000, header=None, probe=None, pbase=6000,
        sleep1=0, sleep2=0, nap=2, sprio=1, dend=None, lds_pad=0, adapt=None, db=7, alev=None, win=8, mkstr=7, npeer=16, adelay=True, aw=6, skewprobe=0, gprobe=None, pslot=255, prow=None, p0=None, thr=None, pm=16, pend=126, noside=None, pub4=True, ns1=1, ns2=1, stag=3, amp=1, aoff=2000, preG=True, preP=False, b5b=True, ssl=0, now2=False, touch=0, pt=116, tx=1, tpol="", tearly=False, tout=False, par=0, dodd=None, nred=64, plate=0, pbase0=0, tlb=0):
    if kpol is None: kpol = pol
    if d0 is None: d0 = d
    L = []
    def A(s):
        for line in s.strip("\n").split("\n"):
            t = line.strip()
            L.append(t if t.endswith(":") else "    " + t)
    vm = VM()
    diag = stamp or probe or skewprobe or gprobe
    names = ["start", "W", "pubA", "qw", "q", "exp", "pubML", "V7", "B5", "pubO", "og", "pubY", "yg", "end"]
    stn = {n: 70 + 2 * i for i, n in enumerate(names)}
    def ST(name):
        if diag and (not gprobe or name in ("start", "end", gprobe[0])): A("s_memrealtime s[%d:%d]" % (stn[name], stn[name] + 1))
    def wait(name, extra=0):
        n = vm.after(name) + extra
        assert n <= 63
        A("s_waitcnt vmcnt(%d)" % n)
    npace = [0]; amode = [False]
    def pace(dd=None, w=1.0):
        if dodd and dd is None:
            de = dpat[npace[0] % len(dpat)] if dpat else d
            do = dodd[npace[0] % len(dodd)]
            npace[0] += 1
            (ne, need_e), (no, need_o) = vm.pace_n(de - w), vm.pace_n(do - w)
            if max(ne, no) != min(ne, no):
                l1 = newlabel("pc")
                if need_e and need_o: A("s_waitcnt vmcnt(%d)" % max(ne, no))
                A("s_cbranch_%s %s\ns_waitcnt vmcnt(%d)\n%s:" % ("vccnz" if ne < no else "vccz", l1, min(ne, no), l1))
            elif need_e: A("s_waitcnt vmcnt(%d)" % ne)
            return
        if amode[0] and dd is None:
            l1 = newlabel("pc")
            dd = dpat[npace[0] % len(dpat)] if dpat else d
            npace[0] += 1
            A("s_waitcnt vmcnt(%d)\ns_cbranch_vccnz %s\ns_waitcnt vmcnt(%d)\n%s:" % (vm.pace_n(db - w)[0], l1, vm.pace_n(dd - w)[0], l1))
            return
        if dd is None:
            dd = dpat[npace[0] % len(dpat)] if dpat else d
            npace[0] += 1
        n, need = vm.pace_n(dd - w)
        if need: A("s_waitcnt vmcnt(%d)" % n)
    lab = [0]
    def newlabel(p):
        lab[0] += 1; return "L_%s%d" % (p, lab[0])

    vL, vVO, vSP, vG = 1, 3, 4, 8
    Q0, O0, AX0, S0 = 16, 16, 24, 32
    vKS, vKR = 88, 92
    YA, PUB, vWO, vWD2, vHH = 64, 72, 76, 77, 78
    WOR, WDR, WOF, T = 128, 144, 160, 192
    def buf(i): return 96 + 16 * (i % 10)
    def Kreg(t): return buf(t)
    def Vreg(t): return buf(t + 6)
    sK, sV, sW, sWS, sWO, sWD = 32, 36, 40, 44, 48, 52
    sB, sREST, sTAG, sSTR = 30, 31, 56, 58
    sKO, sVO, sSLOT, sM0 = 66, 67, 59, 101
    WS = "s[%d:%d]" % (sWS, sWS + 3)
    tstep = 4 * 4096

    def dpp(op, dst, a, b, ctrl):
        A("%s_dpp v%d, v%d, v%d %s row_mask:0xf bank_mask:0xf" % (op, dst, a, b, ctrl))
    def xrows(op, x, t):
        A("v_mov_b32 v%d, v%d\ns_nop 1\nv_permlane16_swap_b32 v%d, v%d\n%s v%d, v%d, v%d" % (t, x, t, x, op, x, t, x))
        A("v_mov_b32 v%d, v%d\ns_nop 1\nv_permlane32_swap_b32 v%d, v%d\n%s v%d, v%d, v%d" % (t, x, t, x, op, x, t, x))
    def cmpn(tagregs):
        A("v_cmp_ne_u32 vcc, s%d, v%d" % (sTAG, tagregs[0]))
        for r in tagregs[1:]:
            A("v_cmp_ne_u32 s[68:69], s%d, v%d\ns_or_b64 vcc, vcc, s[68:69]" % (sTAG, r))
    def poll(loads, tagregs, sleep=0, first=True):
        lo, lc = newlabel("spin"), newlabel("chk")
        A("s_mov_b32 s62, 0")
        if not first: A("s_branch %s" % lc)
        elif sleep: A("s_branch %s_n" % lo)
        A("%s:" % lo)
        if sleep: A("s_sleep %d\n%s_n:" % (sleep, lo))
        for s in loads: A(s)
        A("s_add_u32 s62, s62, 1\ns_cmp_gt_u32 s62, %d\ns_cbranch_scc1 L_bail" % spin)
        A("%s:" % lc)
        A("s_waitcnt vmcnt(0)")
        cmpn(tagregs)
        A("s_wqm_b64 exec, vcc\ns_cbranch_scc1 %s" % lo)
        A("s_mov_b64 exec, -1")
    def bump(off):
        A("v_mov_b32 v12, 0\nv_mov_b32 v13, 1\ns_mov_b64 exec, 1\nds_add_u32 v12, v13 offset:%d\ns_mov_b64 exec, -1" % off)
    def await_lds(off, val, sleep):
        lo = newlabel("lw")
        A("v_mov_b32 v12, 0\ns_mov_b32 s62, 0\ns_branch %s_n\n%s:" % (lo, lo))
        if sleep: A("s_sleep %d" % sleep)
        A("%s_n:\nds_read_b32 v13, v12 offset:%d\ns_add_u32 s62, s62, 1\ns_cmp_gt_u32 s62, %d\ns_cbranch_scc1 L_bail" % (lo, off, spin * 8))
        A("s_waitcnt lgkmcnt(0)\nv_readfirstlane_b32 s63, v13\ns_cmp_lt_u32 s63, %d\ns_cbranch_scc1 %s" % (val, lo))
    def only_wave(w, skip): A("s_cmp_lg_u32 s3, %d\ns_cbranch_scc1 %s" % (w, skip))

    def srds2():
        A("s_mov_b32 s%d, s28\ns_mov_b32 s%d, s29\ns_mov_b32 s%d, %d\ns_mov_b32 s%d, 0x20000" % (sWS, sWS + 1, sWS + 2, 0x500000 if stamp else WS_USED, sWS + 3))
        A("s_mov_b32 s%d, s12\ns_mov_b32 s%d, s13\ns_mov_b32 s%d, 0x400000\ns_mov_b32 s%d, 0x20000" % (sWO, sWO + 1, sWO + 2, sWO + 3))
        A("s_mov_b32 s%d, s20\ns_mov_b32 s%d, s21\ns_mov_b32 s%d, 1835008\ns_mov_b32 s%d, 0x20000" % (sWD, sWD + 1, sWD + 2, sWD + 3))
    def tag():
        A("s_waitcnt lgkmcnt(0)")
        A("s_mul_i32 s%d, s%d, 0x9e3779b5\ns_add_u32 s%d, s%d, 0x7f4a7c15" % (sTAG, sTAG, sTAG, sTAG))
    def w2_prep():
        A("v_lshrrev_b32 v9, 3, v%d\nv_and_b32 v12, 7, v%d\nv_lshlrev_b32 v%d, 4, v12\nv_lshl_add_u32 v%d, v9, 10, v%d" % (vL, vL, vWO, vWO, vWO))
        A("v_cmp_gt_u32 s[68:69], 6, v9\nv_mov_b32 v13, 0x10000000\ns_mul_i32 s58, s%d, %d\ns_lshl_b32 s64, s3, 7\ns_add_u32 s58, s58, s64" % (sREST, 14 * 1024))
        A("v_cndmask_b32 v%d, v13, v%d, s[68:69]\ns_lshl_b32 s57, s%d, 15\ns_add_u32 s57, s57, s64" % (vWD2, vWO, sREST))
    def load_wo(a):
        A("buffer_load_dwordx4 v[%d:%d], v%d, s[%d:%d], s57 offen %s" % (WOR + 4 * a, WOR + 4 * a + 3, vWO, sWO, sWO + 3, w2pol))
        vm.issue("wo")
        if a < 3: A("s_add_u32 s57, s57, 8192")
    def load_wd(a):
        if a == 1: A("s_add_u32 s58, s58, 8192")
        A("buffer_load_dwordx4 v[%d:%d], v%d, s[%d:%d], s58 offen %s" % (WDR + 4 * a, WDR + 4 * a + 3, vWD2 if a else vWO, sWD, sWD + 3, w2pol)); vm.issue("wd")

    L.append((header or "") + "; @launch grid=(256,1,1) block=(512,1,1) lds=%d" % (LDS_END + lds_pad))
    if stamp: L.append("; stamps: " + " ".join(names))
    L.append('.amdgcn_target "amdgcn-amd-amdhsa--gfx950"\n.text\n.globl %s_kernel\n.p2align 8\n.type %s_kernel,@function\n%s_kernel:' % (NAME, NAME, NAME))
    A("s_cmp_ge_u32 s2, 256\ns_cbranch_scc1 L_end")
    A("s_load_dwordx16 s[4:19], s[0:1], 0\ns_load_dwordx8 s[20:27], s[0:1], 64\ns_load_dwordx2 s[28:29], s[0:1], 96")
    ST("start")
    A("v_lshrrev_b32 v9, 6, v0\nv_and_b32 v%d, 63, v0\nv_readfirstlane_b32 s3, v9" % vL)
    A("s_bfe_u32 s%d, s2, 0x10003" % sB)
    A("s_and_b32 s%d, s2, 7\ns_lshr_b32 s63, s2, 4\ns_lshl_b32 s63, s63, 3\ns_or_b32 s%d, s%d, s63" % (sREST, sREST, sREST))
    A("s_lshl_b32 s%d, s%d, 7\ns_add_u32 s%d, s%d, s%d" % (sSLOT, sB, sSLOT, sSLOT, sREST))
    A("v_lshrrev_b32 v10, 4, v%d\nv_and_b32 v11, 15, v%d\nv_lshlrev_b32 v%d, 4, v%d" % (vL, vL, vVO, vL))
    A("s_cmp_ge_u32 s3, 4\ns_cbranch_scc1 L_helper")

    if sprio: A("s_setprio %d" % sprio)
    A("v_lshlrev_b32 v12, 2, v10\nv_xor_b32 v12, v12, v11\nv_lshlrev_b32 v12, 4, v12\nv_lshl_add_u32 v%d, v10, 8, v12" % vKS)
    for i in range(1, 4): A("v_xor_b32 v%d, %d, v%d" % (vKS + i, 16 * i, vKS))
    A("s_lshl_b32 s%d, s3, 12\ns_mov_b32 s%d, s%d" % (sKO, sVO, sKO))
    A("s_lshl_b32 s65, s%d, 18" % sSLOT)
    A("s_mul_i32 s%d, s3, 12288\ns_add_u32 s%d, s%d, %d" % (sM0, sM0, sM0, LDS_K))
    A("s_movk_i32 s%d, 3584\ns_cmp_lt_u32 s%d, 64\ns_cselect_b32 s%d, 8192, s%d" % (sSTR, sREST, sSTR, sSTR))
    A("s_lshl_b32 s63, s%d, 4\nv_mul_u32_u24 v12, s63, v10\nv_lshl_add_u32 v12, v11, 3, v12" % sSTR)
    A("s_lshl_b32 s62, s%d, 2\ns_add_u32 s62, s62, s3\ns_lshl_b32 s62, s62, 6" % sB)
    A("v_bfe_u32 v13, v11, 2, 1\nv_lshlrev_b32 v13, 10, v13\nv_lshl_add_u32 v13, v10, 5, v13\ns_lshl_b32 s63, s62, 1\nv_add_u32 v13, s63, v13")
    A("s_mul_i32 s63, s62, s%d" % sSTR)
    A("s_sub_u32 s64, s%d, 64\ns_cmp_lt_u32 s%d, 64\ns_cselect_b32 s64, s%d, s64\ns_sub_u32 s62, s%d, 92\ns_cmp_ge_u32 s%d, 92\ns_cselect_b32 s64, s62, s64\ns_lshl_b32 s64, s64, 7" % (sREST, sREST, sREST, sREST, sREST))
    A("s_mul_i32 s%d, s%d, 511\ns_add_u32 s%d, s%d, 128\ns_mov_b32 s%d, 0x20000" % (sW + 2, sSTR, sW + 2, sW + 2, sW + 3))
    A("s_mov_b32 s%d, 0x40000\ns_mov_b32 s%d, 0x20000" % (sK + 2, sK + 3))
    A("s_waitcnt lgkmcnt(0)")
    A("s_add_u32 s%d, s6, s65\ns_addc_u32 s%d, s7, 0" % (sK, sK + 1))
    A("s_cmp_ge_u32 s%d, 120\ns_cbranch_scc1 L_noA1" % sREST)
    A("s_cmp_lt_u32 s%d, 64\ns_cselect_b32 s%d, s10, s16\ns_cselect_b32 s%d, s11, s17" % (sREST, sW, sW + 1))
    A("s_cmp_ge_u32 s%d, 92\ns_cselect_b32 s%d, s18, s%d\ns_cselect_b32 s%d, s19, s%d" % (sREST, sW, sW, sW + 1, sW + 1))
    A("s_add_u32 s%d, s%d, s64\ns_addc_u32 s%d, s%d, 0" % (sW, sW, sW + 1, sW + 1))
    A("global_load_dwordx4 v[64:67], v13, s[4:5]\nglobal_load_dwordx4 v[68:71], v13, s[4:5] offset:16")
    vm.issue("X", False); vm.issue("X", False)
    for q in range(16):
        pace(d0, 0.5)
        A("buffer_load_dwordx2 v[%d:%d], v12, s[%d:%d], s63 offen %s" % (32 + 2 * q, 33 + 2 * q, sW, sW + 3, wpol))
        vm.issue("W%d" % q, False, 0.5)
        if q < 15: A("s_add_u32 s63, s63, s%d" % sSTR)
    A("L_noA1:")
    slots = {}
    def at(i, f): slots.setdefault(i, []).append(f)
    def loadK(t, i):
        if i == 0:
            A("s_add_u32 s63, s%d, %d\ns_mov_b32 m0, s63" % (sM0, (t % 3) * 4096))
            A("s_waitcnt lgkmcnt(0)" if t >= 3 else "s_nop 0")
        A("buffer_load_dwordx4 v%d, s[%d:%d], s%d offen offset:%d %s lds" % (vKS + i, sK, sK + 3, sKO, 1024 * i, kpol))
        vm.issue("K%d" % t)
        if i == 3 and t < 15: A("s_add_u32 s%d, s%d, %d" % (sKO, sKO, tstep))
    def readK(t):
        wait("K%d" % t)
        for i in range(4):
            A("ds_read_b128 v[%d:%d], v%d offset:%d" % (Kreg(t) + 4 * i, Kreg(t) + 4 * i + 3, vKR + i, (t % 3) * 4096))
    def loadV(t, i):
        A("buffer_load_dwordx4 v[%d:%d], v%d, s[%d:%d], s%d offen offset:%d %s" % (Vreg(t) + 4 * i, Vreg(t) + 4 * i + 3, vVO, sV, sV + 3, sVO, 1024 * i, pol))
        vm.issue("V%d.%d" % (t, i))
        if i == 3 and t < 15: A("s_add_u32 s%d, s%d, %d" % (sVO, sVO, tstep))
    def setup2():
        A("s_load_dword s%d, s[28:29], %d" % (sTAG, WS_EPOCH))
        A("s_barrier")
        A("s_add_u32 s%d, s8, s65\ns_addc_u32 s%d, s9, 0\ns_mov_b32 s%d, 0x40000\ns_mov_b32 s%d, 0x20000" % (sV, sV + 1, sV + 2, sV + 3))
        A("v_and_b32 v9, 1, v%d\nv_cmp_eq_u32 vcc, 1, v9\nv_mov_b32 v12, 0x0c0c0100\nv_mov_b32 v9, 0x01000c0c\nv_mov_b32 v13, 0x0c0c0302\nv_mov_b32 v15, 0x03020c0c" % vL)
        A("v_cndmask_b32 v12, v12, v9, vcc\nv_cndmask_b32 v13, v13, v15, vcc")
        A("v_and_b32 v9, 2, v%d\nv_cmp_eq_u32 vcc, 2, v9\nv_mov_b32 v15, 0x0c0c0c0c\ns_nop 0" % vL)
        A("v_cndmask_b32 v%d, v12, v15, vcc\nv_cndmask_b32 v%d, v15, v12, vcc\nv_cndmask_b32 v%d, v13, v15, vcc\nv_cndmask_b32 v%d, v15, v13, vcc" % (vSP, vSP + 1, vSP + 2, vSP + 3))
        A("v_and_b32 v12, 3, v11\nv_lshlrev_b32 v12, 10, v12\nv_lshrrev_b32 v13, 2, v11\nv_lshl_add_u32 v12, v13, 8, v12\nv_xor_b32 v13, v10, v11\nv_lshl_add_u32 v12, v13, 4, v12\nv_add_u32 v%d, s%d, v12" % (vKR, sM0))
        for i in range(1, 4): A("v_xor_b32 v%d, %d, v%d" % (vKR + i, 64 * i, vKR))
        if dodd: A("s_getreg_b32 s63, hwreg(HW_REG_XCC_ID, 0, 1)\ns_cmp_eq_u32 s63, 1\ns_cselect_b64 vcc, -1, 0")
    def phaseA(half):
        def f():
            l1 = newlabel("skipA")
            A("s_cmp_ge_u32 s%d, 120\ns_cbranch_scc1 %s" % (sREST, l1))
            A("s_waitcnt vmcnt(%d)" % (vm.after("W15") + (8 if half == 0 else 0)))
            for u in range(8 * half, 8 * half + 8):
                for j2 in range(2):
                    A("v_perm_b32 v%d, v%d, v%d, v%d" % (96 + 2 * (u & 7) + j2, 64 + (u >> 1), 64 + (u >> 1), vSP + 2 * (u & 1) + j2))
            for u in range(8 * half, 8 * half + 8):
                A("v_mfma_f32_16x16x16_bf16 v[72:75], v[%d:%d], v[%d:%d], %s" % (96 + 2 * (u & 7), 97 + 2 * (u & 7), 32 + 2 * u, 33 + 2 * u, "0" if u == 0 else "v[72:75]"))
            if half == 1:
                ST("W")
                A("s_lshl_b32 s63, s3, 10\nv_add_u32 v9, s63, v%d\ns_nop 6" % vVO)
                A("ds_write_b128 v9, v[72:75] offset:%d" % LDS_A)
                bump(LDS_C)
            A("%s:" % l1)
        return f
    def progress(val):
        def f():
            l1 = newlabel("pg")
            only_wave(0, l1)
            A("v_mov_b32 v12, 0\nv_mov_b32 v13, %d\nds_write_b32 v12, v13 offset:%d" % (val, LDS_C + 12))
            A("%s:" % l1)
        return f
    def q_wait():
        ST("qw")
        A("v_lshrrev_b32 v9, 2, v11\nv_lshlrev_b32 v9, 8, v9\nv_lshl_add_u32 v9, v10, 4, v9")
        await_lds(LDS_C + 8, 4, 0)
        for i in range(4):
            A("ds_read_b128 v[%d:%d], v9 offset:%d" % (Q0 + 4 * i, Q0 + 4 * i + 3, LDS_Q + 64 * i))
    def qk(ts):
        def f():
            A("s_waitcnt lgkmcnt(0)")
            for t in ts:
                for i in range(4):
                    A("v_mfma_f32_16x16x32_bf16 v[%d:%d], v[%d:%d], v[%d:%d], %s" % (S0 + 4 * t, S0 + 4 * t + 3, Kreg(t) + 4 * i, Kreg(t) + 4 * i + 3, Q0 + 4 * i, Q0 + 4 * i + 3,
                      "0" if i == 0 else "v[%d:%d]" % (S0 + 4 * t, S0 + 4 * t + 3)))
        return f
    def smax():
        A("v_max3_f32 v9, v32, v33, v34\nv_max3_f32 v14, v35, v36, v37")
        rs = list(range(38, 96))
        for k in range(0, len(rs), 2): A("v_max3_f32 v%d, v%d, v%d, v%d" % ((9, 14)[(k >> 1) & 1], (9, 14)[(k >> 1) & 1], rs[k], rs[k + 1]))
        A("v_max_f32 v9, v9, v14")
        A("s_mov_b32 s65, 0x%08x" % f2u(128 ** -0.5 * LOG2E))
        xrows("v_max_f32", 9, 12)
        A("v_mul_f32 v9, s65, v9")
    def sexp(lo, hi):
        def f():
            for r in range(lo, hi): A("v_fma_f32 v%d, v%d, s65, -v9" % (r, r))
            for r in range(lo, hi): A("v_exp_f32 v%d, v%d" % (r, r))
            if hi == 96: ST("exp")
        return f
    def ssum(lo, hi):
        def f():
            for r in range(lo, hi, 2):
                if r == 32: A("v_mov_b32 v14, v32\nv_mov_b32 v15, v33")
                else: A("v_pk_add_f32 v[14:15], v[14:15], v[%d:%d]" % (r, r + 1))
            for r in range(lo, hi, 2): A("v_cvt_pk_bf16_f32 v%d, v%d, v%d" % (32 + (r - 32) // 2, r, r + 1))
            if hi == 96:
                A("v_add_f32 v15, v15, v14")
                xrows("v_add_f32", 15, 14)
                A("v_lshrrev_b32 v14, 2, v11\nv_lshlrev_b32 v14, 4, v14\ns_lshl_b32 s63, s3, 2\nv_add_u32 v14, s63, v14")
                A("ds_write_b32 v14, v9 offset:%d\nds_write_b32 v14, v15 offset:%d" % (LDS_M, LDS_L))
                bump(LDS_C + 4)
        return f
    def expand(t):
        for r in range(4):
            for j2 in range(2):
                A("v_perm_b32 v%d, v%d, v%d, v%d" % (AX0 + 2 * r + j2, 32 + 2 * t + (r >> 1), 32 + 2 * t + (r >> 1), vSP + 2 * (r & 1) + j2))
    def pvm(t, r):
        for hf in range(2):
            A("v_mfma_f32_16x16x16_bf16 v[%d:%d], v[%d:%d], v[%d:%d], %s" % (O0 + 4 * hf, O0 + 4 * hf + 3, AX0 + 2 * r, AX0 + 2 * r + 1,
              Vreg(t) + 4 * r + 2 * hf, Vreg(t) + 4 * r + 2 * hf + 1, "0" if (t == 0 and r == 0) else "v[%d:%d]" % (O0 + 4 * hf, O0 + 4 * hf + 3)))
    def pv(t):
        def f():
            expand(t); wait("V%d.3" % t)
            for r in range(4): pvm(t, r)
        return f
    def s_prep():
        srds2(); tag(); w2_prep()
        A("v_lshlrev_b32 v10, 4, v%d\ns_mul_i32 s63, s3, %d\nv_add_u32 v10, s63, v10" % (vL, WVS))
        A("v_mov_b32 v15, 0\ns_mov_b32 s60, 1")
        A("v_mov_b32 v%d, s%d\nv_mov_b32 v%d, s%d" % (PUB + 1, sTAG, PUB + 3, sTAG))
    dm = max(dpat) if dpat else d
    if adapt or p0 is not None or par: dm = max(dm, db)
    if dodd: dm = max(dm, max(dodd))
    dmv = max(dm, dend[1]) if dend else dm
    assert 4 <= dm <= 8
    at(0, setup2)
    at(1, phaseA(0)); at(min(dm, 6), phaseA(1))
    assert min(dm, 6) < 3 + dm
    for t in range(16): at(4 * t + 3 + dm, lambda t=t: readK(t))
    for p in sorted(set([p1, p2, pe] + ([pt] if touch else []) + (adapt or []) + ([p0] if p0 is not None else []))): at(p, progress(p))
    if p0 is not None or par:
        if p0 is not None:
            at(pm - 1, lambda: A("v_mov_b32 v2, 0\nds_read_b32 v0, v2 offset:%d" % (LDS_C + 16)))
            at(pm, lambda: A("s_waitcnt lgkmcnt(0)"))
        else: at(pm, lambda: A("v_mov_b32 v0, 0"))
        if par: at(pm, lambda: A("s_getreg_b32 s63, hwreg(HW_REG_XCC_ID, 0, 1)\ns_mul_i32 s63, s63, %d\ns_getreg_b32 s64, hwreg(HW_REG_XCC_ID, 2, 1)\ns_mul_i32 s64, s64, %d\ns_add_u32 s63, s63, s64\ns_add_u32 s63, s63, %d\nv_add_u32 v0, s63, v0" % (par, plate, pbase0)))
        if stamp: at(pm, lambda: A("s_nop 0\nv_readfirstlane_b32 s71, v0"))
        for j, p in enumerate(range(pm, pend, win)):
            at(p, lambda j=j: A("v_cmp_le_u32 vcc, %d, v0" % thr[j % len(thr)]))
        at(pend, lambda: A("s_mov_b64 vcc, 0"))
    if adapt:
        a0 = adapt[0] + win
        at(a0 - 1, lambda: A("s_mov_b64 vcc, 0"))
        for j, p in enumerate(range(a0, 126, win)):
            at(p, lambda: A("v_mov_b32 v2, 0\nds_read_b32 v0, v2 offset:%d" % (LDS_C + 16)))
            at(p + 1, lambda j=j: A("s_waitcnt lgkmcnt(0)\nv_and_b32 v0, %d, v0\nv_cmp_ne_u32 vcc, 0, v0" % (1 << (j % 8))))
    at(qk_at - 1, q_wait)
    t = 0; s = qk_at
    while t < 16:
        ts = [u for u in (t, t + 1) if u < 16 and 4 * u + 3 + dm < s and (u < 14 or s >= 64)]
        if ts:
            assert all(s < 4 * (u + 10) + 3 + dm for u in ts)
            at(s, qk(ts)); t += len(ts); slast = s
        s += 1
    at(slast + 1, smax)
    for k in range(4): at(slast + 2 + k, sexp(32 + 16 * k, 48 + 16 * k))
    at(slast + 6, ssum(32, 64)); at(slast + 7, ssum(64, 96))
    nxt = slast + 8; late = []
    for t in range(15):
        nxt = max(nxt, 67 + 4 * t + dmv)
        if nxt <= 127: at(nxt, pv(t))
        else: late.append(t)
        assert t + 10 > 15 or nxt < 64 + 4 * (t + 10)
        nxt += 1
    at(113, s_prep)
    if stamp:
        at(16, lambda: ST("pubA")); at(96, lambda: ST("pubML")); at(112, lambda: ST("yg")); at(56, lambda: ST("q"))
    for i in range(128):
        if adapt and i == adapt[0] + win: amode[0] = True
        if (p0 is not None or par) and i == pm + 1: amode[0] = True
        if dodd and i == 0: pace(d0)
        elif dend and i >= dend[0]: pace(dend[1])
        else: pace()
        if i < 64: loadK(i >> 2, i & 3)
        else: loadV((i - 64) >> 2, i & 3)
        for f in slots.get(i, []): f()
    amode[0] = False
    for t in late: pv(t)()
    expand(15)
    for r in range(4):
        wait("V15.%d" % r)
        if r == 3: ST("V7")
        pvm(15, r)
    A("s_nop 6")
    A("ds_write_b128 v10, v[16:19] offset:%d\nds_write_b128 v10, v[20:23] offset:%d" % (LDS_O, LDS_O + HFS))
    A("s_waitcnt lgkmcnt(0)\ns_barrier")
    ST("B5")
    if ssl: A("s_sleep %d" % ssl)
    opl = "buffer_load_dwordx4 v[%d:%d], v15, %s, s100 offen %s" % (T, T + 3, WS, ldpol)
    A("s_branch L_join")

    A("L_helper:")
    A("v_mov_b32 v12, 0\nv_mov_b32 v13, 0\nv_mov_b32 v14, 0\nv_mov_b32 v15, 0\nds_write_b128 v12, v[12:15] offset:%d\nds_write_b32 v12, v12 offset:%d" % (LDS_C, LDS_C + 16))
    A("s_waitcnt lgkmcnt(0)")
    A("s_load_dword s%d, s[28:29], %d" % (sTAG, WS_EPOCH))
    A("s_barrier")
    srds2()
    if tlb:
        only_wave(6, "L_notlb")
        A("s_lshl_b32 s63, s%d, 18\ns_add_u32 s63, s63, 0x3ff80\nv_mov_b32 v32, s63\ns_lshl_b32 s63, s%d, 15\nv_mov_b32 v33, s63\ns_mul_i32 s63, s%d, %d\nv_mov_b32 v34, s63\nv_mov_b32 v35, 0\ns_mov_b64 exec, 1" % (sSLOT, sREST, sREST, 14 * 1024))
        if tlb & 1: A("global_load_dword v36, v32, s[8:9] nt")
        if tlb & 2: A("global_load_dword v37, v33, s[12:13] nt\nglobal_load_dword v38, v34, s[20:21] nt")
        if tlb & 4: A("global_load_dword v39, v35, s[24:25] nt")
        A("s_mov_b64 exec, -1\nL_notlb:")
    only_wave(5, "L_nox")
    A("s_lshl_b32 s63, s%d, 10\nv_add_u32 v9, s63, v%d" % (sB, vVO))
    A("global_load_dwordx4 v[32:35], v9, s[4:5]\nglobal_load_dwordx4 v[36:39], v%d, s[22:23]" % vVO)
    if tearly:
        A("s_lshl_b32 s63, s%d, 7\ns_add_u32 s63, s63, %d\nv_mov_b32 v12, 0\nbuffer_load_dword v44, v12, %s, s63 offen %s" % (sSLOT, WS_ML, WS, tpol))
    A("s_waitcnt vmcnt(0)")
    A("v_dot2_f32_bf16 v%d, v32, v36, 0" % vG)
    for i in range(1, 4): A("v_dot2_f32_bf16 v%d, v%d, v%d, v%d" % (vG, 32 + i, 36 + i, vG))
    A("s_nop 2")
    for c in ("quad_perm:[1,0,3,2]", "quad_perm:[2,3,0,1]", "row_half_mirror", "row_mirror"):
        dpp("v_add_f32", vG, vG, vG, c); A("s_nop 1")
    xrows("v_add_f32", vG, 9)
    A("v_mul_f32 v%d, 0x%08x, v%d\nv_exp_f32 v%d, v%d\ns_nop 0\nv_add_f32 v%d, 1.0, v%d\nv_rcp_f32 v%d, v%d" % (vG, f2u(-LOG2E), vG, vG, vG, vG, vG, vG, vG))
    A("L_nox:")
    tag()
    only_wave(4, "L_noA2")
    A("s_cmp_ge_u32 s%d, 120\ns_cbranch_scc1 L_noA2" % sREST)
    if pub4:
        A("v_and_b32 v14, 31, v%d\nv_lshlrev_b32 v9, 4, v14\nv_lshrrev_b32 v15, 5, v%d\nv_lshl_add_u32 v9, v15, 3, v9" % (vL, vL))
        A("v_lshrrev_b32 v14, 4, v14\nv_mul_u32_u24 v14, %d, v14\nv_add_u32 v14, v14, v%d" % (30720 - 256, vVO))
    else:
        A("v_lshlrev_b32 v9, 3, v%d\nv_lshrrev_b32 v14, 5, v%d\nv_mul_u32_u24 v14, %d, v14\nv_add_u32 v14, v14, v9" % (vL, vL, 30720 - 256))
    A("s_mul_i32 s64, s%d, 61440\ns_lshl_b32 s65, s%d, 8\ns_add_u32 s64, s64, s65\ns_add_u32 s64, s64, %d" % (sB, sREST, WS_QG))
    if tearly:
        A("s_mov_b32 exec_hi, 0\nbuffer_load_dwordx4 v[44:47], v14, %s, s64 offen %s\ns_mov_b32 exec_hi, -1" % (WS, tpol))
    await_lds(LDS_C, 4, 1)
    for w in range(4):
        A("ds_read_b64 v[%d:%d], v9 offset:%d" % (32 + 2 * w, 33 + 2 * w, LDS_A + 1024 * w))
    A("s_waitcnt lgkmcnt(0)\nv_pk_add_f32 v[32:33], v[32:33], v[34:35]\nv_pk_add_f32 v[36:37], v[36:37], v[38:39]\nv_pk_add_f32 v[32:33], v[32:33], v[36:37]")
    if pub4:
        A("v_cvt_pk_bf16_f32 v36, v32, v33\nv_cvt_pk_bf16_f32 v38, v32, v33\nv_mov_b32 v37, s%d\nv_mov_b32 v39, s%d\nv_permlane32_swap_b32 v36, v38\ns_mov_b32 exec_hi, 0" % (sTAG, sTAG))
        A("buffer_store_dwordx4 v[36:39], v14, %s, s64 offen %s\ns_mov_b32 exec_hi, -1" % (WS, stpol))
    else:
        A("v_cvt_pk_bf16_f32 v32, v32, v33\nv_mov_b32 v33, s%d" % sTAG)
        A("buffer_store_dwordx2 v[32:33], v14, %s, s64 offen %s" % (WS, stpol))
    A("L_noA2:")
    ST("pubA")
    def adapt_cps(cs, setup=False):
        l1 = newlabel("noad")
        if setup:
            nrow = npeer // 8; span = 32 // nrow
            A("s_lshr_b32 s64, s2, 3\ns_and_b32 s60, s64, %d\ns_mul_i32 s60, s60, %d\ns_lshr_b32 s64, s64, %d\ns_lshl_b32 s64, s64, 3\ns_and_b32 s63, s2, 7\ns_add_u32 s64, s64, s63\ns_add_u32 s64, s64, s60" % (span - 1, npeer, span.bit_length() - 1))
            A("s_lshl_b32 s64, s64, %d\ns_add_u32 s66, s64, %d\ns_lshl_b32 s60, s60, %d\ns_add_u32 s60, s60, %d" % (mkstr, WS_MK, mkstr, WS_MK))
            A("v_and_b32 v50, %d, v%d\nv_lshlrev_b32 v50, %d, v50\nv_mov_b32 v51, 0\nv_mov_b32 v52, s%d" % (npeer - 1, vL, mkstr, sTAG))
            if stamp: A("s_mov_b32 s71, 0")
        only_wave(aw, l1)
        for c in cs:
            await_lds(LDS_C + 12, adapt[c], 1)
            A("s_mov_b64 exec, 1\nbuffer_store_dword v52, v51, %s, s66 offen %s\ns_mov_b64 exec, -1" % (WS, stpol))
            if adelay: A("s_waitcnt vmcnt(0)")
            A("buffer_load_dword v53, v50, %s, s60 offen %s" % (WS, ldpol))
            A("s_add_u32 s66, s66, 32768\ns_add_u32 s60, s60, 32768\ns_waitcnt vmcnt(0)")
            A("v_cmp_eq_u32 vcc, s%d, v53\ns_bcnt1_i32_b64 s63, vcc\ns_mov_b32 s61, 0" % sTAG)
            for thr, m in alev:
                A("s_cmp_ge_u32 s63, %d\ns_cselect_b32 s61, %d, s61" % (thr, m))
            A("v_mov_b32 v53, s61\nds_write_b32 v51, v53 offset:%d" % (LDS_C + 16))
            if stamp: A("s_min_u32 s63, s63, 63\ns_lshl_b32 s63, s63, %d\ns_or_b32 s71, s71, s63" % (6 * c))
        A("%s:" % l1)
    if adapt: adapt_cps([c for c, cp in enumerate(adapt) if cp < p1], True)
    A("v_lshrrev_b32 v40, 5, v%d\nv_mul_u32_u24 v40, %d, v40\nv_add_u32 v40, v40, v%d" % (vL, 61440 - 512, vVO))
    A("s_mul_i32 s98, s%d, 30720\ns_lshr_b32 s64, s%d, 4\ns_lshl_b32 s64, s64, 11\ns_add_u32 s98, s98, s64\ns_and_b32 s65, s3, 3\ns_lshl_b32 s64, s65, 9\ns_add_u32 s98, s98, s64\ns_add_u32 s98, s98, %d" % (sB, sREST, WS_QG))
    qld = "buffer_load_dwordx4 v[32:35], v40, %s, s98 offen %s" % (WS, ldpol)
    if p0 is None:
        await_lds(LDS_C + 12, p1, nap)
        poll([qld], [33, 35], 4)
    else:
        await_lds(LDS_C + 12, p0, 1)
        A(qld + "\ns_waitcnt vmcnt(0)")
        cmpn([33, 35])
        A("s_wqm_b64 s[60:61], vcc\ns_bcnt0_i32_b64 s63, s[60:61]\nv_mov_b32 v12, 0\nv_mov_b32 v13, s63\ns_mov_b64 exec, 1\nds_add_u32 v12, v13 offset:%d\ns_mov_b64 exec, -1" % (LDS_C + 16))
        A("s_cmp_eq_u32 s63, 64\ns_cbranch_scc1 L_qok")
        await_lds(LDS_C + 12, p1, nap)
        A("s_mov_b64 exec, s[60:61]")
        poll([qld], [33, 35], 4)
        A("L_qok:")
    A("v_mov_b32 v36, v32\nv_mov_b32 v37, v34\ns_lshl_b32 s63, s65, 8\ns_add_u32 s63, s63, %d\nv_permlane32_swap_b32 v36, v32\nv_permlane32_swap_b32 v37, v34" % LDS_Q)
    for a, b in ((36, 32), (37, 34)):
        A("v_lshlrev_b32 v12, 16, v%d\nv_lshlrev_b32 v13, 16, v%d\nv_and_b32 v14, 0xffff0000, v%d\nv_and_b32 v15, 0xffff0000, v%d" % (a, b, a, b))
        A("v_add_f32 v12, v12, v13\nv_add_f32 v14, v14, v15\nv_cvt_pk_bf16_f32 v%d, v12, v14" % a)
    A("v_and_b32 v9, 31, v%d\nv_lshl_add_u32 v9, v9, 3, s63" % vL)
    A("ds_write2_b32 v9, v36, v37 offset0:0 offset1:1")
    bump(LDS_C + 8)
    only_wave(5, "L_noside")
    A("v_min_u32 v40, 13, v11\nv_lshrrev_b32 v40, 1, v40\nv_lshlrev_b32 v40, 3, v40")
    A("s_mul_i32 s63, s%d, 7\ns_mul_i32 s64, s%d, 3840\ns_add_u32 s63, s63, s64\ns_lshl_b32 s63, s63, 3\ns_add_u32 s63, s63, %d" % (sREST, sB, WS_QG + 2048 * 8))
    A("v_and_b32 v41, 1, v10\nv_mul_u32_u24 v41, 61440, v41\nv_lshrrev_b32 v42, 1, v10\nv_mul_u32_u24 v42, %d, v42\nv_add3_u32 v40, v40, v41, v42\nv_add_u32 v40, s63, v40" % (896 * 8))
    poll(["buffer_load_dwordx2 v[32:33], v40, %s, 0 offen %s" % (WS, ldpol)], [33], 4)
    A("v_and_b32 v34, 1, v%d\nv_cmp_eq_u32 vcc, 1, v34\nv_lshlrev_b32 v34, 16, v32\nv_and_b32 v35, 0xffff0000, v32" % vL)
    A("v_cndmask_b32 v34, v34, v35, vcc\nv_cmp_gt_u32 vcc, 14, v11\nv_mov_b32 v35, v34\ns_nop 1\nv_permlane16_swap_b32 v35, v34\nv_add_f32 v34, v34, v35")
    A("v_mov_b32 v36, v34\ns_nop 1\nv_permlane32_swap_b32 v34, v36")
    A("v_mul_f32 v34, 0x%08x, v34\nv_exp_f32 v34, v34\nv_sub_f32 v37, 1.0, v%d\nv_add_f32 v34, 1.0, v34\nv_rcp_f32 v34, v34\nv_mul_f32 v36, v36, v37" % (f2u(-LOG2E), vG))
    A("v_mul_f32 v34, v34, v36\nv_cndmask_b32 v34, 0, v34, vcc")
    A("v_and_b32 v35, 7, v11\nv_lshlrev_b32 v35, 3, v35\nv_lshrrev_b32 v36, 3, v11\nv_lshl_add_u32 v35, v36, 2, v35")
    A("ds_write_b32 v35, v34 offset:%d" % LDS_H)
    A("v_and_b32 v40, 3, v%d\nv_lshlrev_b32 v40, 4, v40\nv_bfe_u32 v41, v%d, 2, 1\nv_lshl_add_u32 v41, v41, 6, v40" % (vL, vL))
    A("s_lshl_b32 s64, s%d, 7\ns_add_u32 s64, s64, %d\nv_mov_b32 v45, s%d\nv_mov_b32 v47, s%d" % (sSLOT, WS_ML, sTAG, sTAG))
    await_lds(LDS_C + 4, 4, nap)
    A("ds_read_b128 v[32:35], v40 offset:%d\nds_read_b128 v[36:39], v40 offset:%d" % (LDS_M, LDS_L))
    A("v_and_b32 v42, 12, v%d\nv_add_u32 v42, v42, v40\nds_read_b32 v43, v42 offset:%d" % (vL, LDS_M))
    A("s_waitcnt lgkmcnt(0)\nv_max3_f32 v44, v32, v33, v34\nv_max_f32 v44, v44, v35")
    for w in range(4): A("v_sub_f32 v%d, v%d, v44" % (32 + w, 32 + w))
    for w in range(4): A("v_exp_f32 v%d, v%d" % (32 + w, 32 + w))
    A("v_mul_f32 v46, v32, v36")
    for w in range(1, 4): A("v_fmac_f32 v46, v%d, v%d" % (32 + w, 36 + w))
    A("s_mov_b64 exec, 0xff")
    A("buffer_store_dwordx4 v[44:47], v41, %s, s64 offen %s" % (WS, stpol))
    A("s_mov_b64 exec, -1")
    ST("pubML")
    A("s_and_b32 s64, s%d, 0xf0\ns_lshl_b32 s64, s64, 7\ns_add_u32 s64, s64, %d" % (sSLOT, WS_ML))
    A("v_lshrrev_b32 v41, 2, v%d\nv_lshl_add_u32 v41, v41, 7, v40" % vL)
    await_lds(LDS_C + 12, p2, nap)
    poll(["buffer_load_dwordx4 v[32:35], v41, %s, s64 offen %s" % (WS, ldpol)], [33, 35], 4)
    A("v_mov_b32 v36, v32\ns_nop 1")
    for c in ("row_ror:4", "row_ror:8"):
        dpp("v_max_f32", 36, 36, 36, c); A("s_nop 1")
    xrows("v_max_f32", 36, 37)
    A("v_sub_f32 v37, v32, v36\nv_exp_f32 v37, v37\ns_nop 0\nv_mul_f32 v37, v37, v34\ns_nop 1")
    for c in ("row_ror:4", "row_ror:8"):
        dpp("v_add_f32", 37, 37, 37, c); A("s_nop 1")
    xrows("v_add_f32", 37, 38)
    A("v_sub_f32 v43, v43, v36\nv_rcp_f32 v37, v37\nv_exp_f32 v43, v43\nv_mul_f32 v37, v37, v%d\nv_mul_f32 v43, v43, v37" % vG)
    A("ds_write_b32 v42, v43 offset:%d" % LDS_F)
    A("L_noside:")
    if adapt: adapt_cps([c for c, cp in enumerate(adapt) if cp >= p1])
    A("s_cmp_lg_u32 s2, 255\ns_cbranch_scc1 L_noep")
    only_wave(7, "L_noep")
    A("v_lshlrev_b32 v48, 9, v%d\ns_mov_b32 s64, %d" % (vL, WS_ML))
    await_lds(LDS_C + 12, pe, nap)
    poll(["buffer_load_dwordx4 v[%d:%d], v48, %s, s64 offen offset:%d %s" % (32 + 4 * a, 35 + 4 * a, WS, 128 * a, ldpol) for a in range(4)], [33 + 2 * a for a in range(8)], 8)
    A("v_mov_b32 v48, %d\nv_mov_b32 v49, s%d\ns_mov_b64 exec, 1" % (WS_EPOCH, sTAG))
    A("buffer_store_dword v49, v48, %s, 0 offen %s" % (WS, stpol))
    A("s_mov_b64 exec, -1")
    A("L_noep:")
    w2_prep()
    A("v_lshrrev_b32 v11, 1, v%d\nv_lshlrev_b32 v11, 4, v11\nv_and_b32 v13, 1, v%d\nv_mul_u32_u24 v13, %d, v13" % (vL, vL, HFS))
    A("s_and_b32 s65, s3, 1\ns_lshl_b32 s63, s65, 9\nv_add3_u32 v11, v11, v13, s63")
    A("v_lshrrev_b32 v14, 5, v%d\nv_lshlrev_b32 v14, 4, v14\ns_lshl_b32 s63, s65, 5\nv_add_u32 v14, s63, v14" % vL)
    A("s_lshl_b32 s99, s%d, 11\ns_lshl_b32 s63, s65, 10\ns_add_u32 s99, s99, s63\ns_add_u32 s99, s99, %d" % (sSLOT, WS_OP))
    A("v_lshlrev_b32 v15, 11, v9\nv_lshl_add_u32 v15, v12, 4, v15")
    A("s_and_b32 s100, s%d, 0xf0\ns_lshl_b32 s63, s65, 3\ns_add_u32 s100, s100, s63\ns_lshl_b32 s100, s100, 11\ns_and_b32 s63, s%d, 15\ns_lshl_b32 s63, s63, 7\ns_add_u32 s100, s100, s63\ns_add_u32 s100, s100, %d" % (sSLOT, sREST, WS_OP))
    A("v_mov_b32 v%d, s%d\nv_mov_b32 v%d, s%d" % (PUB + 1, sTAG, PUB + 3, sTAG))
    if touch:
        await_lds(LDS_C + 12, pt, nap)
        if touch & 1:
            A("s_cmp_ge_u32 s3, 6\ns_cbranch_scc0 L_t1")
            A(opl)
            A("L_t1:")
        if touch & 4:
            A("s_xor_b32 s63, s%d, %d\ns_lshl_b32 s63, s63, 11\ns_and_b32 s64, s3, 1\ns_lshl_b32 s64, s64, 10\ns_add_u32 s63, s63, s64\ns_add_u32 s63, s63, %d" % (sSLOT, tx, WS_OP))
            A("s_and_b32 s64, s3, 2\ns_mul_i32 s64, s64, %d\ns_add_u32 s63, s63, s64" % ((WS_YP - WS_OP) // 2))
            A("buffer_load_dwordx4 v[%d:%d], v%d, %s, s63 offen %s" % (T + 20, T + 23, vVO, WS, tpol))
        if tout:
            A("s_cmp_lt_u32 s%d, 96\ns_cbranch_scc1 L_t3\ns_lshl_b32 s63, s%d, 10\ns_sub_u32 s64, s%d, 96\ns_lshr_b32 s64, s64, 2\ns_lshl_b32 s64, s64, 7\ns_add_u32 s63, s63, s64\nv_mov_b32 v12, s63" % (sREST, sB, sREST))
            only_wave(4, "L_t3")
            A("global_load_dword v%d, v12, s[24:25]\nL_t3:" % (T + 21))
        if touch & 2:
            A("s_cmp_lt_u32 s%d, 96\ns_cbranch_scc1 L_t2" % sREST)
            A("v_lshrrev_b32 v12, 2, v%d\nv_lshlrev_b32 v12, 11, v12\nv_and_b32 v13, 3, v%d\nv_lshl_add_u32 v12, v13, 4, v12" % (vL, vL))
            A("s_lshl_b32 s64, s%d, 7\ns_and_b32 s63, s3, 3\ns_lshl_b32 s63, s63, 5\ns_add_u32 s64, s64, s63\ns_lshl_b32 s64, s64, 11\ns_sub_u32 s63, s%d, 96\ns_lshl_b32 s63, s63, 6\ns_add_u32 s64, s64, s63\ns_add_u32 s64, s64, %d\ns_add_u32 s63, s64, 32768" % (sB, sREST, WS_YP))
            A("buffer_load_dwordx4 v[%d:%d], v12, %s, s64 offen %s\nbuffer_load_dwordx4 v[%d:%d], v12, %s, s63 offen %s" % (T + 20, T + 23, WS, ldpol, T + 20, T + 23, WS, ldpol))
            A("L_t2:")
    A("s_cmp_ge_u32 s3, 6\ns_cselect_b32 s60, %d, %d" % (0 if preG else 1, 0 if preP else 1))
    if preG or preP:
        A("s_cmp_eq_u32 s60, 1\ns_cbranch_scc1 L_nopre")
        await_lds(LDS_C + 12, pe, nap)
        load_wd(0); load_wd(1)
        for a in range(4): load_wo(a)
        A("L_nopre:")
    A("s_waitcnt lgkmcnt(0)\ns_barrier")
    ST("B5")
    x = lambda k: T + k
    A("s_cmp_ge_u32 s3, 6\ns_cbranch_scc0 L_pub")
    A(opl)
    A("s_branch L_join\nL_pub:")
    A("ds_read_b128 v[%d:%d], v14 offset:%d" % (x(16), x(19), LDS_F))
    for w in range(4):
        A("ds_read_b128 v[%d:%d], v11 offset:%d" % (x(4 * w), x(4 * w + 3), LDS_O + w * WVS))
    for w in range(4):
        A("s_waitcnt lgkmcnt(%d)" % (3 - w))
        for j in (0, 2):
            sel = "op_sel:[0,%d,0] op_sel_hi:[1,%d,1]" % (w & 1, w & 1)
            if w == 0: A("v_pk_mul_f32 v[%d:%d], v[%d:%d], v[%d:%d] op_sel:[0,0] op_sel_hi:[1,0]" % (x(j), x(j + 1), x(j), x(j + 1), x(16), x(17)))
            else: A("v_pk_fma_f32 v[%d:%d], v[%d:%d], v[%d:%d], v[%d:%d] %s" % (x(j), x(j + 1), x(4 * w + j), x(4 * w + j + 1), x(16 + (w & 2)), x(17 + (w & 2)), x(j), x(j + 1), sel))
    A("v_cvt_pk_bf16_f32 v%d, v%d, v%d\nv_cvt_pk_bf16_f32 v%d, v%d, v%d" % (PUB, x(0), x(1), PUB + 2, x(2), x(3)))
    A("buffer_store_dwordx4 v[%d:%d], v%d, %s, s99 offen %s" % (PUB, PUB + 3, vVO, WS, stpol))

    A("L_join:")
    ST("pubO")
    if b5b: A("s_barrier")
    A("s_cmp_eq_u32 s60, 0\ns_cbranch_scc1 L_nopost")
    load_wd(0); load_wd(1)
    for a in range(4): load_wo(a)
    A("L_nopost:")
    A("v_lshlrev_b32 v13, 3, v9\nds_read_b64 v[%d:%d], v13 offset:%d" % (vHH, vHH + 1, LDS_H))
    A("v_lshlrev_b32 v13, 4, v9")
    A("v_and_b32 v12, 7, v%d\nv_lshrrev_b32 v80, 4, v%d" % (vL, vL))
    A("v_lshlrev_b32 v14, 4, v12\nv_lshrrev_b32 v81, 1, v80\nv_lshl_add_u32 v14, v81, 7, v14")
    A("s_lshl_b32 s99, s%d, 11\ns_lshl_b32 s63, s3, 8\ns_add_u32 s99, s99, s63\ns_add_u32 s99, s99, %d" % (sSLOT, WS_YP))
    A("v_and_b32 v11, 1, v12\nv_lshlrev_b32 v11, 6, v11\nv_lshl_add_u32 v11, v80, 4, v11\nv_lshrrev_b32 v12, 1, v12\nv_lshl_add_u32 v11, v12, 2, v11\ns_and_b32 s63, s3, 1\ns_lshl_b32 s63, s63, 7\nv_add_u32 v11, s63, v11")
    A("s_waitcnt vmcnt(4)\ns_cmp_eq_u32 s60, 1\ns_cbranch_scc1 L_wd\ns_waitcnt vmcnt(1)\nL_wd:")
    A("s_waitcnt lgkmcnt(0)")
    for a in range(2):
        for j in range(4):
            A("v_lshlrev_b32 v80, 16, v%d\nv_and_b32 v81, 0xffff0000, v%d" % (WDR + 4 * a + j, WDR + 4 * a + j))
            op = "v_mul_f32" if a == 0 else "v_fmac_f32"
            A("%s v%d, v%d, v80\n%s v%d, v%d, v81" % (op, YA + 2 * j, vHH + a, op, YA + 2 * j + 1, vHH + a))
    A("s_cmp_eq_u32 s60, 0\ns_cbranch_scc1 L_wo\ns_waitcnt vmcnt(0)\nL_wo:")
    for r in range(16):
        A("v_lshlrev_b32 v%d, 16, v%d\nv_and_b32 v%d, 0xffff0000, v%d" % (WOF + 2 * r, WOR + r, WOF + 2 * r + 1, WOR + r))
    def unpack4(b):
        A("v_lshlrev_b32 v%d, 16, v%d\nv_lshlrev_b32 v%d, 16, v%d\nv_and_b32 v%d, 0xffff0000, v%d\nv_and_b32 v%d, 0xffff0000, v%d\ns_nop 0" % (x(4), b, x(6), b + 2, x(5), b, x(7), b + 2))
    def mpoll(ns, sleep):
        if ns == 1:
            poll([opl], [x(1), x(3)], sleep, first=False); unpack4(x(0)); return
        base = [x(0)] + [x(8 + 4 * k) for k in range(ns - 1)]
        ld = lambda k: "buffer_load_dwordx4 v[%d:%d], v15, %s, s100 offen %s" % (base[k], base[k] + 3, WS, ldpol)
        pend = [34, 40, 42, 32][:ns]
        lo, fin = newlabel("mp"), newlabel("mf")
        A("s_waitcnt vmcnt(0)")
        cmpn([base[0] + 1, base[0] + 3])
        A("s_wqm_b64 exec, vcc\ns_cbranch_scc0 %s_0\ns_mov_b32 s62, 0" % fin)
        A("s_mov_b64 s[%d:%d], exec" % (pend[0], pend[0] + 1))
        A(ld(0))
        A("s_mov_b64 exec, -1")
        for k in range(1, ns):
            A("s_mov_b64 s[%d:%d], -1\ns_sleep %d" % (pend[k], pend[k] + 1, stag)); A(ld(k))
        A("%s:" % lo)
        for k in range(ns):
            A("s_mov_b64 exec, s[%d:%d]\ns_waitcnt vmcnt(%d)" % (pend[k], pend[k] + 1, ns - 1))
            cmpn([base[k] + 1, base[k] + 3])
            A("s_wqm_b64 exec, vcc\ns_cbranch_scc0 %s_%d" % (fin, k))
            A("s_mov_b64 s[%d:%d], exec" % (pend[k], pend[k] + 1))
            A(ld(k))
        A("s_add_u32 s62, s62, 1\ns_cmp_gt_u32 s62, %d\ns_cbranch_scc0 %s\ns_branch L_bail" % (spin, lo))
        for k in range(ns - 1, -1, -1):
            A("%s_%d:\ns_mov_b64 exec, -1" % (fin, k)); unpack4(base[k])
            if k: A("s_branch %s" % fin)
        A("%s:" % fin)
    def red4(steps):
        A("v_permlane32_swap_b32 v%d, v%d\nv_permlane32_swap_b32 v%d, v%d\nv_add_f32 v%d, v%d, v%d\nv_add_f32 v%d, v%d, v%d\ns_nop 1" % (x(4), x(6), x(5), x(7), x(4), x(4), x(6), x(5), x(5), x(7)))
        A("v_permlane16_swap_b32 v%d, v%d\nv_add_f32 v%d, v%d, v%d" % (x(4), x(5), x(4), x(4), x(5)))
        for c in steps:
            A("s_nop 1"); dpp("v_add_f32", x(4), x(4), x(4), c)
    A("s_cmp_lt_u32 s3, 6\ns_cbranch_scc1 L_nog2")
    mpoll(ns1, sleep1)
    red4(["row_ror:8"])
    A("ds_write_b32 v11, v%d offset:%d\ns_waitcnt lgkmcnt(0)" % (x(4), LDS_o))
    A("L_nog2:")
    ST("og")
    A("s_barrier")
    y = lambda k: T + 24 + k
    A("ds_read_b128 v[%d:%d], v13 offset:%d\nds_read_b128 v[%d:%d], v13 offset:%d" % (y(0), y(3), LDS_o, y(4), y(7), LDS_o + 128))
    A("s_waitcnt lgkmcnt(0)")
    A("v_pk_add_f32 v[%d:%d], v[%d:%d], v[%d:%d]\nv_pk_add_f32 v[%d:%d], v[%d:%d], v[%d:%d]" % (y(0), y(1), y(0), y(1), y(4), y(5), y(2), y(3), y(2), y(3), y(6), y(7)))
    for a in range(4):
        for j in range(0, 8, 2):
            lo = a & 1
            A("v_pk_fma_f32 v[%d:%d], v[%d:%d], v[%d:%d], v[%d:%d] op_sel:[0,%d,0] op_sel_hi:[1,%d,1]" % (YA + j, YA + j + 1, WOF + 8 * a + j, WOF + 8 * a + j + 1, y(a & 2), y((a & 2) + 1), YA + j, YA + j + 1, lo, lo))
    A("s_nop 1")
    for k in range(4): A("v_permlane32_swap_b32 v%d, v%d" % (YA + k, YA + k + 4))
    for k in range(4): A("v_add_f32 v%d, v%d, v%d" % (YA + k, YA + k, YA + k + 4))
    A("s_nop 0\nv_permlane16_swap_b32 v%d, v%d\nv_permlane16_swap_b32 v%d, v%d" % (YA, YA + 2, YA + 1, YA + 3))
    A("v_add_f32 v%d, v%d, v%d\nv_add_f32 v%d, v%d, v%d\ns_nop 0" % (YA, YA, YA + 2, YA + 1, YA + 1, YA + 3))
    dpp("v_add_f32", YA, YA, YA, "row_ror:8"); dpp("v_add_f32", YA + 1, YA + 1, YA + 1, "row_ror:8")
    A("v_cvt_pk_bf16_f32 v%d, v%d, v%d\nv_cvt_pk_bf16_f32 v%d, v%d, v%d\ns_nop 1\nv_permlane16_swap_b32 v%d, v%d" % (PUB + 2, YA, YA + 1, PUB, YA, YA + 1, PUB, PUB + 2))
    A("s_mov_b32 exec_lo, 0xff\ns_mov_b32 exec_hi, 0xff")
    A("buffer_store_dwordx4 v[%d:%d], v14, %s, s99 offen %s" % (PUB, PUB + 3, WS, stpol))
    A("s_mov_b64 exec, -1")
    ST("pubY")
    if nred == 64:
        A("s_cmp_lt_u32 s%d, 96\ns_cbranch_scc1 L_exit" % sREST)
        A("v_lshrrev_b32 v15, 2, v%d\nv_lshlrev_b32 v15, 11, v15\nv_and_b32 v9, 3, v%d\nv_lshl_add_u32 v15, v9, 4, v15" % (vL, vL))
        A("s_lshl_b32 s100, s%d, 7\ns_lshl_b32 s63, s3, 4\ns_add_u32 s100, s100, s63\ns_lshl_b32 s100, s100, 11\ns_sub_u32 s64, s%d, 96\ns_lshl_b32 s63, s64, 6\ns_add_u32 s100, s100, s63\ns_add_u32 s100, s100, %d" % (sB, sREST, WS_YP))
        A(opl)
        A("v_lshlrev_b32 v9, 4, v9\nv_lshrrev_b32 v10, 4, v%d\nv_lshl_add_u32 v9, v10, 2, v9\ns_lshl_b32 s63, s3, 6\nv_add_u32 v9, s63, v9" % vL)
        A("v_and_b32 v10, 7, v%d\nv_lshlrev_b32 v11, 3, v10\nv_lshrrev_b32 v12, 1, v10\nv_and_b32 v10, 1, v10\nv_lshlrev_b32 v10, 2, v10\nv_lshl_add_u32 v10, v12, 4, v10" % vL)
        A("s_lshl_b32 s63, s%d, 10\ns_lshr_b32 s65, s64, 2\ns_lshl_b32 s65, s65, 7\ns_add_u32 s63, s63, s65\ns_and_b32 s65, s64, 1\ns_lshl_b32 s65, s65, 6\ns_add_u32 s63, s63, s65\ns_and_b32 s65, s64, 2\ns_lshl_b32 s65, s65, 2\ns_add_u32 s63, s63, s65\nv_add_u32 v10, s63, v10" % sB)
        mpoll(ns2, sleep2)
        ST("yg")
        red4(["row_ror:4", "row_ror:8"])
        A("ds_write_b32 v9, v%d offset:%d\ns_waitcnt lgkmcnt(0)\ns_barrier" % (x(4), LDS_R))
        only_wave(0, "L_exit")
        for w in range(8):
            A("ds_read_b64 v[%d:%d], v11 offset:%d" % (64 + 2 * w, 65 + 2 * w, LDS_R + 64 * w))
        A("s_waitcnt lgkmcnt(4)\nv_pk_add_f32 v[64:65], v[64:65], v[66:67]\nv_pk_add_f32 v[68:69], v[68:69], v[70:71]\nv_pk_add_f32 v[64:65], v[64:65], v[68:69]")
        A("s_waitcnt lgkmcnt(0)\nv_pk_add_f32 v[72:73], v[72:73], v[74:75]\nv_pk_add_f32 v[76:77], v[76:77], v[78:79]\nv_pk_add_f32 v[72:73], v[72:73], v[76:77]\nv_pk_add_f32 v[64:65], v[64:65], v[72:73]")
        A("s_mov_b64 exec, 0xff\nv_cvt_pk_bf16_f32 v64, v64, v65")
    else:
        A("s_cmp_lt_u32 s%d, 112\ns_cbranch_scc1 L_exit" % sREST)
        A("v_lshrrev_b32 v15, 3, v%d\nv_lshlrev_b32 v15, 11, v15\nv_and_b32 v9, 7, v%d\nv_lshl_add_u32 v15, v9, 4, v15" % (vL, vL))
        A("s_lshl_b32 s100, s%d, 7\ns_lshl_b32 s63, s3, 4\ns_add_u32 s100, s100, s63\ns_lshl_b32 s100, s100, 11\ns_sub_u32 s64, s%d, 112\ns_lshl_b32 s63, s64, 7\ns_add_u32 s100, s100, s63\ns_add_u32 s100, s100, %d\ns_add_u32 s99, s100, 16384" % (sB, sREST, WS_YP))
        fl = [opl, "buffer_load_dwordx4 v[%d:%d], v15, %s, s99 offen %s" % (x(8), x(11), WS, ldpol)]
        A(fl[0]); A(fl[1])
        A("v_lshlrev_b32 v9, 4, v9\nv_lshrrev_b32 v10, 4, v%d\nv_lshl_add_u32 v9, v10, 2, v9\ns_lshl_b32 s63, s3, 7\nv_add_u32 v9, s63, v9" % vL)
        A("v_and_b32 v10, 15, v%d\nv_lshlrev_b32 v11, 3, v10\nv_lshrrev_b32 v12, 1, v10\nv_and_b32 v10, 1, v10\nv_lshlrev_b32 v10, 2, v10\nv_lshl_add_u32 v10, v12, 4, v10" % vL)
        A("s_lshl_b32 s63, s%d, 10\ns_lshr_b32 s65, s64, 1\ns_lshl_b32 s65, s65, 7\ns_add_u32 s63, s63, s65\ns_and_b32 s65, s64, 1\ns_lshl_b32 s65, s65, 3\ns_add_u32 s63, s63, s65\nv_add_u32 v10, s63, v10" % sB)
        poll(fl, [x(1), x(3), x(9), x(11)], sleep2, first=False)
        ST("yg")
        A("v_lshlrev_b32 v%d, 16, v%d\nv_lshlrev_b32 v%d, 16, v%d\nv_and_b32 v%d, 0xffff0000, v%d\nv_and_b32 v%d, 0xffff0000, v%d" % (x(12), x(8), x(14), x(10), x(13), x(8), x(15), x(10)))
        unpack4(x(0))
        A("v_pk_add_f32 v[%d:%d], v[%d:%d], v[%d:%d]\nv_pk_add_f32 v[%d:%d], v[%d:%d], v[%d:%d]\ns_nop 1" % (x(4), x(5), x(4), x(5), x(12), x(13), x(6), x(7), x(6), x(7), x(14), x(15)))
        red4(["row_ror:8"])
        A("ds_write_b32 v9, v%d offset:%d\ns_waitcnt lgkmcnt(0)\ns_barrier" % (x(4), LDS_A))
        only_wave(0, "L_exit")
        for w in range(8):
            A("ds_read_b64 v[%d:%d], v11 offset:%d" % (64 + 2 * w, 65 + 2 * w, LDS_A + 128 * w))
        A("s_waitcnt lgkmcnt(4)\nv_pk_add_f32 v[64:65], v[64:65], v[66:67]\nv_pk_add_f32 v[68:69], v[68:69], v[70:71]\nv_pk_add_f32 v[64:65], v[64:65], v[68:69]")
        A("s_waitcnt lgkmcnt(0)\nv_pk_add_f32 v[72:73], v[72:73], v[74:75]\nv_pk_add_f32 v[76:77], v[76:77], v[78:79]\nv_pk_add_f32 v[72:73], v[72:73], v[76:77]\nv_pk_add_f32 v[64:65], v[64:65], v[72:73]")
        A("s_mov_b64 exec, 0xffff\nv_cvt_pk_bf16_f32 v64, v64, v65")
    A("global_store_dword v10, v64, s[24:25] %s" % outpol)
    A("s_mov_b64 exec, -1")
    A("L_exit:")
    if gprobe:
        name, ref = gprobe
        only_wave(0, "L_gp1")
        ST("end")
        A("s_waitcnt lgkmcnt(0)\ns_lshl_b32 s63, s2, 7\ns_add_u32 s63, s63, %d\nv_mov_b32 v20, s70\nv_mov_b32 v21, s%d\nv_mov_b32 v22, s%d\nv_mov_b32 v23, s%d\nv_mov_b32 v24, 0" % (WS_MK, sTAG, stn[name], sTAG))
        A("s_mov_b64 exec, 1\nbuffer_store_dwordx4 v[20:23], v24, %s, s63 offen sc1\ns_mov_b64 exec, -1" % WS)
        A("L_gp1:")
        only_wave(7, "L_gp2")
        A("s_cmp_lg_u32 s2, 0\ns_cbranch_scc1 L_gp2")
        A("L_gpw:\ns_sleep 16\ns_memrealtime s[64:65]\ns_waitcnt lgkmcnt(0)\ns_sub_u32 s64, s64, s70\ns_cmp_lt_u32 s64, 3500\ns_cbranch_scc1 L_gpw")
        A("v_lshlrev_b32 v48, 9, v%d\ns_mov_b32 s64, %d" % (vL, WS_MK))
        poll(["buffer_load_dwordx4 v[%d:%d], v48, %s, s64 offen offset:%d sc1" % (32 + 4 * a, 35 + 4 * a, WS, 128 * a) for a in range(4)], [33 + 2 * a for a in range(8)], 8)
        for a in range(8): A("v_subrev_u32 v%d, s70, v%d" % (32 + 2 * a, 32 + 2 * a))
        op0 = "v_max_i32" if ref == "late" else "v_min_i32"
        A("%s v50, v32, v36\n%s v51, v40, v44\n%s v50, v50, v51\nv_max_i32 v52, v34, v38\nv_max_i32 v51, v42, v46\nv_max_i32 v52, v52, v51\ns_nop 1" % (op0, op0, op0))
        for r, op in ((50, op0), (52, "v_max_i32")):
            for c in ("quad_perm:[1,0,3,2]", "quad_perm:[2,3,0,1]", "row_half_mirror", "row_mirror"):
                dpp(op, r, r, r, c); A("s_nop 1")
            xrows(op, r, 54)
        A("v_sub_u32 v52, v52, v50\ns_nop 0\nv_readfirstlane_b32 s63, v52\ns_sub_u32 s63, s63, %d\ns_max_i32 s63, s63, 0\ns_mul_i32 s63, s63, 10\ns_add_u32 s63, s63, 6000" % aoff)
        A("L_gpl:\ns_sleep 4\ns_memrealtime s[64:65]\ns_waitcnt lgkmcnt(0)\ns_sub_u32 s64, s64, s70\ns_cmp_lt_u32 s64, s63\ns_cbranch_scc1 L_gpl")
        A("L_gp2:")
    if skewprobe:
        only_wave(7, "L_sk1")
        A("s_waitcnt lgkmcnt(0)\ns_lshl_b32 s63, s2, 7\ns_add_u32 s63, s63, %d\nv_mov_b32 v20, s70\nv_mov_b32 v21, s%d\nv_mov_b32 v22, 0" % (WS_MK, sTAG))
        A("s_mov_b64 exec, 1\nbuffer_store_dwordx2 v[20:21], v22, %s, s63 offen sc1\ns_mov_b64 exec, -1" % WS)
        A("s_cmp_lg_u32 s2, 255\ns_cbranch_scc1 L_sk1")
        A("v_lshlrev_b32 v48, 9, v%d\ns_mov_b32 s64, %d" % (vL, WS_MK))
        poll(["buffer_load_dwordx2 v[%d:%d], v48, %s, s64 offen offset:%d sc1" % (32 + 2 * a, 33 + 2 * a, WS, 128 * a) for a in range(4)], [33, 35, 37, 39], 8)
        for a in range(4): A("v_subrev_u32 v%d, s70, v%d" % (32 + 2 * a, 32 + 2 * a))
        A("v_min_i32 v40, v32, v34\nv_min_i32 v41, v36, v38\nv_min_i32 v40, v40, v41\nv_max_i32 v42, v32, v34\nv_max_i32 v41, v36, v38\nv_max_i32 v42, v42, v41\ns_nop 1")
        for r, op in ((40, "v_min_i32"), (42, "v_max_i32")):
            for c in ("quad_perm:[1,0,3,2]", "quad_perm:[2,3,0,1]", "row_half_mirror", "row_mirror"):
                dpp(op, r, r, r, c); A("s_nop 1")
            xrows(op, r, 44)
        A("v_sub_u32 v42, v42, v40\ns_nop 0\nv_readfirstlane_b32 s63, v42\nv_readfirstlane_b32 s62, v40\ns_mul_i32 s63, s63, %d\ns_add_u32 s63, s63, 6000\ns_add_u32 s63, s63, s62" % (skewprobe - 1))
        A("L_skl:\ns_sleep 4\ns_memrealtime s[64:65]\ns_waitcnt lgkmcnt(0)\ns_sub_u32 s64, s64, s70\ns_cmp_lt_u32 s64, s63\ns_cbranch_scc1 L_skl")
        A("L_sk1:")
    if probe:
        ST("end")
        name, sign, waves = probe
        A("s_waitcnt lgkmcnt(0)")
        A("s_lshl_b32 s63, 1, s3\ns_and_b32 s63, s63, %d\ns_cbranch_scc0 L_pe" % waves)
        A("s_and_b32 s63, s2, 7\ns_lshl_b32 s63, 1, s63\ns_and_b32 s63, s63, %d\ns_cbranch_scc0 L_pe" % pslot)
        if prow is not None: A("s_lshr_b32 s63, s2, 3\ns_cmp_lg_u32 s63, %d\ns_cbranch_scc1 L_pe" % prow)
        if name == "W": A("s_cmp_ge_u32 s%d, 120\ns_cbranch_scc1 L_pe" % sREST)
        if name == "yg": A("s_cmp_lt_u32 s%d, 96\ns_cbranch_scc1 L_pe" % sREST)
        A("s_sub_u32 s63, s%d, s70" % stn[name])
        if amp > 1: A("s_sub_u32 s63, s63, %d\ns_max_i32 s63, s63, 0\ns_mul_i32 s63, s63, %d" % (aoff, amp))
        if sign < 0: A("s_sub_u32 s63, 4000, s63")
        A("s_add_u32 s63, s63, %d" % pbase)
        A("L_pl:\ns_sleep 4\ns_memrealtime s[64:65]\ns_waitcnt lgkmcnt(0)\ns_sub_u32 s64, s64, s70\ns_cmp_lt_u32 s64, s63\ns_cbranch_scc1 L_pl")
        A("L_pe:")
    if stamp:
        ST("end")
        A("s_waitcnt lgkmcnt(0)")
        A("s_lshl_b32 s63, s2, 3\ns_add_u32 s63, s63, s3\ns_lshl_b32 s63, s63, 6\ns_add_u32 s63, s63, %d\nv_mov_b32 v9, 0" % WS_STAMP)
        for i in range(0, 16, 4):
            for j in range(4):
                A("v_mov_b32 v%d, s%d" % (20 + j, 70 + 2 * (i + j)) if i + j < len(names) else "v_mov_b32 v%d, s71" % (20 + j))
            A("buffer_store_dwordx4 v[20:23], v9, %s, s63 offen offset:%d\ns_nop 1" % (WS, 4 * i))
    A("s_endpgm")
    A("L_bail:")
    A("s_mov_b64 exec, 1\nv_mov_b32 v9, 0\nv_mov_b32 v10, 0xdead\nglobal_store_dword v9, v10, s[26:27]")
    A("L_end:\ns_endpgm")
    L.append('.section .rodata,"a"\n.p2align 6\n.amdhsa_kernel %s_kernel' % NAME)
    L.append("  .amdhsa_next_free_vgpr 256\n  .amdhsa_next_free_sgpr 102\n  .amdhsa_accum_offset 256\n  .amdhsa_group_segment_fixed_size 0\n  .amdhsa_kernarg_size 104\n  .amdhsa_user_sgpr_count 2\n  .amdhsa_user_sgpr_kernarg_segment_ptr 1\n  .amdhsa_system_sgpr_workgroup_id_x 1\n.end_amdhsa_kernel")
    if now2:
        L[:] = [ln for ln in L if not (ln.strip().startswith("buffer_load") and ("s[48:51]" in ln or "s[52:55]" in ln))]
    if noside:
        out = []; inh = False
        for i, ln in enumerate(L):
            if ln == "L_helper:": inh = True
            if ln == "L_noep:": inh = False
            if inh:
                t = ln.strip()
                if t.startswith("buffer_store") and "s" in noside: continue
                if t.startswith("buffer_load") and "l" in noside: continue
                if t.startswith("global_load") and "x" in noside: continue
                if t.startswith("s_wqm_b64 exec, vcc"): ln = "    s_and_b64 vcc, 0, 0"
            out.append(ln)
        L[:] = out
    return "\n".join(L) + "\n"
```

```python
import sys, struct
NAME = "gated_mix__gqa_block_cached__glu_gated_glu__decode"
def f2u(x): return struct.unpack("<I", struct.pack("<f", x))[0]
LOG2E = 1.4426950408889634

WS_EPOCH = 0
WS_QG = 0x1000
WS_ML = 0x20000
WS_OP = 0x40000
WS_YP = 0xC0000
WS_MK = 0x140000
WS_STAMP = 0x400000
WS_USED = 0x180000
LDS_A = 0
LDS_Q = 4096
LDS_M = 5120
LDS_L = 5184
LDS_F = 5248
LDS_H = 5312
LDS_C = 5376
LDS_o = 5632
LDS_R = 5888
HFS = 1152
WVS = 2304
LDS_O = 6400
LDS_K = LDS_O + 4 * WVS
assert LDS_K % 256 == 0
LDS_END = LDS_K + 4 * 12288

class VM:
    def __init__(self): self.ops = []
    def issue(self, name, counted=True, w=None): self.ops.append((name, counted, (1.0 if counted else None) if w is None else w))
    def after(self, name):
        idx = max(i for i, (n, c, w) in enumerate(self.ops) if n == name)
        return sum(1 for n, c, w in self.ops[idx + 1:] if c)
    def pace_n(self, room):
        n = 0; tot = 0.0
        for name, c, w in reversed(self.ops):
            if w is None: continue
            if tot + w > room: return n, True
            tot += w; n += 1
        return n, False

def gen(d=5, dpat=None, d0=None, pol="nt", kpol=None, wpol="nt", w2pol="", stamp=False,
        p1=22, p2=100, pe=123, qk_at=37, outpol="", stpol="sc1", ldpol="sc1", spin=200000, header=None, probe=None, pbase=6000,
        sleep1=0, sleep2=0, nap=2, sprio=1, dend=None, lds_pad=0, adapt=None, db=7, alev=None, win=8, mkstr=7, npeer=16, adelay=True, aw=6, skewprobe=0, gprobe=None, pslot=255, prow=None, p0=None, thr=None, pm=16, pend=126, noside=None, pub4=True, ns1=1, ns2=1, stag=3, amp=1, aoff=2000, preG=True, preP=False, b5b=True, ssl=0, now2=False, touch=0, pt=116, tx=1, tpol="", tearly=False, tout=False, par=0, dodd=None, nred=64, plate=0, pbase0=0, tlb=0, xmap=False, lateg=0, stlb=0, pstl=12):
    if kpol is None: kpol = pol
    if d0 is None: d0 = d
    L = []
    def A(s):
        for line in s.strip("\n").split("\n"):
            t = line.strip()
            L.append(t if t.endswith(":") else "    " + t)
    vm = VM()
    diag = stamp or probe or skewprobe or gprobe
    names = ["start", "W", "pubA", "qw", "q", "exp", "pubML", "V7", "B5", "pubO", "og", "pubY", "yg", "end"]
    stn = {n: 70 + 2 * i for i, n in enumerate(names)}
    def ST(name):
        if diag and (not gprobe or name in ("start", "end", gprobe[0])): A("s_memrealtime s[%d:%d]" % (stn[name], stn[name] + 1))
    def wait(name, extra=0):
        n = vm.after(name) + extra
        assert n <= 63
        A("s_waitcnt vmcnt(%d)" % n)
    npace = [0]; amode = [False]
    def pace(dd=None, w=1.0):
        if dodd and dd is None:
            de = dpat[npace[0] % len(dpat)] if dpat else d
            do = dodd[npace[0] % len(dodd)]
            npace[0] += 1
            (ne, need_e), (no, need_o) = vm.pace_n(de - w), vm.pace_n(do - w)
            if max(ne, no) != min(ne, no):
                l1 = newlabel("pc")
                if need_e and need_o: A("s_waitcnt vmcnt(%d)" % max(ne, no))
                A("s_cbranch_%s %s\ns_waitcnt vmcnt(%d)\n%s:" % ("vccnz" if ne < no else "vccz", l1, min(ne, no), l1))
            elif need_e: A("s_waitcnt vmcnt(%d)" % ne)
            return
        if amode[0] and dd is None:
            l1 = newlabel("pc")
            dd = dpat[npace[0] % len(dpat)] if dpat else d
            npace[0] += 1
            A("s_waitcnt vmcnt(%d)\ns_cbranch_vccnz %s\ns_waitcnt vmcnt(%d)\n%s:" % (vm.pace_n(db - w)[0], l1, vm.pace_n(dd - w)[0], l1))
            return
        if dd is None:
            dd = dpat[npace[0] % len(dpat)] if dpat else d
            npace[0] += 1
        n, need = vm.pace_n(dd - w)
        if need: A("s_waitcnt vmcnt(%d)" % n)
    lab = [0]
    def newlabel(p):
        lab[0] += 1; return "L_%s%d" % (p, lab[0])

    vL, vVO, vSP, vG = 1, 3, 4, 8
    Q0, O0, AX0, S0 = 16, 16, 24, 32
    vKS, vKR = 88, 92
    YA, PUB, vWO, vWD2, vHH = 64, 72, 76, 77, 78
    WOR, WDR, WOF, T = 128, 144, 160, 192
    def buf(i): return 96 + 16 * (i % 10)
    def Kreg(t): return buf(t)
    def Vreg(t): return buf(t + 6)
    sK, sV, sW, sWS, sWO, sWD = 32, 36, 40, 44, 48, 52
    sB, sREST, sTAG, sSTR = 30, 31, 56, 58
    sKO, sVO, sSLOT, sM0 = 66, 67, 59, 101
    sTILE, sRID = 57, 61
    WS = "s[%d:%d]" % (sWS, sWS + 3)
    tstep = 4 * 4096

    def dpp(op, dst, a, b, ctrl):
        A("%s_dpp v%d, v%d, v%d %s row_mask:0xf bank_mask:0xf" % (op, dst, a, b, ctrl))
    def xrows(op, x, t):
        A("v_mov_b32 v%d, v%d\ns_nop 1\nv_permlane16_swap_b32 v%d, v%d\n%s v%d, v%d, v%d" % (t, x, t, x, op, x, t, x))
        A("v_mov_b32 v%d, v%d\ns_nop 1\nv_permlane32_swap_b32 v%d, v%d\n%s v%d, v%d, v%d" % (t, x, t, x, op, x, t, x))
    def cmpn(tagregs):
        A("v_cmp_ne_u32 vcc, s%d, v%d" % (sTAG, tagregs[0]))
        for r in tagregs[1:]:
            A("v_cmp_ne_u32 s[68:69], s%d, v%d\ns_or_b64 vcc, vcc, s[68:69]" % (sTAG, r))
    def poll(loads, tagregs, sleep=0, first=True):
        lo, lc = newlabel("spin"), newlabel("chk")
        A("s_mov_b32 s62, 0")
        if not first: A("s_branch %s" % lc)
        elif sleep: A("s_branch %s_n" % lo)
        A("%s:" % lo)
        if sleep: A("s_sleep %d\n%s_n:" % (sleep, lo))
        for s in loads: A(s)
        A("s_add_u32 s62, s62, 1\ns_cmp_gt_u32 s62, %d\ns_cbranch_scc1 L_bail" % spin)
        A("%s:" % lc)
        A("s_waitcnt vmcnt(0)")
        cmpn(tagregs)
        A("s_wqm_b64 exec, vcc\ns_cbranch_scc1 %s" % lo)
        A("s_mov_b64 exec, -1")
    def bump(off):
        A("v_mov_b32 v12, 0\nv_mov_b32 v13, 1\ns_mov_b64 exec, 1\nds_add_u32 v12, v13 offset:%d\ns_mov_b64 exec, -1" % off)
    def await_lds(off, val, sleep):
        lo = newlabel("lw")
        A("v_mov_b32 v12, 0\ns_mov_b32 s62, 0\ns_branch %s_n\n%s:" % (lo, lo))
        if sleep: A("s_sleep %d" % sleep)
        A("%s_n:\nds_read_b32 v13, v12 offset:%d\ns_add_u32 s62, s62, 1\ns_cmp_gt_u32 s62, %d\ns_cbranch_scc1 L_bail" % (lo, off, spin * 8))
        A("s_waitcnt lgkmcnt(0)\nv_readfirstlane_b32 s63, v13\ns_cmp_lt_u32 s63, %d\ns_cbranch_scc1 %s" % (val, lo))
    def only_wave(w, skip): A("s_cmp_lg_u32 s3, %d\ns_cbranch_scc1 %s" % (w, skip))

    def srds2():
        A("s_mov_b32 s%d, s28\ns_mov_b32 s%d, s29\ns_mov_b32 s%d, %d\ns_mov_b32 s%d, 0x20000" % (sWS, sWS + 1, sWS + 2, 0x500000 if stamp else WS_USED, sWS + 3))
        A("s_mov_b32 s%d, s12\ns_mov_b32 s%d, s13\ns_mov_b32 s%d, 0x400000\ns_mov_b32 s%d, 0x20000" % (sWO, sWO + 1, sWO + 2, sWO + 3))
        A("s_mov_b32 s%d, s20\ns_mov_b32 s%d, s21\ns_mov_b32 s%d, 1835008\ns_mov_b32 s%d, 0x20000" % (sWD, sWD + 1, sWD + 2, sWD + 3))
    def tag():
        A("s_waitcnt lgkmcnt(0)")
        A("s_mul_i32 s%d, s%d, 0x9e3779b5\ns_add_u32 s%d, s%d, 0x7f4a7c15" % (sTAG, sTAG, sTAG, sTAG))
    def w2_prep():
        A("v_lshrrev_b32 v9, 3, v%d\nv_and_b32 v12, 7, v%d\nv_lshlrev_b32 v%d, 4, v12\nv_lshl_add_u32 v%d, v9, 10, v%d" % (vL, vL, vWO, vWO, vWO))
        A("v_cmp_gt_u32 s[68:69], 6, v9\nv_mov_b32 v13, 0x10000000\ns_mul_i32 s58, s%d, %d\ns_lshl_b32 s64, s3, 7\ns_add_u32 s58, s58, s64" % (sREST, 14 * 1024))
        A("v_cndmask_b32 v%d, v13, v%d, s[68:69]\ns_lshl_b32 s57, s%d, 15\ns_add_u32 s57, s57, s64" % (vWD2, vWO, sREST))
    def load_wo(a):
        A("buffer_load_dwordx4 v[%d:%d], v%d, s[%d:%d], s57 offen %s" % (WOR + 4 * a, WOR + 4 * a + 3, vWO, sWO, sWO + 3, w2pol))
        vm.issue("wo")
        if a < 3: A("s_add_u32 s57, s57, 8192")
    def load_wd(a):
        if a == 1: A("s_add_u32 s58, s58, 8192")
        A("buffer_load_dwordx4 v[%d:%d], v%d, s[%d:%d], s58 offen %s" % (WDR + 4 * a, WDR + 4 * a + 3, vWD2 if a else vWO, sWD, sWD + 3, w2pol)); vm.issue("wd")

    L.append((header or "") + "; @launch grid=(256,1,1) block=(512,1,1) lds=%d" % (LDS_END + lds_pad))
    if stamp: L.append("; stamps: " + " ".join(names))
    L.append('.amdgcn_target "amdgcn-amd-amdhsa--gfx950"\n.text\n.globl %s_kernel\n.p2align 8\n.type %s_kernel,@function\n%s_kernel:' % (NAME, NAME, NAME))
    A("s_cmp_ge_u32 s2, 256\ns_cbranch_scc1 L_end")
    A("s_load_dwordx16 s[4:19], s[0:1], 0\ns_load_dwordx8 s[20:27], s[0:1], 64\ns_load_dwordx2 s[28:29], s[0:1], 96")
    ST("start")
    A("v_lshrrev_b32 v9, 6, v0\nv_and_b32 v%d, 63, v0\nv_readfirstlane_b32 s3, v9" % vL)
    A("s_bfe_u32 s%d, s2, 0x10003" % sB)
    A("s_and_b32 s%d, s2, 7\ns_lshr_b32 s63, s2, 4\ns_lshl_b32 s63, s63, 3\ns_or_b32 s%d, s%d, s63" % (sREST, sREST, sREST))
    A("s_mov_b32 s%d, s%d\ns_mov_b32 s%d, s%d" % (sRID, sREST, sTILE, sREST))
    if xmap:
        A("s_and_b32 s64, s2, 7\ns_lshr_b32 s63, s2, 4\ns_lshl_b32 s%d, s64, 4\ns_or_b32 s%d, s%d, s63" % (sREST, sREST, sREST))
        A("s_sub_u32 s%d, s%d, s64\ns_cmp_eq_u32 s63, 15\ns_cselect_b32 s%d, 127, s%d" % (sTILE, sREST, sTILE, sTILE))
    A("s_lshl_b32 s%d, s%d, 7\ns_add_u32 s%d, s%d, s%d" % (sSLOT, sB, sSLOT, sSLOT, sREST))
    A("v_lshrrev_b32 v10, 4, v%d\nv_and_b32 v11, 15, v%d\nv_lshlrev_b32 v%d, 4, v%d" % (vL, vL, vVO, vL))
    A("s_cmp_ge_u32 s3, 4\ns_cbranch_scc1 L_helper")

    if sprio: A("s_setprio %d" % sprio)
    A("v_lshlrev_b32 v12, 2, v10\nv_xor_b32 v12, v12, v11\nv_lshlrev_b32 v12, 4, v12\nv_lshl_add_u32 v%d, v10, 8, v12" % vKS)
    for i in range(1, 4): A("v_xor_b32 v%d, %d, v%d" % (vKS + i, 16 * i, vKS))
    A("s_lshl_b32 s%d, s3, 12\ns_mov_b32 s%d, s%d" % (sKO, sVO, sKO))
    A("s_lshl_b32 s65, s%d, 18" % sSLOT)
    A("s_mul_i32 s%d, s3, 12288\ns_add_u32 s%d, s%d, %d" % (sM0, sM0, sM0, LDS_K))
    A("s_movk_i32 s%d, 3584\ns_cmp_lt_u32 s%d, 64\ns_cselect_b32 s%d, 8192, s%d" % (sSTR, sTILE, sSTR, sSTR))
    A("s_lshl_b32 s63, s%d, 4\nv_mul_u32_u24 v12, s63, v10\nv_lshl_add_u32 v12, v11, 3, v12" % sSTR)
    A("s_lshl_b32 s62, s%d, 2\ns_add_u32 s62, s62, s3\ns_lshl_b32 s62, s62, 6" % sB)
    A("v_bfe_u32 v13, v11, 2, 1\nv_lshlrev_b32 v13, 10, v13\nv_lshl_add_u32 v13, v10, 5, v13\ns_lshl_b32 s63, s62, 1\nv_add_u32 v13, s63, v13")
    A("s_mul_i32 s63, s62, s%d" % sSTR)
    A("s_sub_u32 s64, s%d, 64\ns_cmp_lt_u32 s%d, 64\ns_cselect_b32 s64, s%d, s64\ns_sub_u32 s62, s%d, 92\ns_cmp_ge_u32 s%d, 92\ns_cselect_b32 s64, s62, s64\ns_lshl_b32 s64, s64, 7" % (sTILE, sTILE, sTILE, sTILE, sTILE))
    A("s_mul_i32 s%d, s%d, 511\ns_add_u32 s%d, s%d, 128\ns_mov_b32 s%d, 0x20000" % (sW + 2, sSTR, sW + 2, sW + 2, sW + 3))
    A("s_mov_b32 s%d, 0x40000\ns_mov_b32 s%d, 0x20000" % (sK + 2, sK + 3))
    A("s_waitcnt lgkmcnt(0)")
    A("s_add_u32 s%d, s6, s65\ns_addc_u32 s%d, s7, 0" % (sK, sK + 1))
    A("s_cmp_ge_u32 s%d, 120\ns_cbranch_scc1 L_noA1" % sTILE)
    A("s_cmp_lt_u32 s%d, 64\ns_cselect_b32 s%d, s10, s16\ns_cselect_b32 s%d, s11, s17" % (sTILE, sW, sW + 1))
    A("s_cmp_ge_u32 s%d, 92\ns_cselect_b32 s%d, s18, s%d\ns_cselect_b32 s%d, s19, s%d" % (sTILE, sW, sW, sW + 1, sW + 1))
    A("s_add_u32 s%d, s%d, s64\ns_addc_u32 s%d, s%d, 0" % (sW, sW, sW + 1, sW + 1))
    A("global_load_dwordx4 v[64:67], v13, s[4:5]\nglobal_load_dwordx4 v[68:71], v13, s[4:5] offset:16")
    vm.issue("X", False); vm.issue("X", False)
    for q in range(16):
        pace(d0, 0.5)
        A("buffer_load_dwordx2 v[%d:%d], v12, s[%d:%d], s63 offen %s" % (32 + 2 * q, 33 + 2 * q, sW, sW + 3, wpol))
        vm.issue("W%d" % q, False, 0.5)
        if q < 15: A("s_add_u32 s63, s63, s%d" % sSTR)
    A("L_noA1:")
    slots = {}
    def at(i, f): slots.setdefault(i, []).append(f)
    def loadK(t, i):
        if i == 0:
            A("s_add_u32 s63, s%d, %d\ns_mov_b32 m0, s63" % (sM0, (t % 3) * 4096))
            A("s_waitcnt lgkmcnt(0)" if t >= 3 else "s_nop 0")
        A("buffer_load_dwordx4 v%d, s[%d:%d], s%d offen offset:%d %s lds" % (vKS + i, sK, sK + 3, sKO, 1024 * i, kpol))
        vm.issue("K%d" % t)
        if i == 3 and t < 15: A("s_add_u32 s%d, s%d, %d" % (sKO, sKO, tstep))
    def readK(t):
        wait("K%d" % t)
        for i in range(4):
            A("ds_read_b128 v[%d:%d], v%d offset:%d" % (Kreg(t) + 4 * i, Kreg(t) + 4 * i + 3, vKR + i, (t % 3) * 4096))
    def loadV(t, i):
        A("buffer_load_dwordx4 v[%d:%d], v%d, s[%d:%d], s%d offen offset:%d %s" % (Vreg(t) + 4 * i, Vreg(t) + 4 * i + 3, vVO, sV, sV + 3, sVO, 1024 * i, pol))
        vm.issue("V%d.%d" % (t, i))
        if i == 3 and t < 15: A("s_add_u32 s%d, s%d, %d" % (sVO, sVO, tstep))
    def setup2():
        A("s_load_dword s%d, s[28:29], %d" % (sTAG, WS_EPOCH))
        A("s_barrier")
        A("s_add_u32 s%d, s8, s65\ns_addc_u32 s%d, s9, 0\ns_mov_b32 s%d, 0x40000\ns_mov_b32 s%d, 0x20000" % (sV, sV + 1, sV + 2, sV + 3))
        A("v_and_b32 v9, 1, v%d\nv_cmp_eq_u32 vcc, 1, v9\nv_mov_b32 v12, 0x0c0c0100\nv_mov_b32 v9, 0x01000c0c\nv_mov_b32 v13, 0x0c0c0302\nv_mov_b32 v15, 0x03020c0c" % vL)
        A("v_cndmask_b32 v12, v12, v9, vcc\nv_cndmask_b32 v13, v13, v15, vcc")
        A("v_and_b32 v9, 2, v%d\nv_cmp_eq_u32 vcc, 2, v9\nv_mov_b32 v15, 0x0c0c0c0c\ns_nop 0" % vL)
        A("v_cndmask_b32 v%d, v12, v15, vcc\nv_cndmask_b32 v%d, v15, v12, vcc\nv_cndmask_b32 v%d, v13, v15, vcc\nv_cndmask_b32 v%d, v15, v13, vcc" % (vSP, vSP + 1, vSP + 2, vSP + 3))
        A("v_and_b32 v12, 3, v11\nv_lshlrev_b32 v12, 10, v12\nv_lshrrev_b32 v13, 2, v11\nv_lshl_add_u32 v12, v13, 8, v12\nv_xor_b32 v13, v10, v11\nv_lshl_add_u32 v12, v13, 4, v12\nv_add_u32 v%d, s%d, v12" % (vKR, sM0))
        for i in range(1, 4): A("v_xor_b32 v%d, %d, v%d" % (vKR + i, 64 * i, vKR))
        if dodd: A("s_getreg_b32 s63, hwreg(HW_REG_XCC_ID, 0, 1)\ns_cmp_eq_u32 s63, 1\ns_cselect_b64 vcc, -1, 0")
    def phaseA(half):
        def f():
            l1 = newlabel("skipA")
            A("s_cmp_ge_u32 s%d, 120\ns_cbranch_scc1 %s" % (sTILE, l1))
            A("s_waitcnt vmcnt(%d)" % (vm.after("W15") + (8 if half == 0 else 0)))
            for u in range(8 * half, 8 * half + 8):
                for j2 in range(2):
                    A("v_perm_b32 v%d, v%d, v%d, v%d" % (96 + 2 * (u & 7) + j2, 64 + (u >> 1), 64 + (u >> 1), vSP + 2 * (u & 1) + j2))
            for u in range(8 * half, 8 * half + 8):
                A("v_mfma_f32_16x16x16_bf16 v[72:75], v[%d:%d], v[%d:%d], %s" % (96 + 2 * (u & 7), 97 + 2 * (u & 7), 32 + 2 * u, 33 + 2 * u, "0" if u == 0 else "v[72:75]"))
            if half == 1:
                ST("W")
                A("s_lshl_b32 s63, s3, 10\nv_add_u32 v9, s63, v%d\ns_nop 6" % vVO)
                A("ds_write_b128 v9, v[72:75] offset:%d" % LDS_A)
                bump(LDS_C)
            A("%s:" % l1)
        return f
    def progress(val):
        def f():
            l1 = newlabel("pg")
            only_wave(0, l1)
            A("v_mov_b32 v12, 0\nv_mov_b32 v13, %d\nds_write_b32 v12, v13 offset:%d" % (val, LDS_C + 12))
            A("%s:" % l1)
        return f
    def q_wait():
        ST("qw")
        A("v_lshrrev_b32 v9, 2, v11\nv_lshlrev_b32 v9, 8, v9\nv_lshl_add_u32 v9, v10, 4, v9")
        await_lds(LDS_C + 8, 4, 0)
        for i in range(4):
            A("ds_read_b128 v[%d:%d], v9 offset:%d" % (Q0 + 4 * i, Q0 + 4 * i + 3, LDS_Q + 64 * i))
    def qk(ts):
        def f():
            A("s_waitcnt lgkmcnt(0)")
            for t in ts:
                for i in range(4):
                    A("v_mfma_f32_16x16x32_bf16 v[%d:%d], v[%d:%d], v[%d:%d], %s" % (S0 + 4 * t, S0 + 4 * t + 3, Kreg(t) + 4 * i, Kreg(t) + 4 * i + 3, Q0 + 4 * i, Q0 + 4 * i + 3,
                      "0" if i == 0 else "v[%d:%d]" % (S0 + 4 * t, S0 + 4 * t + 3)))
        return f
    def smax():
        A("v_max3_f32 v9, v32, v33, v34\nv_max3_f32 v14, v35, v36, v37")
        rs = list(range(38, 96))
        for k in range(0, len(rs), 2): A("v_max3_f32 v%d, v%d, v%d, v%d" % ((9, 14)[(k >> 1) & 1], (9, 14)[(k >> 1) & 1], rs[k], rs[k + 1]))
        A("v_max_f32 v9, v9, v14")
        A("s_mov_b32 s65, 0x%08x" % f2u(128 ** -0.5 * LOG2E))
        xrows("v_max_f32", 9, 12)
        A("v_mul_f32 v9, s65, v9")
    def sexp(lo, hi):
        def f():
            for r in range(lo, hi): A("v_fma_f32 v%d, v%d, s65, -v9" % (r, r))
            for r in range(lo, hi): A("v_exp_f32 v%d, v%d" % (r, r))
            if hi == 96: ST("exp")
        return f
    def ssum(lo, hi):
        def f():
            for r in range(lo, hi, 2):
                if r == 32: A("v_mov_b32 v14, v32\nv_mov_b32 v15, v33")
                else: A("v_pk_add_f32 v[14:15], v[14:15], v[%d:%d]" % (r, r + 1))
            for r in range(lo, hi, 2): A("v_cvt_pk_bf16_f32 v%d, v%d, v%d" % (32 + (r - 32) // 2, r, r + 1))
            if hi == 96:
                A("v_add_f32 v15, v15, v14")
                xrows("v_add_f32", 15, 14)
                A("v_lshrrev_b32 v14, 2, v11\nv_lshlrev_b32 v14, 4, v14\ns_lshl_b32 s63, s3, 2\nv_add_u32 v14, s63, v14")
                A("ds_write_b32 v14, v9 offset:%d\nds_write_b32 v14, v15 offset:%d" % (LDS_M, LDS_L))
                bump(LDS_C + 4)
        return f
    def expand(t):
        for r in range(4):
            for j2 in range(2):
                A("v_perm_b32 v%d, v%d, v%d, v%d" % (AX0 + 2 * r + j2, 32 + 2 * t + (r >> 1), 32 + 2 * t + (r >> 1), vSP + 2 * (r & 1) + j2))
    def pvm(t, r):
        for hf in range(2):
            A("v_mfma_f32_16x16x16_bf16 v[%d:%d], v[%d:%d], v[%d:%d], %s" % (O0 + 4 * hf, O0 + 4 * hf + 3, AX0 + 2 * r, AX0 + 2 * r + 1,
              Vreg(t) + 4 * r + 2 * hf, Vreg(t) + 4 * r + 2 * hf + 1, "0" if (t == 0 and r == 0) else "v[%d:%d]" % (O0 + 4 * hf, O0 + 4 * hf + 3)))
    def pv(t):
        def f():
            expand(t); wait("V%d.3" % t)
            for r in range(4): pvm(t, r)
        return f
    def s_prep():
        srds2(); tag(); w2_prep()
        A("v_lshlrev_b32 v10, 4, v%d\ns_mul_i32 s63, s3, %d\nv_add_u32 v10, s63, v10" % (vL, WVS))
        A("v_mov_b32 v15, 0\ns_mov_b32 s60, 1")
        A("v_mov_b32 v%d, s%d\nv_mov_b32 v%d, s%d" % (PUB + 1, sTAG, PUB + 3, sTAG))
    dm = max(dpat) if dpat else d
    if adapt or p0 is not None or par: dm = max(dm, db)
    if dodd: dm = max(dm, max(dodd))
    dmv = max(dm, dend[1]) if dend else dm
    assert 4 <= dm <= 8
    at(0, setup2)
    at(1, phaseA(0)); at(min(dm, 6), phaseA(1))
    assert min(dm, 6) < 3 + dm
    for t in range(16): at(4 * t + 3 + dm, lambda t=t: readK(t))
    for p in sorted(set([p1, p2, pe] + ([lateg] if lateg else []) + ([pstl] if stlb else []) + ([pt] if touch else []) + (adapt or []) + ([p0] if p0 is not None else []))): at(p, progress(p))
    if p0 is not None or par:
        if p0 is not None:
            at(pm - 1, lambda: A("v_mov_b32 v2, 0\nds_read_b32 v0, v2 offset:%d" % (LDS_C + 16)))
            at(pm, lambda: A("s_waitcnt lgkmcnt(0)"))
        else: at(pm, lambda: A("v_mov_b32 v0, 0"))
        if par: at(pm, lambda: A("s_getreg_b32 s63, hwreg(HW_REG_XCC_ID, 0, 1)\ns_mul_i32 s63, s63, %d\ns_getreg_b32 s64, hwreg(HW_REG_XCC_ID, 2, 1)\ns_mul_i32 s64, s64, %d\ns_add_u32 s63, s63, s64\ns_add_u32 s63, s63, %d\nv_add_u32 v0, s63, v0" % (par, plate, pbase0)))
        if stamp: at(pm, lambda: A("s_nop 0\nv_readfirstlane_b32 s71, v0"))
        for j, p in enumerate(range(pm, pend, win)):
            at(p, lambda j=j: A("v_cmp_le_u32 vcc, %d, v0" % thr[j % len(thr)]))
        at(pend, lambda: A("s_mov_b64 vcc, 0"))
    if adapt:
        a0 = adapt[0] + win
        at(a0 - 1, lambda: A("s_mov_b64 vcc, 0"))
        for j, p in enumerate(range(a0, 126, win)):
            at(p, lambda: A("v_mov_b32 v2, 0\nds_read_b32 v0, v2 offset:%d" % (LDS_C + 16)))
            at(p + 1, lambda j=j: A("s_waitcnt lgkmcnt(0)\nv_and_b32 v0, %d, v0\nv_cmp_ne_u32 vcc, 0, v0" % (1 << (j % 8))))
    at(qk_at - 1, q_wait)
    t = 0; s = qk_at
    while t < 16:
        ts = [u for u in (t, t + 1) if u < 16 and 4 * u + 3 + dm < s and (u < 14 or s >= 64)]
        if ts:
            assert all(s < 4 * (u + 10) + 3 + dm for u in ts)
            at(s, qk(ts)); t += len(ts); slast = s
        s += 1
    at(slast + 1, smax)
    for k in range(4): at(slast + 2 + k, sexp(32 + 16 * k, 48 + 16 * k))
    at(slast + 6, ssum(32, 64)); at(slast + 7, ssum(64, 96))
    nxt = slast + 8; late = []
    for t in range(15):
        nxt = max(nxt, 67 + 4 * t + dmv)
        if nxt <= 127: at(nxt, pv(t))
        else: late.append(t)
        assert t + 10 > 15 or nxt < 64 + 4 * (t + 10)
        nxt += 1
    at(113, s_prep)
    if stamp:
        at(16, lambda: ST("pubA")); at(96, lambda: ST("pubML")); at(112, lambda: ST("yg")); at(56, lambda: ST("q"))
    for i in range(128):
        if adapt and i == adapt[0] + win: amode[0] = True
        if (p0 is not None or par) and i == pm + 1: amode[0] = True
        if dodd and i == 0: pace(d0)
        elif dend and i >= dend[0]: pace(dend[1])
        else: pace()
        if i < 64: loadK(i >> 2, i & 3)
        else: loadV((i - 64) >> 2, i & 3)
        for f in slots.get(i, []): f()
    amode[0] = False
    for t in late: pv(t)()
    expand(15)
    for r in range(4):
        wait("V15.%d" % r)
        if r == 3: ST("V7")
        pvm(15, r)
    A("s_nop 6")
    A("ds_write_b128 v10, v[16:19] offset:%d\nds_write_b128 v10, v[20:23] offset:%d" % (LDS_O, LDS_O + HFS))
    A("s_waitcnt lgkmcnt(0)\ns_barrier")
    ST("B5")
    if ssl: A("s_sleep %d" % ssl)
    opl = "buffer_load_dwordx4 v[%d:%d], v15, %s, s100 offen %s" % (T, T + 3, WS, ldpol)
    A("s_branch L_join")

    A("L_helper:")
    A("v_mov_b32 v12, 0\nv_mov_b32 v13, 0\nv_mov_b32 v14, 0\nv_mov_b32 v15, 0\nds_write_b128 v12, v[12:15] offset:%d\nds_write_b32 v12, v12 offset:%d" % (LDS_C, LDS_C + 16))
    A("s_waitcnt lgkmcnt(0)")
    A("s_load_dword s%d, s[28:29], %d" % (sTAG, WS_EPOCH))
    A("s_barrier")
    srds2()
    if tlb:
        only_wave(6, "L_notlb")
        A("s_lshl_b32 s63, s%d, 18\ns_add_u32 s63, s63, 0x3ff80\nv_mov_b32 v32, s63\ns_lshl_b32 s63, s%d, 15\nv_mov_b32 v33, s63\ns_mul_i32 s63, s%d, %d\nv_mov_b32 v34, s63\nv_mov_b32 v35, 0\ns_mov_b64 exec, 1" % (sSLOT, sREST, sREST, 14 * 1024))
        if tlb & 1: A("global_load_dword v36, v32, s[8:9] nt")
        if tlb & 2: A("global_load_dword v37, v33, s[12:13] nt\nglobal_load_dword v38, v34, s[20:21] nt")
        if tlb & 4: A("global_load_dword v39, v35, s[24:25] nt")
        A("s_mov_b64 exec, -1\nL_notlb:")
    if lateg:
        tag()
    if stlb:
        only_wave(6, "L_nostlb")
        await_lds(LDS_C + 12, pstl, nap)
        A("s_lshl_b32 s63, s%d, 18\ns_add_u32 s32, s8, s63\ns_addc_u32 s33, s9, 0\ns_lshl_b32 s63, s%d, 15\ns_add_u32 s34, s12, s63\ns_addc_u32 s35, s13, 0\ns_mul_i32 s63, s%d, %d\ns_add_u32 s36, s20, s63\ns_addc_u32 s37, s21, 0" % (sSLOT, sREST, sREST, 14 * 1024))
        if stlb & 1: A("s_load_dword s38, s[32:33], 0")
        if stlb & 2: A("s_load_dword s39, s[34:35], 0\ns_load_dword s40, s[36:37], 0")
        if stlb & 4: A("s_load_dword s41, s[24:25], 0")
        A("L_nostlb:")
    only_wave(5, "L_nox")
    if lateg: await_lds(LDS_C + 12, lateg, nap)
    A("s_lshl_b32 s63, s%d, 10\nv_add_u32 v9, s63, v%d" % (sB, vVO))
    A("global_load_dwordx4 v[32:35], v9, s[4:5]\nglobal_load_dwordx4 v[36:39], v%d, s[22:23]" % vVO)
    if tearly:
        A("s_lshl_b32 s63, s%d, 7\ns_add_u32 s63, s63, %d\nv_mov_b32 v12, 0\nbuffer_load_dword v44, v12, %s, s63 offen %s" % (sSLOT, WS_ML, WS, tpol))
    A("s_waitcnt vmcnt(0)")
    A("v_dot2_f32_bf16 v%d, v32, v36, 0" % vG)
    for i in range(1, 4): A("v_dot2_f32_bf16 v%d, v%d, v%d, v%d" % (vG, 32 + i, 36 + i, vG))
    A("s_nop 2")
    for c in ("quad_perm:[1,0,3,2]", "quad_perm:[2,3,0,1]", "row_half_mirror", "row_mirror"):
        dpp("v_add_f32", vG, vG, vG, c); A("s_nop 1")
    xrows("v_add_f32", vG, 9)
    A("v_mul_f32 v%d, 0x%08x, v%d\nv_exp_f32 v%d, v%d\ns_nop 0\nv_add_f32 v%d, 1.0, v%d\nv_rcp_f32 v%d, v%d" % (vG, f2u(-LOG2E), vG, vG, vG, vG, vG, vG, vG))
    A("L_nox:")
    if not lateg: tag()
    only_wave(4, "L_noA2")
    A("s_cmp_ge_u32 s%d, 120\ns_cbranch_scc1 L_noA2" % sTILE)
    if pub4:
        A("v_and_b32 v14, 31, v%d\nv_lshlrev_b32 v9, 4, v14\nv_lshrrev_b32 v15, 5, v%d\nv_lshl_add_u32 v9, v15, 3, v9" % (vL, vL))
        A("v_lshrrev_b32 v14, 4, v14\nv_mul_u32_u24 v14, %d, v14\nv_add_u32 v14, v14, v%d" % (30720 - 256, vVO))
    else:
        A("v_lshlrev_b32 v9, 3, v%d\nv_lshrrev_b32 v14, 5, v%d\nv_mul_u32_u24 v14, %d, v14\nv_add_u32 v14, v14, v9" % (vL, vL, 30720 - 256))
    A("s_mul_i32 s64, s%d, 61440\ns_lshl_b32 s65, s%d, 8\ns_add_u32 s64, s64, s65\ns_add_u32 s64, s64, %d" % (sB, sTILE, WS_QG))
    if tearly:
        A("s_mov_b32 exec_hi, 0\nbuffer_load_dwordx4 v[44:47], v14, %s, s64 offen %s\ns_mov_b32 exec_hi, -1" % (WS, tpol))
    await_lds(LDS_C, 4, 1)
    for w in range(4):
        A("ds_read_b64 v[%d:%d], v9 offset:%d" % (32 + 2 * w, 33 + 2 * w, LDS_A + 1024 * w))
    A("s_waitcnt lgkmcnt(0)\nv_pk_add_f32 v[32:33], v[32:33], v[34:35]\nv_pk_add_f32 v[36:37], v[36:37], v[38:39]\nv_pk_add_f32 v[32:33], v[32:33], v[36:37]")
    if pub4:
        A("v_cvt_pk_bf16_f32 v36, v32, v33\nv_cvt_pk_bf16_f32 v38, v32, v33\nv_mov_b32 v37, s%d\nv_mov_b32 v39, s%d\nv_permlane32_swap_b32 v36, v38\ns_mov_b32 exec_hi, 0" % (sTAG, sTAG))
        A("buffer_store_dwordx4 v[36:39], v14, %s, s64 offen %s\ns_mov_b32 exec_hi, -1" % (WS, stpol))
    else:
        A("v_cvt_pk_bf16_f32 v32, v32, v33\nv_mov_b32 v33, s%d" % sTAG)
        A("buffer_store_dwordx2 v[32:33], v14, %s, s64 offen %s" % (WS, stpol))
    A("L_noA2:")
    ST("pubA")
    def adapt_cps(cs, setup=False):
        l1 = newlabel("noad")
        if setup:
            nrow = npeer // 8; span = 32 // nrow
            A("s_lshr_b32 s64, s2, 3\ns_and_b32 s60, s64, %d\ns_mul_i32 s60, s60, %d\ns_lshr_b32 s64, s64, %d\ns_lshl_b32 s64, s64, 3\ns_and_b32 s63, s2, 7\ns_add_u32 s64, s64, s63\ns_add_u32 s64, s64, s60" % (span - 1, npeer, span.bit_length() - 1))
            A("s_lshl_b32 s64, s64, %d\ns_add_u32 s66, s64, %d\ns_lshl_b32 s60, s60, %d\ns_add_u32 s60, s60, %d" % (mkstr, WS_MK, mkstr, WS_MK))
            A("v_and_b32 v50, %d, v%d\nv_lshlrev_b32 v50, %d, v50\nv_mov_b32 v51, 0\nv_mov_b32 v52, s%d" % (npeer - 1, vL, mkstr, sTAG))
            if stamp: A("s_mov_b32 s71, 0")
        only_wave(aw, l1)
        for c in cs:
            await_lds(LDS_C + 12, adapt[c], 1)
            A("s_mov_b64 exec, 1\nbuffer_store_dword v52, v51, %s, s66 offen %s\ns_mov_b64 exec, -1" % (WS, stpol))
            if adelay: A("s_waitcnt vmcnt(0)")
            A("buffer_load_dword v53, v50, %s, s60 offen %s" % (WS, ldpol))
            A("s_add_u32 s66, s66, 32768\ns_add_u32 s60, s60, 32768\ns_waitcnt vmcnt(0)")
            A("v_cmp_eq_u32 vcc, s%d, v53\ns_bcnt1_i32_b64 s63, vcc\ns_mov_b32 s61, 0" % sTAG)
            for thr, m in alev:
                A("s_cmp_ge_u32 s63, %d\ns_cselect_b32 s61, %d, s61" % (thr, m))
            A("v_mov_b32 v53, s61\nds_write_b32 v51, v53 offset:%d" % (LDS_C + 16))
            if stamp: A("s_min_u32 s63, s63, 63\ns_lshl_b32 s63, s63, %d\ns_or_b32 s71, s71, s63" % (6 * c))
        A("%s:" % l1)
    if adapt: adapt_cps([c for c, cp in enumerate(adapt) if cp < p1], True)
    A("v_lshrrev_b32 v40, 5, v%d\nv_mul_u32_u24 v40, %d, v40\nv_add_u32 v40, v40, v%d" % (vL, 61440 - 512, vVO))
    A("s_mul_i32 s98, s%d, 30720\ns_lshr_b32 s64, s%d, 4\ns_lshl_b32 s64, s64, 11\ns_add_u32 s98, s98, s64\ns_and_b32 s65, s3, 3\ns_lshl_b32 s64, s65, 9\ns_add_u32 s98, s98, s64\ns_add_u32 s98, s98, %d" % (sB, sREST, WS_QG))
    qld = "buffer_load_dwordx4 v[32:35], v40, %s, s98 offen %s" % (WS, ldpol)
    if p0 is None:
        await_lds(LDS_C + 12, p1, nap)
        poll([qld], [33, 35], 4)
    else:
        await_lds(LDS_C + 12, p0, 1)
        A(qld + "\ns_waitcnt vmcnt(0)")
        cmpn([33, 35])
        A("s_wqm_b64 s[60:61], vcc\ns_bcnt0_i32_b64 s63, s[60:61]\nv_mov_b32 v12, 0\nv_mov_b32 v13, s63\ns_mov_b64 exec, 1\nds_add_u32 v12, v13 offset:%d\ns_mov_b64 exec, -1" % (LDS_C + 16))
        A("s_cmp_eq_u32 s63, 64\ns_cbranch_scc1 L_qok")
        await_lds(LDS_C + 12, p1, nap)
        A("s_mov_b64 exec, s[60:61]")
        poll([qld], [33, 35], 4)
        A("L_qok:")
    A("v_mov_b32 v36, v32\nv_mov_b32 v37, v34\ns_lshl_b32 s63, s65, 8\ns_add_u32 s63, s63, %d\nv_permlane32_swap_b32 v36, v32\nv_permlane32_swap_b32 v37, v34" % LDS_Q)
    for a, b in ((36, 32), (37, 34)):
        A("v_lshlrev_b32 v12, 16, v%d\nv_lshlrev_b32 v13, 16, v%d\nv_and_b32 v14, 0xffff0000, v%d\nv_and_b32 v15, 0xffff0000, v%d" % (a, b, a, b))
        A("v_add_f32 v12, v12, v13\nv_add_f32 v14, v14, v15\nv_cvt_pk_bf16_f32 v%d, v12, v14" % a)
    A("v_and_b32 v9, 31, v%d\nv_lshl_add_u32 v9, v9, 3, s63" % vL)
    A("ds_write2_b32 v9, v36, v37 offset0:0 offset1:1")
    bump(LDS_C + 8)
    only_wave(5, "L_noside")
    A("v_min_u32 v40, 13, v11\nv_lshrrev_b32 v40, 1, v40\nv_lshlrev_b32 v40, 3, v40")
    A("s_mul_i32 s63, s%d, 7\ns_mul_i32 s64, s%d, 3840\ns_add_u32 s63, s63, s64\ns_lshl_b32 s63, s63, 3\ns_add_u32 s63, s63, %d" % (sREST, sB, WS_QG + 2048 * 8))
    A("v_and_b32 v41, 1, v10\nv_mul_u32_u24 v41, 61440, v41\nv_lshrrev_b32 v42, 1, v10\nv_mul_u32_u24 v42, %d, v42\nv_add3_u32 v40, v40, v41, v42\nv_add_u32 v40, s63, v40" % (896 * 8))
    poll(["buffer_load_dwordx2 v[32:33], v40, %s, 0 offen %s" % (WS, ldpol)], [33], 4)
    A("v_and_b32 v34, 1, v%d\nv_cmp_eq_u32 vcc, 1, v34\nv_lshlrev_b32 v34, 16, v32\nv_and_b32 v35, 0xffff0000, v32" % vL)
    A("v_cndmask_b32 v34, v34, v35, vcc\nv_cmp_gt_u32 vcc, 14, v11\nv_mov_b32 v35, v34\ns_nop 1\nv_permlane16_swap_b32 v35, v34\nv_add_f32 v34, v34, v35")
    A("v_mov_b32 v36, v34\ns_nop 1\nv_permlane32_swap_b32 v34, v36")
    A("v_mul_f32 v34, 0x%08x, v34\nv_exp_f32 v34, v34\nv_sub_f32 v37, 1.0, v%d\nv_add_f32 v34, 1.0, v34\nv_rcp_f32 v34, v34\nv_mul_f32 v36, v36, v37" % (f2u(-LOG2E), vG))
    A("v_mul_f32 v34, v34, v36\nv_cndmask_b32 v34, 0, v34, vcc")
    A("v_and_b32 v35, 7, v11\nv_lshlrev_b32 v35, 3, v35\nv_lshrrev_b32 v36, 3, v11\nv_lshl_add_u32 v35, v36, 2, v35")
    A("ds_write_b32 v35, v34 offset:%d" % LDS_H)
    A("v_and_b32 v40, 3, v%d\nv_lshlrev_b32 v40, 4, v40\nv_bfe_u32 v41, v%d, 2, 1\nv_lshl_add_u32 v41, v41, 6, v40" % (vL, vL))
    A("s_lshl_b32 s64, s%d, 7\ns_add_u32 s64, s64, %d\nv_mov_b32 v45, s%d\nv_mov_b32 v47, s%d" % (sSLOT, WS_ML, sTAG, sTAG))
    await_lds(LDS_C + 4, 4, nap)
    A("ds_read_b128 v[32:35], v40 offset:%d\nds_read_b128 v[36:39], v40 offset:%d" % (LDS_M, LDS_L))
    A("v_and_b32 v42, 12, v%d\nv_add_u32 v42, v42, v40\nds_read_b32 v43, v42 offset:%d" % (vL, LDS_M))
    A("s_waitcnt lgkmcnt(0)\nv_max3_f32 v44, v32, v33, v34\nv_max_f32 v44, v44, v35")
    for w in range(4): A("v_sub_f32 v%d, v%d, v44" % (32 + w, 32 + w))
    for w in range(4): A("v_exp_f32 v%d, v%d" % (32 + w, 32 + w))
    A("v_mul_f32 v46, v32, v36")
    for w in range(1, 4): A("v_fmac_f32 v46, v%d, v%d" % (32 + w, 36 + w))
    A("s_mov_b64 exec, 0xff")
    A("buffer_store_dwordx4 v[44:47], v41, %s, s64 offen %s" % (WS, stpol))
    A("s_mov_b64 exec, -1")
    ST("pubML")
    A("s_and_b32 s64, s%d, 0xf0\ns_lshl_b32 s64, s64, 7\ns_add_u32 s64, s64, %d" % (sSLOT, WS_ML))
    A("v_lshrrev_b32 v41, 2, v%d\nv_lshl_add_u32 v41, v41, 7, v40" % vL)
    await_lds(LDS_C + 12, p2, nap)
    poll(["buffer_load_dwordx4 v[32:35], v41, %s, s64 offen %s" % (WS, ldpol)], [33, 35], 4)
    A("v_mov_b32 v36, v32\ns_nop 1")
    for c in ("row_ror:4", "row_ror:8"):
        dpp("v_max_f32", 36, 36, 36, c); A("s_nop 1")
    xrows("v_max_f32", 36, 37)
    A("v_sub_f32 v37, v32, v36\nv_exp_f32 v37, v37\ns_nop 0\nv_mul_f32 v37, v37, v34\ns_nop 1")
    for c in ("row_ror:4", "row_ror:8"):
        dpp("v_add_f32", 37, 37, 37, c); A("s_nop 1")
    xrows("v_add_f32", 37, 38)
    A("v_sub_f32 v43, v43, v36\nv_rcp_f32 v37, v37\nv_exp_f32 v43, v43\nv_mul_f32 v37, v37, v%d\nv_mul_f32 v43, v43, v37" % vG)
    A("ds_write_b32 v42, v43 offset:%d" % LDS_F)
    A("L_noside:")
    if adapt: adapt_cps([c for c, cp in enumerate(adapt) if cp >= p1])
    A("s_cmp_lg_u32 s2, 255\ns_cbranch_scc1 L_noep")
    only_wave(7, "L_noep")
    A("v_lshlrev_b32 v48, 9, v%d\ns_mov_b32 s64, %d" % (vL, WS_ML))
    await_lds(LDS_C + 12, pe, nap)
    poll(["buffer_load_dwordx4 v[%d:%d], v48, %s, s64 offen offset:%d %s" % (32 + 4 * a, 35 + 4 * a, WS, 128 * a, ldpol) for a in range(4)], [33 + 2 * a for a in range(8)], 8)
    A("v_mov_b32 v48, %d\nv_mov_b32 v49, s%d\ns_mov_b64 exec, 1" % (WS_EPOCH, sTAG))
    A("buffer_store_dword v49, v48, %s, 0 offen %s" % (WS, stpol))
    A("s_mov_b64 exec, -1")
    A("L_noep:")
    w2_prep()
    A("v_lshrrev_b32 v11, 1, v%d\nv_lshlrev_b32 v11, 4, v11\nv_and_b32 v13, 1, v%d\nv_mul_u32_u24 v13, %d, v13" % (vL, vL, HFS))
    A("s_and_b32 s65, s3, 1\ns_lshl_b32 s63, s65, 9\nv_add3_u32 v11, v11, v13, s63")
    A("v_lshrrev_b32 v14, 5, v%d\nv_lshlrev_b32 v14, 4, v14\ns_lshl_b32 s63, s65, 5\nv_add_u32 v14, s63, v14" % vL)
    A("s_lshl_b32 s99, s%d, 11\ns_lshl_b32 s63, s65, 10\ns_add_u32 s99, s99, s63\ns_add_u32 s99, s99, %d" % (sSLOT, WS_OP))
    A("v_lshlrev_b32 v15, 11, v9\nv_lshl_add_u32 v15, v12, 4, v15")
    A("s_and_b32 s100, s%d, 0xf0\ns_lshl_b32 s63, s65, 3\ns_add_u32 s100, s100, s63\ns_lshl_b32 s100, s100, 11\ns_and_b32 s63, s%d, 15\ns_lshl_b32 s63, s63, 7\ns_add_u32 s100, s100, s63\ns_add_u32 s100, s100, %d" % (sSLOT, sREST, WS_OP))
    A("v_mov_b32 v%d, s%d\nv_mov_b32 v%d, s%d" % (PUB + 1, sTAG, PUB + 3, sTAG))
    if touch:
        await_lds(LDS_C + 12, pt, nap)
        if touch & 1:
            A("s_cmp_ge_u32 s3, 6\ns_cbranch_scc0 L_t1")
            A(opl)
            A("L_t1:")
        if touch & 4:
            A("s_xor_b32 s63, s%d, %d\ns_lshl_b32 s63, s63, 11\ns_and_b32 s64, s3, 1\ns_lshl_b32 s64, s64, 10\ns_add_u32 s63, s63, s64\ns_add_u32 s63, s63, %d" % (sSLOT, tx, WS_OP))
            A("s_and_b32 s64, s3, 2\ns_mul_i32 s64, s64, %d\ns_add_u32 s63, s63, s64" % ((WS_YP - WS_OP) // 2))
            A("buffer_load_dwordx4 v[%d:%d], v%d, %s, s63 offen %s" % (T + 20, T + 23, vVO, WS, tpol))
        if tout:
            A("s_cmp_lt_u32 s%d, 96\ns_cbranch_scc1 L_t3\ns_lshl_b32 s63, s%d, 10\ns_sub_u32 s64, s%d, 96\ns_lshr_b32 s64, s64, 2\ns_lshl_b32 s64, s64, 7\ns_add_u32 s63, s63, s64\nv_mov_b32 v12, s63" % (sRID, sB, sRID))
            only_wave(4, "L_t3")
            A("global_load_dword v%d, v12, s[24:25]\nL_t3:" % (T + 21))
        if touch & 2:
            A("s_cmp_lt_u32 s%d, 96\ns_cbranch_scc1 L_t2" % sRID)
            A("v_lshrrev_b32 v12, 2, v%d\nv_lshlrev_b32 v12, 11, v12\nv_and_b32 v13, 3, v%d\nv_lshl_add_u32 v12, v13, 4, v12" % (vL, vL))
            A("s_lshl_b32 s64, s%d, 7\ns_and_b32 s63, s3, 3\ns_lshl_b32 s63, s63, 5\ns_add_u32 s64, s64, s63\ns_lshl_b32 s64, s64, 11\ns_sub_u32 s63, s%d, 96\ns_lshl_b32 s63, s63, 6\ns_add_u32 s64, s64, s63\ns_add_u32 s64, s64, %d\ns_add_u32 s63, s64, 32768" % (sB, sRID, WS_YP))
            A("buffer_load_dwordx4 v[%d:%d], v12, %s, s64 offen %s\nbuffer_load_dwordx4 v[%d:%d], v12, %s, s63 offen %s" % (T + 20, T + 23, WS, ldpol, T + 20, T + 23, WS, ldpol))
            A("L_t2:")
    A("s_cmp_ge_u32 s3, 6\ns_cselect_b32 s60, %d, %d" % (0 if preG else 1, 0 if preP else 1))
    if preG or preP:
        A("s_cmp_eq_u32 s60, 1\ns_cbranch_scc1 L_nopre")
        await_lds(LDS_C + 12, pe, nap)
        load_wd(0); load_wd(1)
        for a in range(4): load_wo(a)
        A("L_nopre:")
    A("s_waitcnt lgkmcnt(0)\ns_barrier")
    ST("B5")
    x = lambda k: T + k
    A("s_cmp_ge_u32 s3, 6\ns_cbranch_scc0 L_pub")
    A(opl)
    A("s_branch L_join\nL_pub:")
    A("ds_read_b128 v[%d:%d], v14 offset:%d" % (x(16), x(19), LDS_F))
    for w in range(4):
        A("ds_read_b128 v[%d:%d], v11 offset:%d" % (x(4 * w), x(4 * w + 3), LDS_O + w * WVS))
    for w in range(4):
        A("s_waitcnt lgkmcnt(%d)" % (3 - w))
        for j in (0, 2):
            sel = "op_sel:[0,%d,0] op_sel_hi:[1,%d,1]" % (w & 1, w & 1)
            if w == 0: A("v_pk_mul_f32 v[%d:%d], v[%d:%d], v[%d:%d] op_sel:[0,0] op_sel_hi:[1,0]" % (x(j), x(j + 1), x(j), x(j + 1), x(16), x(17)))
            else: A("v_pk_fma_f32 v[%d:%d], v[%d:%d], v[%d:%d], v[%d:%d] %s" % (x(j), x(j + 1), x(4 * w + j), x(4 * w + j + 1), x(16 + (w & 2)), x(17 + (w & 2)), x(j), x(j + 1), sel))
    A("v_cvt_pk_bf16_f32 v%d, v%d, v%d\nv_cvt_pk_bf16_f32 v%d, v%d, v%d" % (PUB, x(0), x(1), PUB + 2, x(2), x(3)))
    A("buffer_store_dwordx4 v[%d:%d], v%d, %s, s99 offen %s" % (PUB, PUB + 3, vVO, WS, stpol))

    A("L_join:")
    ST("pubO")
    if b5b: A("s_barrier")
    A("s_cmp_eq_u32 s60, 0\ns_cbranch_scc1 L_nopost")
    load_wd(0); load_wd(1)
    for a in range(4): load_wo(a)
    A("L_nopost:")
    A("v_lshlrev_b32 v13, 3, v9\nds_read_b64 v[%d:%d], v13 offset:%d" % (vHH, vHH + 1, LDS_H))
    A("v_lshlrev_b32 v13, 4, v9")
    A("v_and_b32 v12, 7, v%d\nv_lshrrev_b32 v80, 4, v%d" % (vL, vL))
    A("v_lshlrev_b32 v14, 4, v12\nv_lshrrev_b32 v81, 1, v80\nv_lshl_add_u32 v14, v81, 7, v14")
    A("s_lshl_b32 s99, s%d, 11\ns_lshl_b32 s63, s3, 8\ns_add_u32 s99, s99, s63\ns_add_u32 s99, s99, %d" % (sSLOT, WS_YP))
    A("v_and_b32 v11, 1, v12\nv_lshlrev_b32 v11, 6, v11\nv_lshl_add_u32 v11, v80, 4, v11\nv_lshrrev_b32 v12, 1, v12\nv_lshl_add_u32 v11, v12, 2, v11\ns_and_b32 s63, s3, 1\ns_lshl_b32 s63, s63, 7\nv_add_u32 v11, s63, v11")
    A("s_waitcnt vmcnt(4)\ns_cmp_eq_u32 s60, 1\ns_cbranch_scc1 L_wd\ns_waitcnt vmcnt(1)\nL_wd:")
    A("s_waitcnt lgkmcnt(0)")
    for a in range(2):
        for j in range(4):
            A("v_lshlrev_b32 v80, 16, v%d\nv_and_b32 v81, 0xffff0000, v%d" % (WDR + 4 * a + j, WDR + 4 * a + j))
            op = "v_mul_f32" if a == 0 else "v_fmac_f32"
            A("%s v%d, v%d, v80\n%s v%d, v%d, v81" % (op, YA + 2 * j, vHH + a, op, YA + 2 * j + 1, vHH + a))
    A("s_cmp_eq_u32 s60, 0\ns_cbranch_scc1 L_wo\ns_waitcnt vmcnt(0)\nL_wo:")
    for r in range(16):
        A("v_lshlrev_b32 v%d, 16, v%d\nv_and_b32 v%d, 0xffff0000, v%d" % (WOF + 2 * r, WOR + r, WOF + 2 * r + 1, WOR + r))
    def unpack4(b):
        A("v_lshlrev_b32 v%d, 16, v%d\nv_lshlrev_b32 v%d, 16, v%d\nv_and_b32 v%d, 0xffff0000, v%d\nv_and_b32 v%d, 0xffff0000, v%d\ns_nop 0" % (x(4), b, x(6), b + 2, x(5), b, x(7), b + 2))
    def mpoll(ns, sleep):
        if ns == 1:
            poll([opl], [x(1), x(3)], sleep, first=False); unpack4(x(0)); return
        base = [x(0)] + [x(8 + 4 * k) for k in range(ns - 1)]
        ld = lambda k: "buffer_load_dwordx4 v[%d:%d], v15, %s, s100 offen %s" % (base[k], base[k] + 3, WS, ldpol)
        pend = [34, 40, 42, 32][:ns]
        lo, fin = newlabel("mp"), newlabel("mf")
        A("s_waitcnt vmcnt(0)")
        cmpn([base[0] + 1, base[0] + 3])
        A("s_wqm_b64 exec, vcc\ns_cbranch_scc0 %s_0\ns_mov_b32 s62, 0" % fin)
        A("s_mov_b64 s[%d:%d], exec" % (pend[0], pend[0] + 1))
        A(ld(0))
        A("s_mov_b64 exec, -1")
        for k in range(1, ns):
            A("s_mov_b64 s[%d:%d], -1\ns_sleep %d" % (pend[k], pend[k] + 1, stag)); A(ld(k))
        A("%s:" % lo)
        for k in range(ns):
            A("s_mov_b64 exec, s[%d:%d]\ns_waitcnt vmcnt(%d)" % (pend[k], pend[k] + 1, ns - 1))
            cmpn([base[k] + 1, base[k] + 3])
            A("s_wqm_b64 exec, vcc\ns_cbranch_scc0 %s_%d" % (fin, k))
            A("s_mov_b64 s[%d:%d], exec" % (pend[k], pend[k] + 1))
            A(ld(k))
        A("s_add_u32 s62, s62, 1\ns_cmp_gt_u32 s62, %d\ns_cbranch_scc0 %s\ns_branch L_bail" % (spin, lo))
        for k in range(ns - 1, -1, -1):
            A("%s_%d:\ns_mov_b64 exec, -1" % (fin, k)); unpack4(base[k])
            if k: A("s_branch %s" % fin)
        A("%s:" % fin)
    def red4(steps):
        A("v_permlane32_swap_b32 v%d, v%d\nv_permlane32_swap_b32 v%d, v%d\nv_add_f32 v%d, v%d, v%d\nv_add_f32 v%d, v%d, v%d\ns_nop 1" % (x(4), x(6), x(5), x(7), x(4), x(4), x(6), x(5), x(5), x(7)))
        A("v_permlane16_swap_b32 v%d, v%d\nv_add_f32 v%d, v%d, v%d" % (x(4), x(5), x(4), x(4), x(5)))
        for c in steps:
            A("s_nop 1"); dpp("v_add_f32", x(4), x(4), x(4), c)
    A("s_cmp_lt_u32 s3, 6\ns_cbranch_scc1 L_nog2")
    mpoll(ns1, sleep1)
    red4(["row_ror:8"])
    A("ds_write_b32 v11, v%d offset:%d\ns_waitcnt lgkmcnt(0)" % (x(4), LDS_o))
    A("L_nog2:")
    ST("og")
    A("s_barrier")
    y = lambda k: T + 24 + k
    A("ds_read_b128 v[%d:%d], v13 offset:%d\nds_read_b128 v[%d:%d], v13 offset:%d" % (y(0), y(3), LDS_o, y(4), y(7), LDS_o + 128))
    A("s_waitcnt lgkmcnt(0)")
    A("v_pk_add_f32 v[%d:%d], v[%d:%d], v[%d:%d]\nv_pk_add_f32 v[%d:%d], v[%d:%d], v[%d:%d]" % (y(0), y(1), y(0), y(1), y(4), y(5), y(2), y(3), y(2), y(3), y(6), y(7)))
    for a in range(4):
        for j in range(0, 8, 2):
            lo = a & 1
            A("v_pk_fma_f32 v[%d:%d], v[%d:%d], v[%d:%d], v[%d:%d] op_sel:[0,%d,0] op_sel_hi:[1,%d,1]" % (YA + j, YA + j + 1, WOF + 8 * a + j, WOF + 8 * a + j + 1, y(a & 2), y((a & 2) + 1), YA + j, YA + j + 1, lo, lo))
    A("s_nop 1")
    for k in range(4): A("v_permlane32_swap_b32 v%d, v%d" % (YA + k, YA + k + 4))
    for k in range(4): A("v_add_f32 v%d, v%d, v%d" % (YA + k, YA + k, YA + k + 4))
    A("s_nop 0\nv_permlane16_swap_b32 v%d, v%d\nv_permlane16_swap_b32 v%d, v%d" % (YA, YA + 2, YA + 1, YA + 3))
    A("v_add_f32 v%d, v%d, v%d\nv_add_f32 v%d, v%d, v%d\ns_nop 0" % (YA, YA, YA + 2, YA + 1, YA + 1, YA + 3))
    dpp("v_add_f32", YA, YA, YA, "row_ror:8"); dpp("v_add_f32", YA + 1, YA + 1, YA + 1, "row_ror:8")
    A("v_cvt_pk_bf16_f32 v%d, v%d, v%d\nv_cvt_pk_bf16_f32 v%d, v%d, v%d\ns_nop 1\nv_permlane16_swap_b32 v%d, v%d" % (PUB + 2, YA, YA + 1, PUB, YA, YA + 1, PUB, PUB + 2))
    A("s_mov_b32 exec_lo, 0xff\ns_mov_b32 exec_hi, 0xff")
    A("buffer_store_dwordx4 v[%d:%d], v14, %s, s99 offen %s" % (PUB, PUB + 3, WS, stpol))
    A("s_mov_b64 exec, -1")
    ST("pubY")
    if nred == 64:
        A("s_cmp_lt_u32 s%d, 96\ns_cbranch_scc1 L_exit" % sRID)
        A("v_lshrrev_b32 v15, 2, v%d\nv_lshlrev_b32 v15, 11, v15\nv_and_b32 v9, 3, v%d\nv_lshl_add_u32 v15, v9, 4, v15" % (vL, vL))
        A("s_lshl_b32 s100, s%d, 7\ns_lshl_b32 s63, s3, 4\ns_add_u32 s100, s100, s63\ns_lshl_b32 s100, s100, 11\ns_sub_u32 s64, s%d, 96\ns_lshl_b32 s63, s64, 6\ns_add_u32 s100, s100, s63\ns_add_u32 s100, s100, %d" % (sB, sRID, WS_YP))
        A(opl)
        A("v_lshlrev_b32 v9, 4, v9\nv_lshrrev_b32 v10, 4, v%d\nv_lshl_add_u32 v9, v10, 2, v9\ns_lshl_b32 s63, s3, 6\nv_add_u32 v9, s63, v9" % vL)
        A("v_and_b32 v10, 7, v%d\nv_lshlrev_b32 v11, 3, v10\nv_lshrrev_b32 v12, 1, v10\nv_and_b32 v10, 1, v10\nv_lshlrev_b32 v10, 2, v10\nv_lshl_add_u32 v10, v12, 4, v10" % vL)
        A("s_lshl_b32 s63, s%d, 10\ns_lshr_b32 s65, s64, 2\ns_lshl_b32 s65, s65, 7\ns_add_u32 s63, s63, s65\ns_and_b32 s65, s64, 1\ns_lshl_b32 s65, s65, 6\ns_add_u32 s63, s63, s65\ns_and_b32 s65, s64, 2\ns_lshl_b32 s65, s65, 2\ns_add_u32 s63, s63, s65\nv_add_u32 v10, s63, v10" % sB)
        mpoll(ns2, sleep2)
        ST("yg")
        red4(["row_ror:4", "row_ror:8"])
        A("ds_write_b32 v9, v%d offset:%d\ns_waitcnt lgkmcnt(0)\ns_barrier" % (x(4), LDS_R))
        only_wave(0, "L_exit")
        for w in range(8):
            A("ds_read_b64 v[%d:%d], v11 offset:%d" % (64 + 2 * w, 65 + 2 * w, LDS_R + 64 * w))
        A("s_waitcnt lgkmcnt(4)\nv_pk_add_f32 v[64:65], v[64:65], v[66:67]\nv_pk_add_f32 v[68:69], v[68:69], v[70:71]\nv_pk_add_f32 v[64:65], v[64:65], v[68:69]")
        A("s_waitcnt lgkmcnt(0)\nv_pk_add_f32 v[72:73], v[72:73], v[74:75]\nv_pk_add_f32 v[76:77], v[76:77], v[78:79]\nv_pk_add_f32 v[72:73], v[72:73], v[76:77]\nv_pk_add_f32 v[64:65], v[64:65], v[72:73]")
        A("s_mov_b64 exec, 0xff\nv_cvt_pk_bf16_f32 v64, v64, v65")
    else:
        A("s_cmp_lt_u32 s%d, 112\ns_cbranch_scc1 L_exit" % sRID)
        A("v_lshrrev_b32 v15, 3, v%d\nv_lshlrev_b32 v15, 11, v15\nv_and_b32 v9, 7, v%d\nv_lshl_add_u32 v15, v9, 4, v15" % (vL, vL))
        A("s_lshl_b32 s100, s%d, 7\ns_lshl_b32 s63, s3, 4\ns_add_u32 s100, s100, s63\ns_lshl_b32 s100, s100, 11\ns_sub_u32 s64, s%d, 112\ns_lshl_b32 s63, s64, 7\ns_add_u32 s100, s100, s63\ns_add_u32 s100, s100, %d\ns_add_u32 s99, s100, 16384" % (sB, sRID, WS_YP))
        fl = [opl, "buffer_load_dwordx4 v[%d:%d], v15, %s, s99 offen %s" % (x(8), x(11), WS, ldpol)]
        A(fl[0]); A(fl[1])
        A("v_lshlrev_b32 v9, 4, v9\nv_lshrrev_b32 v10, 4, v%d\nv_lshl_add_u32 v9, v10, 2, v9\ns_lshl_b32 s63, s3, 7\nv_add_u32 v9, s63, v9" % vL)
        A("v_and_b32 v10, 15, v%d\nv_lshlrev_b32 v11, 3, v10\nv_lshrrev_b32 v12, 1, v10\nv_and_b32 v10, 1, v10\nv_lshlrev_b32 v10, 2, v10\nv_lshl_add_u32 v10, v12, 4, v10" % vL)
        A("s_lshl_b32 s63, s%d, 10\ns_lshr_b32 s65, s64, 1\ns_lshl_b32 s65, s65, 7\ns_add_u32 s63, s63, s65\ns_and_b32 s65, s64, 1\ns_lshl_b32 s65, s65, 3\ns_add_u32 s63, s63, s65\nv_add_u32 v10, s63, v10" % sB)
        poll(fl, [x(1), x(3), x(9), x(11)], sleep2, first=False)
        ST("yg")
        A("v_lshlrev_b32 v%d, 16, v%d\nv_lshlrev_b32 v%d, 16, v%d\nv_and_b32 v%d, 0xffff0000, v%d\nv_and_b32 v%d, 0xffff0000, v%d" % (x(12), x(8), x(14), x(10), x(13), x(8), x(15), x(10)))
        unpack4(x(0))
        A("v_pk_add_f32 v[%d:%d], v[%d:%d], v[%d:%d]\nv_pk_add_f32 v[%d:%d], v[%d:%d], v[%d:%d]\ns_nop 1" % (x(4), x(5), x(4), x(5), x(12), x(13), x(6), x(7), x(6), x(7), x(14), x(15)))
        red4(["row_ror:8"])
        A("ds_write_b32 v9, v%d offset:%d\ns_waitcnt lgkmcnt(0)\ns_barrier" % (x(4), LDS_A))
        only_wave(0, "L_exit")
        for w in range(8):
            A("ds_read_b64 v[%d:%d], v11 offset:%d" % (64 + 2 * w, 65 + 2 * w, LDS_A + 128 * w))
        A("s_waitcnt lgkmcnt(4)\nv_pk_add_f32 v[64:65], v[64:65], v[66:67]\nv_pk_add_f32 v[68:69], v[68:69], v[70:71]\nv_pk_add_f32 v[64:65], v[64:65], v[68:69]")
        A("s_waitcnt lgkmcnt(0)\nv_pk_add_f32 v[72:73], v[72:73], v[74:75]\nv_pk_add_f32 v[76:77], v[76:77], v[78:79]\nv_pk_add_f32 v[72:73], v[72:73], v[76:77]\nv_pk_add_f32 v[64:65], v[64:65], v[72:73]")
        A("s_mov_b64 exec, 0xffff\nv_cvt_pk_bf16_f32 v64, v64, v65")
    A("global_store_dword v10, v64, s[24:25] %s" % outpol)
    A("s_mov_b64 exec, -1")
    A("L_exit:")
    if gprobe:
        name, ref = gprobe
        only_wave(0, "L_gp1")
        ST("end")
        A("s_waitcnt lgkmcnt(0)\ns_lshl_b32 s63, s2, 7\ns_add_u32 s63, s63, %d\nv_mov_b32 v20, s70\nv_mov_b32 v21, s%d\nv_mov_b32 v22, s%d\nv_mov_b32 v23, s%d\nv_mov_b32 v24, 0" % (WS_MK, sTAG, stn[name], sTAG))
        A("s_mov_b64 exec, 1\nbuffer_store_dwordx4 v[20:23], v24, %s, s63 offen sc1\ns_mov_b64 exec, -1" % WS)
        A("L_gp1:")
        only_wave(7, "L_gp2")
        A("s_cmp_lg_u32 s2, 0\ns_cbranch_scc1 L_gp2")
        A("L_gpw:\ns_sleep 16\ns_memrealtime s[64:65]\ns_waitcnt lgkmcnt(0)\ns_sub_u32 s64, s64, s70\ns_cmp_lt_u32 s64, 3500\ns_cbranch_scc1 L_gpw")
        A("v_lshlrev_b32 v48, 9, v%d\ns_mov_b32 s64, %d" % (vL, WS_MK))
        poll(["buffer_load_dwordx4 v[%d:%d], v48, %s, s64 offen offset:%d sc1" % (32 + 4 * a, 35 + 4 * a, WS, 128 * a) for a in range(4)], [33 + 2 * a for a in range(8)], 8)
        for a in range(8): A("v_subrev_u32 v%d, s70, v%d" % (32 + 2 * a, 32 + 2 * a))
        op0 = "v_max_i32" if ref == "late" else "v_min_i32"
        A("%s v50, v32, v36\n%s v51, v40, v44\n%s v50, v50, v51\nv_max_i32 v52, v34, v38\nv_max_i32 v51, v42, v46\nv_max_i32 v52, v52, v51\ns_nop 1" % (op0, op0, op0))
        for r, op in ((50, op0), (52, "v_max_i32")):
            for c in ("quad_perm:[1,0,3,2]", "quad_perm:[2,3,0,1]", "row_half_mirror", "row_mirror"):
                dpp(op, r, r, r, c); A("s_nop 1")
            xrows(op, r, 54)
        A("v_sub_u32 v52, v52, v50\ns_nop 0\nv_readfirstlane_b32 s63, v52\ns_sub_u32 s63, s63, %d\ns_max_i32 s63, s63, 0\ns_mul_i32 s63, s63, 10\ns_add_u32 s63, s63, 6000" % aoff)
        A("L_gpl:\ns_sleep 4\ns_memrealtime s[64:65]\ns_waitcnt lgkmcnt(0)\ns_sub_u32 s64, s64, s70\ns_cmp_lt_u32 s64, s63\ns_cbranch_scc1 L_gpl")
        A("L_gp2:")
    if skewprobe:
        only_wave(7, "L_sk1")
        A("s_waitcnt lgkmcnt(0)\ns_lshl_b32 s63, s2, 7\ns_add_u32 s63, s63, %d\nv_mov_b32 v20, s70\nv_mov_b32 v21, s%d\nv_mov_b32 v22, 0" % (WS_MK, sTAG))
        A("s_mov_b64 exec, 1\nbuffer_store_dwordx2 v[20:21], v22, %s, s63 offen sc1\ns_mov_b64 exec, -1" % WS)
        A("s_cmp_lg_u32 s2, 255\ns_cbranch_scc1 L_sk1")
        A("v_lshlrev_b32 v48, 9, v%d\ns_mov_b32 s64, %d" % (vL, WS_MK))
        poll(["buffer_load_dwordx2 v[%d:%d], v48, %s, s64 offen offset:%d sc1" % (32 + 2 * a, 33 + 2 * a, WS, 128 * a) for a in range(4)], [33, 35, 37, 39], 8)
        for a in range(4): A("v_subrev_u32 v%d, s70, v%d" % (32 + 2 * a, 32 + 2 * a))
        A("v_min_i32 v40, v32, v34\nv_min_i32 v41, v36, v38\nv_min_i32 v40, v40, v41\nv_max_i32 v42, v32, v34\nv_max_i32 v41, v36, v38\nv_max_i32 v42, v42, v41\ns_nop 1")
        for r, op in ((40, "v_min_i32"), (42, "v_max_i32")):
            for c in ("quad_perm:[1,0,3,2]", "quad_perm:[2,3,0,1]", "row_half_mirror", "row_mirror"):
                dpp(op, r, r, r, c); A("s_nop 1")
            xrows(op, r, 44)
        A("v_sub_u32 v42, v42, v40\ns_nop 0\nv_readfirstlane_b32 s63, v42\nv_readfirstlane_b32 s62, v40\ns_mul_i32 s63, s63, %d\ns_add_u32 s63, s63, 6000\ns_add_u32 s63, s63, s62" % (skewprobe - 1))
        A("L_skl:\ns_sleep 4\ns_memrealtime s[64:65]\ns_waitcnt lgkmcnt(0)\ns_sub_u32 s64, s64, s70\ns_cmp_lt_u32 s64, s63\ns_cbranch_scc1 L_skl")
        A("L_sk1:")
    if probe:
        ST("end")
        name, sign, waves = probe
        A("s_waitcnt lgkmcnt(0)")
        A("s_lshl_b32 s63, 1, s3\ns_and_b32 s63, s63, %d\ns_cbranch_scc0 L_pe" % waves)
        A("s_and_b32 s63, s2, 7\ns_lshl_b32 s63, 1, s63\ns_and_b32 s63, s63, %d\ns_cbranch_scc0 L_pe" % pslot)
        if prow is not None: A("s_lshr_b32 s63, s2, 3\ns_cmp_lg_u32 s63, %d\ns_cbranch_scc1 L_pe" % prow)
        if name == "W": A("s_cmp_ge_u32 s%d, 120\ns_cbranch_scc1 L_pe" % sTILE)
        if name == "yg": A("s_cmp_lt_u32 s%d, 96\ns_cbranch_scc1 L_pe" % sRID)
        A("s_sub_u32 s63, s%d, s70" % stn[name])
        if amp > 1: A("s_sub_u32 s63, s63, %d\ns_max_i32 s63, s63, 0\ns_mul_i32 s63, s63, %d" % (aoff, amp))
        if sign < 0: A("s_sub_u32 s63, 4000, s63")
        A("s_add_u32 s63, s63, %d" % pbase)
        A("L_pl:\ns_sleep 4\ns_memrealtime s[64:65]\ns_waitcnt lgkmcnt(0)\ns_sub_u32 s64, s64, s70\ns_cmp_lt_u32 s64, s63\ns_cbranch_scc1 L_pl")
        A("L_pe:")
    if stamp:
        ST("end")
        A("s_waitcnt lgkmcnt(0)")
        A("s_lshl_b32 s63, s2, 3\ns_add_u32 s63, s63, s3\ns_lshl_b32 s63, s63, 6\ns_add_u32 s63, s63, %d\nv_mov_b32 v9, 0" % WS_STAMP)
        for i in range(0, 16, 4):
            for j in range(4):
                A("v_mov_b32 v%d, s%d" % (20 + j, 70 + 2 * (i + j)) if i + j < len(names) else "v_mov_b32 v%d, s71" % (20 + j))
            A("buffer_store_dwordx4 v[20:23], v9, %s, s63 offen offset:%d\ns_nop 1" % (WS, 4 * i))
    A("s_endpgm")
    A("L_bail:")
    A("s_mov_b64 exec, 1\nv_mov_b32 v9, 0\nv_mov_b32 v10, 0xdead\nglobal_store_dword v9, v10, s[26:27]")
    A("L_end:\ns_endpgm")
    L.append('.section .rodata,"a"\n.p2align 6\n.amdhsa_kernel %s_kernel' % NAME)
    L.append("  .amdhsa_next_free_vgpr 256\n  .amdhsa_next_free_sgpr 102\n  .amdhsa_accum_offset 256\n  .amdhsa_group_segment_fixed_size 0\n  .amdhsa_kernarg_size 104\n  .amdhsa_user_sgpr_count 2\n  .amdhsa_user_sgpr_kernarg_segment_ptr 1\n  .amdhsa_system_sgpr_workgroup_id_x 1\n.end_amdhsa_kernel")
    if now2:
        L[:] = [ln for ln in L if not (ln.strip().startswith("buffer_load") and ("s[48:51]" in ln or "s[52:55]" in ln))]
    if noside:
        out = []; inh = False
        for i, ln in enumerate(L):
            if ln == "L_helper:": inh = True
            if ln == "L_noep:": inh = False
            if inh:
                t = ln.strip()
                if t.startswith("buffer_store") and "s" in noside: continue
                if t.startswith("buffer_load") and "l" in noside: continue
                if t.startswith("global_load") and "x" in noside: continue
                if t.startswith("s_wqm_b64 exec, vcc"): ln = "    s_and_b64 vcc, 0, 0"
            out.append(ln)
        L[:] = out
    return "\n".join(L) + "\n"
```

```python
import sys, struct
NAME = "gated_mix__gqa_block_cached__glu_gated_glu__decode"
def f2u(x): return struct.unpack("<I", struct.pack("<f", x))[0]
LOG2E = 1.4426950408889634

WS_EPOCH = 0
WS_QG = 0x1000
WS_ML = 0x20000
WS_OP = 0x40000
WS_YP = 0xC0000
WS_MK = 0x140000
WS_STAMP = 0x400000
WS_USED = 0x180000
LDS_A = 0
LDS_Q = 4096
LDS_M = 5120
LDS_L = 5184
LDS_F = 5248
LDS_H = 5312
LDS_C = 5376
LDS_o = 5632
LDS_R = 5888
HFS = 1152
WVS = 2304
LDS_O = 6400
LDS_K = LDS_O + 4 * WVS
assert LDS_K % 256 == 0
LDS_END = LDS_K + 4 * 12288

class VM:
    def __init__(self): self.ops = []
    def issue(self, name, counted=True, w=None): self.ops.append((name, counted, (1.0 if counted else None) if w is None else w))
    def after(self, name):
        idx = max(i for i, (n, c, w) in enumerate(self.ops) if n == name)
        return sum(1 for n, c, w in self.ops[idx + 1:] if c)
    def pace_n(self, room):
        n = 0; tot = 0.0
        for name, c, w in reversed(self.ops):
            if w is None: continue
            if tot + w > room: return n, True
            tot += w; n += 1
        return n, False

def gen(d=5, dpat=None, d0=None, pol="nt", kpol=None, wpol="nt", w2pol="", stamp=False,
        p1=22, p2=100, pe=123, qk_at=37, outpol="", stpol="sc1", ldpol="sc1", spin=200000, header=None, probe=None, pbase=6000,
        sleep1=0, sleep2=0, nap=2, sprio=1, dend=None, lds_pad=0, adapt=None, db=7, alev=None, win=8, mkstr=7, npeer=16, adelay=True, aw=6, skewprobe=0, gprobe=None, pslot=255, prow=None, p0=None, thr=None, pm=16, pend=126, noside=None, pub4=True, ns1=1, ns2=1, stag=3, amp=1, aoff=2000, preG=True, preP=False, b5b=True, ssl=0, now2=False, touch=0, pt=116, tx=1, tpol="", tearly=False, tout=False, par=0, dodd=None, nred=64, plate=0, pbase0=0, tlb=0, xmap=False, lateg=0, stlb=0, pstl=12, cpre=0):
    if kpol is None: kpol = pol
    if d0 is None: d0 = d
    L = []
    def A(s):
        for line in s.strip("\n").split("\n"):
            t = line.strip()
            L.append(t if t.endswith(":") else "    " + t)
    vm = VM()
    diag = stamp or probe or skewprobe or gprobe
    names = ["start", "W", "pubA", "qw", "q", "exp", "pubML", "V7", "B5", "pubO", "og", "pubY", "yg", "end"]
    stn = {n: 70 + 2 * i for i, n in enumerate(names)}
    def ST(name):
        if diag and (not gprobe or name in ("start", "end", gprobe[0])): A("s_memrealtime s[%d:%d]" % (stn[name], stn[name] + 1))
    def wait(name, extra=0):
        n = vm.after(name) + extra
        assert n <= 63
        A("s_waitcnt vmcnt(%d)" % n)
    npace = [0]; amode = [False]
    def pace(dd=None, w=1.0):
        if dodd and dd is None:
            de = dpat[npace[0] % len(dpat)] if dpat else d
            do = dodd[npace[0] % len(dodd)]
            npace[0] += 1
            (ne, need_e), (no, need_o) = vm.pace_n(de - w), vm.pace_n(do - w)
            if max(ne, no) != min(ne, no):
                l1 = newlabel("pc")
                if need_e and need_o: A("s_waitcnt vmcnt(%d)" % max(ne, no))
                A("s_cbranch_%s %s\ns_waitcnt vmcnt(%d)\n%s:" % ("vccnz" if ne < no else "vccz", l1, min(ne, no), l1))
            elif need_e: A("s_waitcnt vmcnt(%d)" % ne)
            return
        if amode[0] and dd is None:
            l1 = newlabel("pc")
            dd = dpat[npace[0] % len(dpat)] if dpat else d
            npace[0] += 1
            A("s_waitcnt vmcnt(%d)\ns_cbranch_vccnz %s\ns_waitcnt vmcnt(%d)\n%s:" % (vm.pace_n(db - w)[0], l1, vm.pace_n(dd - w)[0], l1))
            return
        if dd is None:
            dd = dpat[npace[0] % len(dpat)] if dpat else d
            npace[0] += 1
        n, need = vm.pace_n(dd - w)
        if need: A("s_waitcnt vmcnt(%d)" % n)
    lab = [0]
    def newlabel(p):
        lab[0] += 1; return "L_%s%d" % (p, lab[0])

    vL, vVO, vSP, vG = 1, 3, 4, 8
    Q0, O0, AX0, S0 = 16, 16, 24, 32
    vKS, vKR = 88, 92
    YA, PUB, vWO, vWD2, vHH = 64, 72, 76, 77, 78
    WOR, WDR, WOF, T = 128, 144, 160, 192
    def buf(i): return 96 + 16 * (i % 10)
    def Kreg(t): return buf(t)
    def Vreg(t): return buf(t + 6)
    sK, sV, sW, sWS, sWO, sWD = 32, 36, 40, 44, 48, 52
    sB, sREST, sTAG, sSTR = 30, 31, 56, 58
    sKO, sVO, sSLOT, sM0 = 66, 67, 59, 101
    sTILE, sRID = 57, 61
    WS = "s[%d:%d]" % (sWS, sWS + 3)
    tstep = 4 * 4096

    def dpp(op, dst, a, b, ctrl):
        A("%s_dpp v%d, v%d, v%d %s row_mask:0xf bank_mask:0xf" % (op, dst, a, b, ctrl))
    def xrows(op, x, t):
        A("v_mov_b32 v%d, v%d\ns_nop 1\nv_permlane16_swap_b32 v%d, v%d\n%s v%d, v%d, v%d" % (t, x, t, x, op, x, t, x))
        A("v_mov_b32 v%d, v%d\ns_nop 1\nv_permlane32_swap_b32 v%d, v%d\n%s v%d, v%d, v%d" % (t, x, t, x, op, x, t, x))
    def cmpn(tagregs):
        A("v_cmp_ne_u32 vcc, s%d, v%d" % (sTAG, tagregs[0]))
        for r in tagregs[1:]:
            A("v_cmp_ne_u32 s[68:69], s%d, v%d\ns_or_b64 vcc, vcc, s[68:69]" % (sTAG, r))
    def poll(loads, tagregs, sleep=0, first=True):
        lo, lc = newlabel("spin"), newlabel("chk")
        A("s_mov_b32 s62, 0")
        if not first: A("s_branch %s" % lc)
        elif sleep: A("s_branch %s_n" % lo)
        A("%s:" % lo)
        if sleep: A("s_sleep %d\n%s_n:" % (sleep, lo))
        for s in loads: A(s)
        A("s_add_u32 s62, s62, 1\ns_cmp_gt_u32 s62, %d\ns_cbranch_scc1 L_bail" % spin)
        A("%s:" % lc)
        A("s_waitcnt vmcnt(0)")
        cmpn(tagregs)
        A("s_wqm_b64 exec, vcc\ns_cbranch_scc1 %s" % lo)
        A("s_mov_b64 exec, -1")
    def bump(off):
        A("v_mov_b32 v12, 0\nv_mov_b32 v13, 1\ns_mov_b64 exec, 1\nds_add_u32 v12, v13 offset:%d\ns_mov_b64 exec, -1" % off)
    def await_lds(off, val, sleep):
        lo = newlabel("lw")
        A("v_mov_b32 v12, 0\ns_mov_b32 s62, 0\ns_branch %s_n\n%s:" % (lo, lo))
        if sleep: A("s_sleep %d" % sleep)
        A("%s_n:\nds_read_b32 v13, v12 offset:%d\ns_add_u32 s62, s62, 1\ns_cmp_gt_u32 s62, %d\ns_cbranch_scc1 L_bail" % (lo, off, spin * 8))
        A("s_waitcnt lgkmcnt(0)\nv_readfirstlane_b32 s63, v13\ns_cmp_lt_u32 s63, %d\ns_cbranch_scc1 %s" % (val, lo))
    def only_wave(w, skip): A("s_cmp_lg_u32 s3, %d\ns_cbranch_scc1 %s" % (w, skip))

    def srds2():
        A("s_mov_b32 s%d, s28\ns_mov_b32 s%d, s29\ns_mov_b32 s%d, %d\ns_mov_b32 s%d, 0x20000" % (sWS, sWS + 1, sWS + 2, 0x500000 if stamp else WS_USED, sWS + 3))
        A("s_mov_b32 s%d, s12\ns_mov_b32 s%d, s13\ns_mov_b32 s%d, 0x400000\ns_mov_b32 s%d, 0x20000" % (sWO, sWO + 1, sWO + 2, sWO + 3))
        A("s_mov_b32 s%d, s20\ns_mov_b32 s%d, s21\ns_mov_b32 s%d, 1835008\ns_mov_b32 s%d, 0x20000" % (sWD, sWD + 1, sWD + 2, sWD + 3))
    def tag():
        A("s_waitcnt lgkmcnt(0)")
        A("s_mul_i32 s%d, s%d, 0x9e3779b5\ns_add_u32 s%d, s%d, 0x7f4a7c15" % (sTAG, sTAG, sTAG, sTAG))
    def w2_prep():
        A("v_lshrrev_b32 v9, 3, v%d\nv_and_b32 v12, 7, v%d\nv_lshlrev_b32 v%d, 4, v12\nv_lshl_add_u32 v%d, v9, 10, v%d" % (vL, vL, vWO, vWO, vWO))
        A("v_cmp_gt_u32 s[68:69], 6, v9\nv_mov_b32 v13, 0x10000000\ns_mul_i32 s58, s%d, %d\ns_lshl_b32 s64, s3, 7\ns_add_u32 s58, s58, s64" % (sREST, 14 * 1024))
        A("v_cndmask_b32 v%d, v13, v%d, s[68:69]\ns_lshl_b32 s57, s%d, 15\ns_add_u32 s57, s57, s64" % (vWD2, vWO, sREST))
    def load_wo(a):
        A("buffer_load_dwordx4 v[%d:%d], v%d, s[%d:%d], s57 offen %s" % (WOR + 4 * a, WOR + 4 * a + 3, vWO, sWO, sWO + 3, w2pol))
        vm.issue("wo")
        if a < 3: A("s_add_u32 s57, s57, 8192")
    def load_wd(a):
        if a == 1: A("s_add_u32 s58, s58, 8192")
        A("buffer_load_dwordx4 v[%d:%d], v%d, s[%d:%d], s58 offen %s" % (WDR + 4 * a, WDR + 4 * a + 3, vWD2 if a else vWO, sWD, sWD + 3, w2pol)); vm.issue("wd")

    L.append((header or "") + "; @launch grid=(256,1,1) block=(512,1,1) lds=%d" % (LDS_END + lds_pad))
    if stamp: L.append("; stamps: " + " ".join(names))
    L.append('.amdgcn_target "amdgcn-amd-amdhsa--gfx950"\n.text\n.globl %s_kernel\n.p2align 8\n.type %s_kernel,@function\n%s_kernel:' % (NAME, NAME, NAME))
    A("s_cmp_ge_u32 s2, 256\ns_cbranch_scc1 L_end")
    A("s_load_dwordx16 s[4:19], s[0:1], 0\ns_load_dwordx8 s[20:27], s[0:1], 64\ns_load_dwordx2 s[28:29], s[0:1], 96")
    ST("start")
    A("v_lshrrev_b32 v9, 6, v0\nv_and_b32 v%d, 63, v0\nv_readfirstlane_b32 s3, v9" % vL)
    A("s_bfe_u32 s%d, s2, 0x10003" % sB)
    A("s_and_b32 s%d, s2, 7\ns_lshr_b32 s63, s2, 4\ns_lshl_b32 s63, s63, 3\ns_or_b32 s%d, s%d, s63" % (sREST, sREST, sREST))
    A("s_mov_b32 s%d, s%d\ns_mov_b32 s%d, s%d" % (sRID, sREST, sTILE, sREST))
    if xmap:
        A("s_and_b32 s64, s2, 7\ns_lshr_b32 s63, s2, 4\ns_lshl_b32 s%d, s64, 4\ns_or_b32 s%d, s%d, s63" % (sREST, sREST, sREST))
        A("s_sub_u32 s%d, s%d, s64\ns_cmp_eq_u32 s63, 15\ns_cselect_b32 s%d, 127, s%d" % (sTILE, sREST, sTILE, sTILE))
    A("s_lshl_b32 s%d, s%d, 7\ns_add_u32 s%d, s%d, s%d" % (sSLOT, sB, sSLOT, sSLOT, sREST))
    A("v_lshrrev_b32 v10, 4, v%d\nv_and_b32 v11, 15, v%d\nv_lshlrev_b32 v%d, 4, v%d" % (vL, vL, vVO, vL))
    A("s_cmp_ge_u32 s3, 4\ns_cbranch_scc1 L_helper")

    if sprio: A("s_setprio %d" % sprio)
    A("v_lshlrev_b32 v12, 2, v10\nv_xor_b32 v12, v12, v11\nv_lshlrev_b32 v12, 4, v12\nv_lshl_add_u32 v%d, v10, 8, v12" % vKS)
    for i in range(1, 4): A("v_xor_b32 v%d, %d, v%d" % (vKS + i, 16 * i, vKS))
    A("s_lshl_b32 s%d, s3, 12\ns_mov_b32 s%d, s%d" % (sKO, sVO, sKO))
    A("s_lshl_b32 s65, s%d, 18" % sSLOT)
    A("s_mul_i32 s%d, s3, 12288\ns_add_u32 s%d, s%d, %d" % (sM0, sM0, sM0, LDS_K))
    A("s_movk_i32 s%d, 3584\ns_cmp_lt_u32 s%d, 64\ns_cselect_b32 s%d, 8192, s%d" % (sSTR, sTILE, sSTR, sSTR))
    A("s_lshl_b32 s63, s%d, 4\nv_mul_u32_u24 v12, s63, v10\nv_lshl_add_u32 v12, v11, 3, v12" % sSTR)
    A("s_lshl_b32 s62, s%d, 2\ns_add_u32 s62, s62, s3\ns_lshl_b32 s62, s62, 6" % sB)
    A("v_bfe_u32 v13, v11, 2, 1\nv_lshlrev_b32 v13, 10, v13\nv_lshl_add_u32 v13, v10, 5, v13\ns_lshl_b32 s63, s62, 1\nv_add_u32 v13, s63, v13")
    A("s_mul_i32 s63, s62, s%d" % sSTR)
    A("s_sub_u32 s64, s%d, 64\ns_cmp_lt_u32 s%d, 64\ns_cselect_b32 s64, s%d, s64\ns_sub_u32 s62, s%d, 92\ns_cmp_ge_u32 s%d, 92\ns_cselect_b32 s64, s62, s64\ns_lshl_b32 s64, s64, 7" % (sTILE, sTILE, sTILE, sTILE, sTILE))
    A("s_mul_i32 s%d, s%d, 511\ns_add_u32 s%d, s%d, 128\ns_mov_b32 s%d, 0x20000" % (sW + 2, sSTR, sW + 2, sW + 2, sW + 3))
    A("s_mov_b32 s%d, 0x40000\ns_mov_b32 s%d, 0x20000" % (sK + 2, sK + 3))
    A("s_waitcnt lgkmcnt(0)")
    A("s_add_u32 s%d, s6, s65\ns_addc_u32 s%d, s7, 0" % (sK, sK + 1))
    A("s_cmp_ge_u32 s%d, 120\ns_cbranch_scc1 L_noA1" % sTILE)
    A("s_cmp_lt_u32 s%d, 64\ns_cselect_b32 s%d, s10, s16\ns_cselect_b32 s%d, s11, s17" % (sTILE, sW, sW + 1))
    A("s_cmp_ge_u32 s%d, 92\ns_cselect_b32 s%d, s18, s%d\ns_cselect_b32 s%d, s19, s%d" % (sTILE, sW, sW, sW + 1, sW + 1))
    A("s_add_u32 s%d, s%d, s64\ns_addc_u32 s%d, s%d, 0" % (sW, sW, sW + 1, sW + 1))
    A("global_load_dwordx4 v[64:67], v13, s[4:5]\nglobal_load_dwordx4 v[68:71], v13, s[4:5] offset:16")
    vm.issue("X", False); vm.issue("X", False)
    for q in range(16):
        pace(d0, 0.5)
        A("buffer_load_dwordx2 v[%d:%d], v12, s[%d:%d], s63 offen %s" % (32 + 2 * q, 33 + 2 * q, sW, sW + 3, wpol))
        vm.issue("W%d" % q, False, 0.5)
        if q < 15: A("s_add_u32 s63, s63, s%d" % sSTR)
    A("L_noA1:")
    slots = {}
    def at(i, f): slots.setdefault(i, []).append(f)
    def loadK(t, i):
        if i == 0:
            A("s_add_u32 s63, s%d, %d\ns_mov_b32 m0, s63" % (sM0, (t % 3) * 4096))
            A("s_waitcnt lgkmcnt(0)" if t >= 3 else "s_nop 0")
        A("buffer_load_dwordx4 v%d, s[%d:%d], s%d offen offset:%d %s lds" % (vKS + i, sK, sK + 3, sKO, 1024 * i, kpol))
        vm.issue("K%d" % t)
        if i == 3 and t < 15: A("s_add_u32 s%d, s%d, %d" % (sKO, sKO, tstep))
    def readK(t):
        wait("K%d" % t)
        for i in range(4):
            A("ds_read_b128 v[%d:%d], v%d offset:%d" % (Kreg(t) + 4 * i, Kreg(t) + 4 * i + 3, vKR + i, (t % 3) * 4096))
    def loadV(t, i):
        A("buffer_load_dwordx4 v[%d:%d], v%d, s[%d:%d], s%d offen offset:%d %s" % (Vreg(t) + 4 * i, Vreg(t) + 4 * i + 3, vVO, sV, sV + 3, sVO, 1024 * i, pol))
        vm.issue("V%d.%d" % (t, i))
        if i == 3 and t < 15: A("s_add_u32 s%d, s%d, %d" % (sVO, sVO, tstep))
    def setup2():
        A("s_load_dword s%d, s[28:29], %d" % (sTAG, WS_EPOCH))
        A("s_barrier")
        A("s_add_u32 s%d, s8, s65\ns_addc_u32 s%d, s9, 0\ns_mov_b32 s%d, 0x40000\ns_mov_b32 s%d, 0x20000" % (sV, sV + 1, sV + 2, sV + 3))
        A("v_and_b32 v9, 1, v%d\nv_cmp_eq_u32 vcc, 1, v9\nv_mov_b32 v12, 0x0c0c0100\nv_mov_b32 v9, 0x01000c0c\nv_mov_b32 v13, 0x0c0c0302\nv_mov_b32 v15, 0x03020c0c" % vL)
        A("v_cndmask_b32 v12, v12, v9, vcc\nv_cndmask_b32 v13, v13, v15, vcc")
        A("v_and_b32 v9, 2, v%d\nv_cmp_eq_u32 vcc, 2, v9\nv_mov_b32 v15, 0x0c0c0c0c\ns_nop 0" % vL)
        A("v_cndmask_b32 v%d, v12, v15, vcc\nv_cndmask_b32 v%d, v15, v12, vcc\nv_cndmask_b32 v%d, v13, v15, vcc\nv_cndmask_b32 v%d, v15, v13, vcc" % (vSP, vSP + 1, vSP + 2, vSP + 3))
        A("v_and_b32 v12, 3, v11\nv_lshlrev_b32 v12, 10, v12\nv_lshrrev_b32 v13, 2, v11\nv_lshl_add_u32 v12, v13, 8, v12\nv_xor_b32 v13, v10, v11\nv_lshl_add_u32 v12, v13, 4, v12\nv_add_u32 v%d, s%d, v12" % (vKR, sM0))
        for i in range(1, 4): A("v_xor_b32 v%d, %d, v%d" % (vKR + i, 64 * i, vKR))
        if dodd: A("s_getreg_b32 s63, hwreg(HW_REG_XCC_ID, 0, 1)\ns_cmp_eq_u32 s63, 1\ns_cselect_b64 vcc, -1, 0")
    def phaseA(half):
        def f():
            l1 = newlabel("skipA")
            A("s_cmp_ge_u32 s%d, 120\ns_cbranch_scc1 %s" % (sTILE, l1))
            A("s_waitcnt vmcnt(%d)" % (vm.after("W15") + (8 if half == 0 else 0)))
            for u in range(8 * half, 8 * half + 8):
                for j2 in range(2):
                    A("v_perm_b32 v%d, v%d, v%d, v%d" % (96 + 2 * (u & 7) + j2, 64 + (u >> 1), 64 + (u >> 1), vSP + 2 * (u & 1) + j2))
            for u in range(8 * half, 8 * half + 8):
                A("v_mfma_f32_16x16x16_bf16 v[72:75], v[%d:%d], v[%d:%d], %s" % (96 + 2 * (u & 7), 97 + 2 * (u & 7), 32 + 2 * u, 33 + 2 * u, "0" if u == 0 else "v[72:75]"))
            if half == 1:
                ST("W")
                A("s_lshl_b32 s63, s3, 10\nv_add_u32 v9, s63, v%d\ns_nop 6" % vVO)
                A("ds_write_b128 v9, v[72:75] offset:%d" % LDS_A)
                bump(LDS_C)
            A("%s:" % l1)
        return f
    def progress(val):
        def f():
            l1 = newlabel("pg")
            only_wave(0, l1)
            A("v_mov_b32 v12, 0\nv_mov_b32 v13, %d\nds_write_b32 v12, v13 offset:%d" % (val, LDS_C + 12))
            A("%s:" % l1)
        return f
    def q_wait():
        ST("qw")
        A("v_lshrrev_b32 v9, 2, v11\nv_lshlrev_b32 v9, 8, v9\nv_lshl_add_u32 v9, v10, 4, v9")
        await_lds(LDS_C + 8, 4, 0)
        for i in range(4):
            A("ds_read_b128 v[%d:%d], v9 offset:%d" % (Q0 + 4 * i, Q0 + 4 * i + 3, LDS_Q + 64 * i))
    def qk(ts):
        def f():
            A("s_waitcnt lgkmcnt(0)")
            for t in ts:
                for i in range(4):
                    A("v_mfma_f32_16x16x32_bf16 v[%d:%d], v[%d:%d], v[%d:%d], %s" % (S0 + 4 * t, S0 + 4 * t + 3, Kreg(t) + 4 * i, Kreg(t) + 4 * i + 3, Q0 + 4 * i, Q0 + 4 * i + 3,
                      "0" if i == 0 else "v[%d:%d]" % (S0 + 4 * t, S0 + 4 * t + 3)))
        return f
    def smax():
        A("v_max3_f32 v9, v32, v33, v34\nv_max3_f32 v14, v35, v36, v37")
        rs = list(range(38, 96))
        for k in range(0, len(rs), 2): A("v_max3_f32 v%d, v%d, v%d, v%d" % ((9, 14)[(k >> 1) & 1], (9, 14)[(k >> 1) & 1], rs[k], rs[k + 1]))
        A("v_max_f32 v9, v9, v14")
        A("s_mov_b32 s65, 0x%08x" % f2u(128 ** -0.5 * LOG2E))
        xrows("v_max_f32", 9, 12)
        A("v_mul_f32 v9, s65, v9")
    def sexp(lo, hi):
        def f():
            for r in range(lo, hi): A("v_fma_f32 v%d, v%d, s65, -v9" % (r, r))
            for r in range(lo, hi): A("v_exp_f32 v%d, v%d" % (r, r))
            if hi == 96: ST("exp")
        return f
    def ssum(lo, hi):
        def f():
            for r in range(lo, hi, 2):
                if r == 32: A("v_mov_b32 v14, v32\nv_mov_b32 v15, v33")
                else: A("v_pk_add_f32 v[14:15], v[14:15], v[%d:%d]" % (r, r + 1))
            for r in range(lo, hi, 2): A("v_cvt_pk_bf16_f32 v%d, v%d, v%d" % (32 + (r - 32) // 2, r, r + 1))
            if hi == 96:
                A("v_add_f32 v15, v15, v14")
                xrows("v_add_f32", 15, 14)
                A("v_lshrrev_b32 v14, 2, v11\nv_lshlrev_b32 v14, 4, v14\ns_lshl_b32 s63, s3, 2\nv_add_u32 v14, s63, v14")
                A("ds_write_b32 v14, v9 offset:%d\nds_write_b32 v14, v15 offset:%d" % (LDS_M, LDS_L))
                bump(LDS_C + 4)
        return f
    def expand(t):
        for r in range(4):
            for j2 in range(2):
                A("v_perm_b32 v%d, v%d, v%d, v%d" % (AX0 + 2 * r + j2, 32 + 2 * t + (r >> 1), 32 + 2 * t + (r >> 1), vSP + 2 * (r & 1) + j2))
    def pvm(t, r):
        for hf in range(2):
            A("v_mfma_f32_16x16x16_bf16 v[%d:%d], v[%d:%d], v[%d:%d], %s" % (O0 + 4 * hf, O0 + 4 * hf + 3, AX0 + 2 * r, AX0 + 2 * r + 1,
              Vreg(t) + 4 * r + 2 * hf, Vreg(t) + 4 * r + 2 * hf + 1, "0" if (t == 0 and r == 0) else "v[%d:%d]" % (O0 + 4 * hf, O0 + 4 * hf + 3)))
    def pv(t):
        def f():
            expand(t); wait("V%d.3" % t)
            for r in range(4): pvm(t, r)
        return f
    def s_prep():
        srds2(); tag(); w2_prep()
        A("v_lshlrev_b32 v10, 4, v%d\ns_mul_i32 s63, s3, %d\nv_add_u32 v10, s63, v10" % (vL, WVS))
        A("v_mov_b32 v15, 0\ns_mov_b32 s60, 1")
        A("v_mov_b32 v%d, s%d\nv_mov_b32 v%d, s%d" % (PUB + 1, sTAG, PUB + 3, sTAG))
    dm = max(dpat) if dpat else d
    if adapt or p0 is not None or par: dm = max(dm, db)
    if dodd: dm = max(dm, max(dodd))
    dmv = max(dm, dend[1]) if dend else dm
    assert 4 <= dm <= 8
    at(0, setup2)
    at(1, phaseA(0)); at(min(dm, 6), phaseA(1))
    assert min(dm, 6) < 3 + dm
    for t in range(16): at(4 * t + 3 + dm, lambda t=t: readK(t))
    for p in sorted(set([p1, p2, pe] + ([lateg] if lateg else []) + ([pstl] if stlb else []) + ([pt] if touch else []) + (adapt or []) + ([p0] if p0 is not None else []))): at(p, progress(p))
    if p0 is not None or par:
        if p0 is not None:
            at(pm - 1, lambda: A("v_mov_b32 v2, 0\nds_read_b32 v0, v2 offset:%d" % (LDS_C + 16)))
            at(pm, lambda: A("s_waitcnt lgkmcnt(0)"))
        else: at(pm, lambda: A("v_mov_b32 v0, 0"))
        if par: at(pm, lambda: A("s_getreg_b32 s63, hwreg(HW_REG_XCC_ID, 0, 1)\ns_mul_i32 s63, s63, %d\ns_getreg_b32 s64, hwreg(HW_REG_XCC_ID, 2, 1)\ns_mul_i32 s64, s64, %d\ns_add_u32 s63, s63, s64\ns_add_u32 s63, s63, %d\nv_add_u32 v0, s63, v0" % (par, plate, pbase0)))
        if stamp: at(pm, lambda: A("s_nop 0\nv_readfirstlane_b32 s71, v0"))
        for j, p in enumerate(range(pm, pend, win)):
            at(p, lambda j=j: A("v_cmp_le_u32 vcc, %d, v0" % thr[j % len(thr)]))
        at(pend, lambda: A("s_mov_b64 vcc, 0"))
    if adapt:
        a0 = adapt[0] + win
        at(a0 - 1, lambda: A("s_mov_b64 vcc, 0"))
        for j, p in enumerate(range(a0, 126, win)):
            at(p, lambda: A("v_mov_b32 v2, 0\nds_read_b32 v0, v2 offset:%d" % (LDS_C + 16)))
            at(p + 1, lambda j=j: A("s_waitcnt lgkmcnt(0)\nv_and_b32 v0, %d, v0\nv_cmp_ne_u32 vcc, 0, v0" % (1 << (j % 8))))
    at(qk_at - 1, q_wait)
    t = 0; s = qk_at
    while t < 16:
        ts = [u for u in (t, t + 1) if u < 16 and 4 * u + 3 + dm < s and (u < 14 or s >= 64)]
        if ts:
            assert all(s < 4 * (u + 10) + 3 + dm for u in ts)
            at(s, qk(ts)); t += len(ts); slast = s
        s += 1
    at(slast + 1, smax)
    for k in range(4): at(slast + 2 + k, sexp(32 + 16 * k, 48 + 16 * k))
    at(slast + 6, ssum(32, 64)); at(slast + 7, ssum(64, 96))
    nxt = slast + 8; late = []
    for t in range(15):
        nxt = max(nxt, 67 + 4 * t + dmv)
        if nxt <= 127: at(nxt, pv(t))
        else: late.append(t)
        assert t + 10 > 15 or nxt < 64 + 4 * (t + 10)
        nxt += 1
    at(113, s_prep)
    if stamp:
        at(16, lambda: ST("pubA")); at(96, lambda: ST("pubML")); at(112, lambda: ST("yg")); at(56, lambda: ST("q"))
    for i in range(128):
        if adapt and i == adapt[0] + win: amode[0] = True
        if (p0 is not None or par) and i == pm + 1: amode[0] = True
        if dodd and i == 0: pace(d0)
        elif dend and i >= dend[0]: pace(dend[1])
        else: pace()
        if i < 64: loadK(i >> 2, i & 3)
        else: loadV((i - 64) >> 2, i & 3)
        for f in slots.get(i, []): f()
    amode[0] = False
    for t in late: pv(t)()
    expand(15)
    for r in range(4):
        wait("V15.%d" % r)
        if r == 3: ST("V7")
        pvm(15, r)
    A("s_nop 6")
    A("ds_write_b128 v10, v[16:19] offset:%d\nds_write_b128 v10, v[20:23] offset:%d" % (LDS_O, LDS_O + HFS))
    A("s_waitcnt lgkmcnt(0)\ns_barrier")
    ST("B5")
    if ssl: A("s_sleep %d" % ssl)
    opl = "buffer_load_dwordx4 v[%d:%d], v15, %s, s100 offen %s" % (T, T + 3, WS, ldpol)
    A("s_branch L_join")

    A("L_helper:")
    A("v_mov_b32 v12, 0\nv_mov_b32 v13, 0\nv_mov_b32 v14, 0\nv_mov_b32 v15, 0\nds_write_b128 v12, v[12:15] offset:%d\nds_write_b32 v12, v12 offset:%d" % (LDS_C, LDS_C + 16))
    A("s_waitcnt lgkmcnt(0)")
    A("s_load_dword s%d, s[28:29], %d" % (sTAG, WS_EPOCH))
    A("s_barrier")
    srds2()
    if cpre:
        if cpre == 1: A("s_cmp_lt_u32 s%d, 120\ns_cbranch_scc1 L_nocp" % sTILE)
        A("s_getpc_b64 s[34:35]\nL_pc0:\ns_sub_u32 s34, s34, L_pc0-%s_kernel\ns_subb_u32 s35, s35, 0" % NAME)
        A("s_and_b32 s63, s3, 3\ns_lshl_b32 s63, s63, 10\nv_add_u32 v32, s63, v%d" % vVO)
        for k in range(4):
            A("v_min_u32 v33, L_end-%s_kernel-16, v32\nglobal_load_dwordx4 v[36:39], v33, s[34:35]\nv_add_u32 v32, 4096, v32" % NAME)
        A("L_nocp:")
    if tlb:
        only_wave(6, "L_notlb")
        A("s_lshl_b32 s63, s%d, 18\ns_add_u32 s63, s63, 0x3ff80\nv_mov_b32 v32, s63\ns_lshl_b32 s63, s%d, 15\nv_mov_b32 v33, s63\ns_mul_i32 s63, s%d, %d\nv_mov_b32 v34, s63\nv_mov_b32 v35, 0\ns_mov_b64 exec, 1" % (sSLOT, sREST, sREST, 14 * 1024))
        if tlb & 1: A("global_load_dword v36, v32, s[8:9] nt")
        if tlb & 2: A("global_load_dword v37, v33, s[12:13] nt\nglobal_load_dword v38, v34, s[20:21] nt")
        if tlb & 4: A("global_load_dword v39, v35, s[24:25] nt")
        A("s_mov_b64 exec, -1\nL_notlb:")
    if lateg:
        tag()
    if stlb:
        only_wave(6, "L_nostlb")
        await_lds(LDS_C + 12, pstl, nap)
        A("s_lshl_b32 s63, s%d, 18\ns_add_u32 s32, s8, s63\ns_addc_u32 s33, s9, 0\ns_lshl_b32 s63, s%d, 15\ns_add_u32 s34, s12, s63\ns_addc_u32 s35, s13, 0\ns_mul_i32 s63, s%d, %d\ns_add_u32 s36, s20, s63\ns_addc_u32 s37, s21, 0" % (sSLOT, sREST, sREST, 14 * 1024))
        if stlb & 1: A("s_load_dword s38, s[32:33], 0")
        if stlb & 2: A("s_load_dword s39, s[34:35], 0\ns_load_dword s40, s[36:37], 0")
        if stlb & 4: A("s_load_dword s41, s[24:25], 0")
        A("L_nostlb:")
    only_wave(5, "L_nox")
    if lateg: await_lds(LDS_C + 12, lateg, nap)
    A("s_lshl_b32 s63, s%d, 10\nv_add_u32 v9, s63, v%d" % (sB, vVO))
    A("global_load_dwordx4 v[32:35], v9, s[4:5]\nglobal_load_dwordx4 v[36:39], v%d, s[22:23]" % vVO)
    if tearly:
        A("s_lshl_b32 s63, s%d, 7\ns_add_u32 s63, s63, %d\nv_mov_b32 v12, 0\nbuffer_load_dword v44, v12, %s, s63 offen %s" % (sSLOT, WS_ML, WS, tpol))
    A("s_waitcnt vmcnt(0)")
    A("v_dot2_f32_bf16 v%d, v32, v36, 0" % vG)
    for i in range(1, 4): A("v_dot2_f32_bf16 v%d, v%d, v%d, v%d" % (vG, 32 + i, 36 + i, vG))
    A("s_nop 2")
    for c in ("quad_perm:[1,0,3,2]", "quad_perm:[2,3,0,1]", "row_half_mirror", "row_mirror"):
        dpp("v_add_f32", vG, vG, vG, c); A("s_nop 1")
    xrows("v_add_f32", vG, 9)
    A("v_mul_f32 v%d, 0x%08x, v%d\nv_exp_f32 v%d, v%d\ns_nop 0\nv_add_f32 v%d, 1.0, v%d\nv_rcp_f32 v%d, v%d" % (vG, f2u(-LOG2E), vG, vG, vG, vG, vG, vG, vG))
    A("L_nox:")
    if not lateg: tag()
    only_wave(4, "L_noA2")
    A("s_cmp_ge_u32 s%d, 120\ns_cbranch_scc1 L_noA2" % sTILE)
    if pub4:
        A("v_and_b32 v14, 31, v%d\nv_lshlrev_b32 v9, 4, v14\nv_lshrrev_b32 v15, 5, v%d\nv_lshl_add_u32 v9, v15, 3, v9" % (vL, vL))
        A("v_lshrrev_b32 v14, 4, v14\nv_mul_u32_u24 v14, %d, v14\nv_add_u32 v14, v14, v%d" % (30720 - 256, vVO))
    else:
        A("v_lshlrev_b32 v9, 3, v%d\nv_lshrrev_b32 v14, 5, v%d\nv_mul_u32_u24 v14, %d, v14\nv_add_u32 v14, v14, v9" % (vL, vL, 30720 - 256))
    A("s_mul_i32 s64, s%d, 61440\ns_lshl_b32 s65, s%d, 8\ns_add_u32 s64, s64, s65\ns_add_u32 s64, s64, %d" % (sB, sTILE, WS_QG))
    if tearly:
        A("s_mov_b32 exec_hi, 0\nbuffer_load_dwordx4 v[44:47], v14, %s, s64 offen %s\ns_mov_b32 exec_hi, -1" % (WS, tpol))
    await_lds(LDS_C, 4, 1)
    for w in range(4):
        A("ds_read_b64 v[%d:%d], v9 offset:%d" % (32 + 2 * w, 33 + 2 * w, LDS_A + 1024 * w))
    A("s_waitcnt lgkmcnt(0)\nv_pk_add_f32 v[32:33], v[32:33], v[34:35]\nv_pk_add_f32 v[36:37], v[36:37], v[38:39]\nv_pk_add_f32 v[32:33], v[32:33], v[36:37]")
    if pub4:
        A("v_cvt_pk_bf16_f32 v36, v32, v33\nv_cvt_pk_bf16_f32 v38, v32, v33\nv_mov_b32 v37, s%d\nv_mov_b32 v39, s%d\nv_permlane32_swap_b32 v36, v38\ns_mov_b32 exec_hi, 0" % (sTAG, sTAG))
        A("buffer_store_dwordx4 v[36:39], v14, %s, s64 offen %s\ns_mov_b32 exec_hi, -1" % (WS, stpol))
    else:
        A("v_cvt_pk_bf16_f32 v32, v32, v33\nv_mov_b32 v33, s%d" % sTAG)
        A("buffer_store_dwordx2 v[32:33], v14, %s, s64 offen %s" % (WS, stpol))
    A("L_noA2:")
    ST("pubA")
    def adapt_cps(cs, setup=False):
        l1 = newlabel("noad")
        if setup:
            nrow = npeer // 8; span = 32 // nrow
            A("s_lshr_b32 s64, s2, 3\ns_and_b32 s60, s64, %d\ns_mul_i32 s60, s60, %d\ns_lshr_b32 s64, s64, %d\ns_lshl_b32 s64, s64, 3\ns_and_b32 s63, s2, 7\ns_add_u32 s64, s64, s63\ns_add_u32 s64, s64, s60" % (span - 1, npeer, span.bit_length() - 1))
            A("s_lshl_b32 s64, s64, %d\ns_add_u32 s66, s64, %d\ns_lshl_b32 s60, s60, %d\ns_add_u32 s60, s60, %d" % (mkstr, WS_MK, mkstr, WS_MK))
            A("v_and_b32 v50, %d, v%d\nv_lshlrev_b32 v50, %d, v50\nv_mov_b32 v51, 0\nv_mov_b32 v52, s%d" % (npeer - 1, vL, mkstr, sTAG))
            if stamp: A("s_mov_b32 s71, 0")
        only_wave(aw, l1)
        for c in cs:
            await_lds(LDS_C + 12, adapt[c], 1)
            A("s_mov_b64 exec, 1\nbuffer_store_dword v52, v51, %s, s66 offen %s\ns_mov_b64 exec, -1" % (WS, stpol))
            if adelay: A("s_waitcnt vmcnt(0)")
            A("buffer_load_dword v53, v50, %s, s60 offen %s" % (WS, ldpol))
            A("s_add_u32 s66, s66, 32768\ns_add_u32 s60, s60, 32768\ns_waitcnt vmcnt(0)")
            A("v_cmp_eq_u32 vcc, s%d, v53\ns_bcnt1_i32_b64 s63, vcc\ns_mov_b32 s61, 0" % sTAG)
            for thr, m in alev:
                A("s_cmp_ge_u32 s63, %d\ns_cselect_b32 s61, %d, s61" % (thr, m))
            A("v_mov_b32 v53, s61\nds_write_b32 v51, v53 offset:%d" % (LDS_C + 16))
            if stamp: A("s_min_u32 s63, s63, 63\ns_lshl_b32 s63, s63, %d\ns_or_b32 s71, s71, s63" % (6 * c))
        A("%s:" % l1)
    if adapt: adapt_cps([c for c, cp in enumerate(adapt) if cp < p1], True)
    A("v_lshrrev_b32 v40, 5, v%d\nv_mul_u32_u24 v40, %d, v40\nv_add_u32 v40, v40, v%d" % (vL, 61440 - 512, vVO))
    A("s_mul_i32 s98, s%d, 30720\ns_lshr_b32 s64, s%d, 4\ns_lshl_b32 s64, s64, 11\ns_add_u32 s98, s98, s64\ns_and_b32 s65, s3, 3\ns_lshl_b32 s64, s65, 9\ns_add_u32 s98, s98, s64\ns_add_u32 s98, s98, %d" % (sB, sREST, WS_QG))
    qld = "buffer_load_dwordx4 v[32:35], v40, %s, s98 offen %s" % (WS, ldpol)
    if p0 is None:
        await_lds(LDS_C + 12, p1, nap)
        poll([qld], [33, 35], 4)
    else:
        await_lds(LDS_C + 12, p0, 1)
        A(qld + "\ns_waitcnt vmcnt(0)")
        cmpn([33, 35])
        A("s_wqm_b64 s[60:61], vcc\ns_bcnt0_i32_b64 s63, s[60:61]\nv_mov_b32 v12, 0\nv_mov_b32 v13, s63\ns_mov_b64 exec, 1\nds_add_u32 v12, v13 offset:%d\ns_mov_b64 exec, -1" % (LDS_C + 16))
        A("s_cmp_eq_u32 s63, 64\ns_cbranch_scc1 L_qok")
        await_lds(LDS_C + 12, p1, nap)
        A("s_mov_b64 exec, s[60:61]")
        poll([qld], [33, 35], 4)
        A("L_qok:")
    A("v_mov_b32 v36, v32\nv_mov_b32 v37, v34\ns_lshl_b32 s63, s65, 8\ns_add_u32 s63, s63, %d\nv_permlane32_swap_b32 v36, v32\nv_permlane32_swap_b32 v37, v34" % LDS_Q)
    for a, b in ((36, 32), (37, 34)):
        A("v_lshlrev_b32 v12, 16, v%d\nv_lshlrev_b32 v13, 16, v%d\nv_and_b32 v14, 0xffff0000, v%d\nv_and_b32 v15, 0xffff0000, v%d" % (a, b, a, b))
        A("v_add_f32 v12, v12, v13\nv_add_f32 v14, v14, v15\nv_cvt_pk_bf16_f32 v%d, v12, v14" % a)
    A("v_and_b32 v9, 31, v%d\nv_lshl_add_u32 v9, v9, 3, s63" % vL)
    A("ds_write2_b32 v9, v36, v37 offset0:0 offset1:1")
    bump(LDS_C + 8)
    only_wave(5, "L_noside")
    A("v_min_u32 v40, 13, v11\nv_lshrrev_b32 v40, 1, v40\nv_lshlrev_b32 v40, 3, v40")
    A("s_mul_i32 s63, s%d, 7\ns_mul_i32 s64, s%d, 3840\ns_add_u32 s63, s63, s64\ns_lshl_b32 s63, s63, 3\ns_add_u32 s63, s63, %d" % (sREST, sB, WS_QG + 2048 * 8))
    A("v_and_b32 v41, 1, v10\nv_mul_u32_u24 v41, 61440, v41\nv_lshrrev_b32 v42, 1, v10\nv_mul_u32_u24 v42, %d, v42\nv_add3_u32 v40, v40, v41, v42\nv_add_u32 v40, s63, v40" % (896 * 8))
    poll(["buffer_load_dwordx2 v[32:33], v40, %s, 0 offen %s" % (WS, ldpol)], [33], 4)
    A("v_and_b32 v34, 1, v%d\nv_cmp_eq_u32 vcc, 1, v34\nv_lshlrev_b32 v34, 16, v32\nv_and_b32 v35, 0xffff0000, v32" % vL)
    A("v_cndmask_b32 v34, v34, v35, vcc\nv_cmp_gt_u32 vcc, 14, v11\nv_mov_b32 v35, v34\ns_nop 1\nv_permlane16_swap_b32 v35, v34\nv_add_f32 v34, v34, v35")
    A("v_mov_b32 v36, v34\ns_nop 1\nv_permlane32_swap_b32 v34, v36")
    A("v_mul_f32 v34, 0x%08x, v34\nv_exp_f32 v34, v34\nv_sub_f32 v37, 1.0, v%d\nv_add_f32 v34, 1.0, v34\nv_rcp_f32 v34, v34\nv_mul_f32 v36, v36, v37" % (f2u(-LOG2E), vG))
    A("v_mul_f32 v34, v34, v36\nv_cndmask_b32 v34, 0, v34, vcc")
    A("v_and_b32 v35, 7, v11\nv_lshlrev_b32 v35, 3, v35\nv_lshrrev_b32 v36, 3, v11\nv_lshl_add_u32 v35, v36, 2, v35")
    A("ds_write_b32 v35, v34 offset:%d" % LDS_H)
    A("v_and_b32 v40, 3, v%d\nv_lshlrev_b32 v40, 4, v40\nv_bfe_u32 v41, v%d, 2, 1\nv_lshl_add_u32 v41, v41, 6, v40" % (vL, vL))
    A("s_lshl_b32 s64, s%d, 7\ns_add_u32 s64, s64, %d\nv_mov_b32 v45, s%d\nv_mov_b32 v47, s%d" % (sSLOT, WS_ML, sTAG, sTAG))
    await_lds(LDS_C + 4, 4, nap)
    A("ds_read_b128 v[32:35], v40 offset:%d\nds_read_b128 v[36:39], v40 offset:%d" % (LDS_M, LDS_L))
    A("v_and_b32 v42, 12, v%d\nv_add_u32 v42, v42, v40\nds_read_b32 v43, v42 offset:%d" % (vL, LDS_M))
    A("s_waitcnt lgkmcnt(0)\nv_max3_f32 v44, v32, v33, v34\nv_max_f32 v44, v44, v35")
    for w in range(4): A("v_sub_f32 v%d, v%d, v44" % (32 + w, 32 + w))
    for w in range(4): A("v_exp_f32 v%d, v%d" % (32 + w, 32 + w))
    A("v_mul_f32 v46, v32, v36")
    for w in range(1, 4): A("v_fmac_f32 v46, v%d, v%d" % (32 + w, 36 + w))
    A("s_mov_b64 exec, 0xff")
    A("buffer_store_dwordx4 v[44:47], v41, %s, s64 offen %s" % (WS, stpol))
    A("s_mov_b64 exec, -1")
    ST("pubML")
    A("s_and_b32 s64, s%d, 0xf0\ns_lshl_b32 s64, s64, 7\ns_add_u32 s64, s64, %d" % (sSLOT, WS_ML))
    A("v_lshrrev_b32 v41, 2, v%d\nv_lshl_add_u32 v41, v41, 7, v40" % vL)
    await_lds(LDS_C + 12, p2, nap)
    poll(["buffer_load_dwordx4 v[32:35], v41, %s, s64 offen %s" % (WS, ldpol)], [33, 35], 4)
    A("v_mov_b32 v36, v32\ns_nop 1")
    for c in ("row_ror:4", "row_ror:8"):
        dpp("v_max_f32", 36, 36, 36, c); A("s_nop 1")
    xrows("v_max_f32", 36, 37)
    A("v_sub_f32 v37, v32, v36\nv_exp_f32 v37, v37\ns_nop 0\nv_mul_f32 v37, v37, v34\ns_nop 1")
    for c in ("row_ror:4", "row_ror:8"):
        dpp("v_add_f32", 37, 37, 37, c); A("s_nop 1")
    xrows("v_add_f32", 37, 38)
    A("v_sub_f32 v43, v43, v36\nv_rcp_f32 v37, v37\nv_exp_f32 v43, v43\nv_mul_f32 v37, v37, v%d\nv_mul_f32 v43, v43, v37" % vG)
    A("ds_write_b32 v42, v43 offset:%d" % LDS_F)
    A("L_noside:")
    if adapt: adapt_cps([c for c, cp in enumerate(adapt) if cp >= p1])
    A("s_cmp_lg_u32 s2, 255\ns_cbranch_scc1 L_noep")
    only_wave(7, "L_noep")
    A("v_lshlrev_b32 v48, 9, v%d\ns_mov_b32 s64, %d" % (vL, WS_ML))
    await_lds(LDS_C + 12, pe, nap)
    poll(["buffer_load_dwordx4 v[%d:%d], v48, %s, s64 offen offset:%d %s" % (32 + 4 * a, 35 + 4 * a, WS, 128 * a, ldpol) for a in range(4)], [33 + 2 * a for a in range(8)], 8)
    A("v_mov_b32 v48, %d\nv_mov_b32 v49, s%d\ns_mov_b64 exec, 1" % (WS_EPOCH, sTAG))
    A("buffer_store_dword v49, v48, %s, 0 offen %s" % (WS, stpol))
    A("s_mov_b64 exec, -1")
    A("L_noep:")
    w2_prep()
    A("v_lshrrev_b32 v11, 1, v%d\nv_lshlrev_b32 v11, 4, v11\nv_and_b32 v13, 1, v%d\nv_mul_u32_u24 v13, %d, v13" % (vL, vL, HFS))
    A("s_and_b32 s65, s3, 1\ns_lshl_b32 s63, s65, 9\nv_add3_u32 v11, v11, v13, s63")
    A("v_lshrrev_b32 v14, 5, v%d\nv_lshlrev_b32 v14, 4, v14\ns_lshl_b32 s63, s65, 5\nv_add_u32 v14, s63, v14" % vL)
    A("s_lshl_b32 s99, s%d, 11\ns_lshl_b32 s63, s65, 10\ns_add_u32 s99, s99, s63\ns_add_u32 s99, s99, %d" % (sSLOT, WS_OP))
    A("v_lshlrev_b32 v15, 11, v9\nv_lshl_add_u32 v15, v12, 4, v15")
    A("s_and_b32 s100, s%d, 0xf0\ns_lshl_b32 s63, s65, 3\ns_add_u32 s100, s100, s63\ns_lshl_b32 s100, s100, 11\ns_and_b32 s63, s%d, 15\ns_lshl_b32 s63, s63, 7\ns_add_u32 s100, s100, s63\ns_add_u32 s100, s100, %d" % (sSLOT, sREST, WS_OP))
    A("v_mov_b32 v%d, s%d\nv_mov_b32 v%d, s%d" % (PUB + 1, sTAG, PUB + 3, sTAG))
    if touch:
        await_lds(LDS_C + 12, pt, nap)
        if touch & 1:
            A("s_cmp_ge_u32 s3, 6\ns_cbranch_scc0 L_t1")
            A(opl)
            A("L_t1:")
        if touch & 4:
            A("s_xor_b32 s63, s%d, %d\ns_lshl_b32 s63, s63, 11\ns_and_b32 s64, s3, 1\ns_lshl_b32 s64, s64, 10\ns_add_u32 s63, s63, s64\ns_add_u32 s63, s63, %d" % (sSLOT, tx, WS_OP))
            A("s_and_b32 s64, s3, 2\ns_mul_i32 s64, s64, %d\ns_add_u32 s63, s63, s64" % ((WS_YP - WS_OP) // 2))
            A("buffer_load_dwordx4 v[%d:%d], v%d, %s, s63 offen %s" % (T + 20, T + 23, vVO, WS, tpol))
        if tout:
            A("s_cmp_lt_u32 s%d, 96\ns_cbranch_scc1 L_t3\ns_lshl_b32 s63, s%d, 10\ns_sub_u32 s64, s%d, 96\ns_lshr_b32 s64, s64, 2\ns_lshl_b32 s64, s64, 7\ns_add_u32 s63, s63, s64\nv_mov_b32 v12, s63" % (sRID, sB, sRID))
            only_wave(4, "L_t3")
            A("global_load_dword v%d, v12, s[24:25]\nL_t3:" % (T + 21))
        if touch & 2:
            A("s_cmp_lt_u32 s%d, 96\ns_cbranch_scc1 L_t2" % sRID)
            A("v_lshrrev_b32 v12, 2, v%d\nv_lshlrev_b32 v12, 11, v12\nv_and_b32 v13, 3, v%d\nv_lshl_add_u32 v12, v13, 4, v12" % (vL, vL))
            A("s_lshl_b32 s64, s%d, 7\ns_and_b32 s63, s3, 3\ns_lshl_b32 s63, s63, 5\ns_add_u32 s64, s64, s63\ns_lshl_b32 s64, s64, 11\ns_sub_u32 s63, s%d, 96\ns_lshl_b32 s63, s63, 6\ns_add_u32 s64, s64, s63\ns_add_u32 s64, s64, %d\ns_add_u32 s63, s64, 32768" % (sB, sRID, WS_YP))
            A("buffer_load_dwordx4 v[%d:%d], v12, %s, s64 offen %s\nbuffer_load_dwordx4 v[%d:%d], v12, %s, s63 offen %s" % (T + 20, T + 23, WS, ldpol, T + 20, T + 23, WS, ldpol))
            A("L_t2:")
    A("s_cmp_ge_u32 s3, 6\ns_cselect_b32 s60, %d, %d" % (0 if preG else 1, 0 if preP else 1))
    if preG or preP:
        A("s_cmp_eq_u32 s60, 1\ns_cbranch_scc1 L_nopre")
        await_lds(LDS_C + 12, pe, nap)
        load_wd(0); load_wd(1)
        for a in range(4): load_wo(a)
        A("L_nopre:")
    A("s_waitcnt lgkmcnt(0)\ns_barrier")
    ST("B5")
    x = lambda k: T + k
    A("s_cmp_ge_u32 s3, 6\ns_cbranch_scc0 L_pub")
    A(opl)
    A("s_branch L_join\nL_pub:")
    A("ds_read_b128 v[%d:%d], v14 offset:%d" % (x(16), x(19), LDS_F))
    for w in range(4):
        A("ds_read_b128 v[%d:%d], v11 offset:%d" % (x(4 * w), x(4 * w + 3), LDS_O + w * WVS))
    for w in range(4):
        A("s_waitcnt lgkmcnt(%d)" % (3 - w))
        for j in (0, 2):
            sel = "op_sel:[0,%d,0] op_sel_hi:[1,%d,1]" % (w & 1, w & 1)
            if w == 0: A("v_pk_mul_f32 v[%d:%d], v[%d:%d], v[%d:%d] op_sel:[0,0] op_sel_hi:[1,0]" % (x(j), x(j + 1), x(j), x(j + 1), x(16), x(17)))
            else: A("v_pk_fma_f32 v[%d:%d], v[%d:%d], v[%d:%d], v[%d:%d] %s" % (x(j), x(j + 1), x(4 * w + j), x(4 * w + j + 1), x(16 + (w & 2)), x(17 + (w & 2)), x(j), x(j + 1), sel))
    A("v_cvt_pk_bf16_f32 v%d, v%d, v%d\nv_cvt_pk_bf16_f32 v%d, v%d, v%d" % (PUB, x(0), x(1), PUB + 2, x(2), x(3)))
    A("buffer_store_dwordx4 v[%d:%d], v%d, %s, s99 offen %s" % (PUB, PUB + 3, vVO, WS, stpol))

    A("L_join:")
    ST("pubO")
    if b5b: A("s_barrier")
    A("s_cmp_eq_u32 s60, 0\ns_cbranch_scc1 L_nopost")
    load_wd(0); load_wd(1)
    for a in range(4): load_wo(a)
    A("L_nopost:")
    A("v_lshlrev_b32 v13, 3, v9\nds_read_b64 v[%d:%d], v13 offset:%d" % (vHH, vHH + 1, LDS_H))
    A("v_lshlrev_b32 v13, 4, v9")
    A("v_and_b32 v12, 7, v%d\nv_lshrrev_b32 v80, 4, v%d" % (vL, vL))
    A("v_lshlrev_b32 v14, 4, v12\nv_lshrrev_b32 v81, 1, v80\nv_lshl_add_u32 v14, v81, 7, v14")
    A("s_lshl_b32 s99, s%d, 11\ns_lshl_b32 s63, s3, 8\ns_add_u32 s99, s99, s63\ns_add_u32 s99, s99, %d" % (sSLOT, WS_YP))
    A("v_and_b32 v11, 1, v12\nv_lshlrev_b32 v11, 6, v11\nv_lshl_add_u32 v11, v80, 4, v11\nv_lshrrev_b32 v12, 1, v12\nv_lshl_add_u32 v11, v12, 2, v11\ns_and_b32 s63, s3, 1\ns_lshl_b32 s63, s63, 7\nv_add_u32 v11, s63, v11")
    A("s_waitcnt vmcnt(4)\ns_cmp_eq_u32 s60, 1\ns_cbranch_scc1 L_wd\ns_waitcnt vmcnt(1)\nL_wd:")
    A("s_waitcnt lgkmcnt(0)")
    for a in range(2):
        for j in range(4):
            A("v_lshlrev_b32 v80, 16, v%d\nv_and_b32 v81, 0xffff0000, v%d" % (WDR + 4 * a + j, WDR + 4 * a + j))
            op = "v_mul_f32" if a == 0 else "v_fmac_f32"
            A("%s v%d, v%d, v80\n%s v%d, v%d, v81" % (op, YA + 2 * j, vHH + a, op, YA + 2 * j + 1, vHH + a))
    A("s_cmp_eq_u32 s60, 0\ns_cbranch_scc1 L_wo\ns_waitcnt vmcnt(0)\nL_wo:")
    for r in range(16):
        A("v_lshlrev_b32 v%d, 16, v%d\nv_and_b32 v%d, 0xffff0000, v%d" % (WOF + 2 * r, WOR + r, WOF + 2 * r + 1, WOR + r))
    def unpack4(b):
        A("v_lshlrev_b32 v%d, 16, v%d\nv_lshlrev_b32 v%d, 16, v%d\nv_and_b32 v%d, 0xffff0000, v%d\nv_and_b32 v%d, 0xffff0000, v%d\ns_nop 0" % (x(4), b, x(6), b + 2, x(5), b, x(7), b + 2))
    def mpoll(ns, sleep):
        if ns == 1:
            poll([opl], [x(1), x(3)], sleep, first=False); unpack4(x(0)); return
        base = [x(0)] + [x(8 + 4 * k) for k in range(ns - 1)]
        ld = lambda k: "buffer_load_dwordx4 v[%d:%d], v15, %s, s100 offen %s" % (base[k], base[k] + 3, WS, ldpol)
        pend = [34, 40, 42, 32][:ns]
        lo, fin = newlabel("mp"), newlabel("mf")
        A("s_waitcnt vmcnt(0)")
        cmpn([base[0] + 1, base[0] + 3])
        A("s_wqm_b64 exec, vcc\ns_cbranch_scc0 %s_0\ns_mov_b32 s62, 0" % fin)
        A("s_mov_b64 s[%d:%d], exec" % (pend[0], pend[0] + 1))
        A(ld(0))
        A("s_mov_b64 exec, -1")
        for k in range(1, ns):
            A("s_mov_b64 s[%d:%d], -1\ns_sleep %d" % (pend[k], pend[k] + 1, stag)); A(ld(k))
        A("%s:" % lo)
        for k in range(ns):
            A("s_mov_b64 exec, s[%d:%d]\ns_waitcnt vmcnt(%d)" % (pend[k], pend[k] + 1, ns - 1))
            cmpn([base[k] + 1, base[k] + 3])
            A("s_wqm_b64 exec, vcc\ns_cbranch_scc0 %s_%d" % (fin, k))
            A("s_mov_b64 s[%d:%d], exec" % (pend[k], pend[k] + 1))
            A(ld(k))
        A("s_add_u32 s62, s62, 1\ns_cmp_gt_u32 s62, %d\ns_cbranch_scc0 %s\ns_branch L_bail" % (spin, lo))
        for k in range(ns - 1, -1, -1):
            A("%s_%d:\ns_mov_b64 exec, -1" % (fin, k)); unpack4(base[k])
            if k: A("s_branch %s" % fin)
        A("%s:" % fin)
    def red4(steps):
        A("v_permlane32_swap_b32 v%d, v%d\nv_permlane32_swap_b32 v%d, v%d\nv_add_f32 v%d, v%d, v%d\nv_add_f32 v%d, v%d, v%d\ns_nop 1" % (x(4), x(6), x(5), x(7), x(4), x(4), x(6), x(5), x(5), x(7)))
        A("v_permlane16_swap_b32 v%d, v%d\nv_add_f32 v%d, v%d, v%d" % (x(4), x(5), x(4), x(4), x(5)))
        for c in steps:
            A("s_nop 1"); dpp("v_add_f32", x(4), x(4), x(4), c)
    A("s_cmp_lt_u32 s3, 6\ns_cbranch_scc1 L_nog2")
    mpoll(ns1, sleep1)
    red4(["row_ror:8"])
    A("ds_write_b32 v11, v%d offset:%d\ns_waitcnt lgkmcnt(0)" % (x(4), LDS_o))
    A("L_nog2:")
    ST("og")
    A("s_barrier")
    y = lambda k: T + 24 + k
    A("ds_read_b128 v[%d:%d], v13 offset:%d\nds_read_b128 v[%d:%d], v13 offset:%d" % (y(0), y(3), LDS_o, y(4), y(7), LDS_o + 128))
    A("s_waitcnt lgkmcnt(0)")
    A("v_pk_add_f32 v[%d:%d], v[%d:%d], v[%d:%d]\nv_pk_add_f32 v[%d:%d], v[%d:%d], v[%d:%d]" % (y(0), y(1), y(0), y(1), y(4), y(5), y(2), y(3), y(2), y(3), y(6), y(7)))
    for a in range(4):
        for j in range(0, 8, 2):
            lo = a & 1
            A("v_pk_fma_f32 v[%d:%d], v[%d:%d], v[%d:%d], v[%d:%d] op_sel:[0,%d,0] op_sel_hi:[1,%d,1]" % (YA + j, YA + j + 1, WOF + 8 * a + j, WOF + 8 * a + j + 1, y(a & 2), y((a & 2) + 1), YA + j, YA + j + 1, lo, lo))
    A("s_nop 1")
    for k in range(4): A("v_permlane32_swap_b32 v%d, v%d" % (YA + k, YA + k + 4))
    for k in range(4): A("v_add_f32 v%d, v%d, v%d" % (YA + k, YA + k, YA + k + 4))
    A("s_nop 0\nv_permlane16_swap_b32 v%d, v%d\nv_permlane16_swap_b32 v%d, v%d" % (YA, YA + 2, YA + 1, YA + 3))
    A("v_add_f32 v%d, v%d, v%d\nv_add_f32 v%d, v%d, v%d\ns_nop 0" % (YA, YA, YA + 2, YA + 1, YA + 1, YA + 3))
    dpp("v_add_f32", YA, YA, YA, "row_ror:8"); dpp("v_add_f32", YA + 1, YA + 1, YA + 1, "row_ror:8")
    A("v_cvt_pk_bf16_f32 v%d, v%d, v%d\nv_cvt_pk_bf16_f32 v%d, v%d, v%d\ns_nop 1\nv_permlane16_swap_b32 v%d, v%d" % (PUB + 2, YA, YA + 1, PUB, YA, YA + 1, PUB, PUB + 2))
    A("s_mov_b32 exec_lo, 0xff\ns_mov_b32 exec_hi, 0xff")
    A("buffer_store_dwordx4 v[%d:%d], v14, %s, s99 offen %s" % (PUB, PUB + 3, WS, stpol))
    A("s_mov_b64 exec, -1")
    ST("pubY")
    if nred == 64:
        A("s_cmp_lt_u32 s%d, 96\ns_cbranch_scc1 L_exit" % sRID)
        A("v_lshrrev_b32 v15, 2, v%d\nv_lshlrev_b32 v15, 11, v15\nv_and_b32 v9, 3, v%d\nv_lshl_add_u32 v15, v9, 4, v15" % (vL, vL))
        A("s_lshl_b32 s100, s%d, 7\ns_lshl_b32 s63, s3, 4\ns_add_u32 s100, s100, s63\ns_lshl_b32 s100, s100, 11\ns_sub_u32 s64, s%d, 96\ns_lshl_b32 s63, s64, 6\ns_add_u32 s100, s100, s63\ns_add_u32 s100, s100, %d" % (sB, sRID, WS_YP))
        A(opl)
        A("v_lshlrev_b32 v9, 4, v9\nv_lshrrev_b32 v10, 4, v%d\nv_lshl_add_u32 v9, v10, 2, v9\ns_lshl_b32 s63, s3, 6\nv_add_u32 v9, s63, v9" % vL)
        A("v_and_b32 v10, 7, v%d\nv_lshlrev_b32 v11, 3, v10\nv_lshrrev_b32 v12, 1, v10\nv_and_b32 v10, 1, v10\nv_lshlrev_b32 v10, 2, v10\nv_lshl_add_u32 v10, v12, 4, v10" % vL)
        A("s_lshl_b32 s63, s%d, 10\ns_lshr_b32 s65, s64, 2\ns_lshl_b32 s65, s65, 7\ns_add_u32 s63, s63, s65\ns_and_b32 s65, s64, 1\ns_lshl_b32 s65, s65, 6\ns_add_u32 s63, s63, s65\ns_and_b32 s65, s64, 2\ns_lshl_b32 s65, s65, 2\ns_add_u32 s63, s63, s65\nv_add_u32 v10, s63, v10" % sB)
        mpoll(ns2, sleep2)
        ST("yg")
        red4(["row_ror:4", "row_ror:8"])
        A("ds_write_b32 v9, v%d offset:%d\ns_waitcnt lgkmcnt(0)\ns_barrier" % (x(4), LDS_R))
        only_wave(0, "L_exit")
        for w in range(8):
            A("ds_read_b64 v[%d:%d], v11 offset:%d" % (64 + 2 * w, 65 + 2 * w, LDS_R + 64 * w))
        A("s_waitcnt lgkmcnt(4)\nv_pk_add_f32 v[64:65], v[64:65], v[66:67]\nv_pk_add_f32 v[68:69], v[68:69], v[70:71]\nv_pk_add_f32 v[64:65], v[64:65], v[68:69]")
        A("s_waitcnt lgkmcnt(0)\nv_pk_add_f32 v[72:73], v[72:73], v[74:75]\nv_pk_add_f32 v[76:77], v[76:77], v[78:79]\nv_pk_add_f32 v[72:73], v[72:73], v[76:77]\nv_pk_add_f32 v[64:65], v[64:65], v[72:73]")
        A("s_mov_b64 exec, 0xff\nv_cvt_pk_bf16_f32 v64, v64, v65")
    else:
        A("s_cmp_lt_u32 s%d, 112\ns_cbranch_scc1 L_exit" % sRID)
        A("v_lshrrev_b32 v15, 3, v%d\nv_lshlrev_b32 v15, 11, v15\nv_and_b32 v9, 7, v%d\nv_lshl_add_u32 v15, v9, 4, v15" % (vL, vL))
        A("s_lshl_b32 s100, s%d, 7\ns_lshl_b32 s63, s3, 4\ns_add_u32 s100, s100, s63\ns_lshl_b32 s100, s100, 11\ns_sub_u32 s64, s%d, 112\ns_lshl_b32 s63, s64, 7\ns_add_u32 s100, s100, s63\ns_add_u32 s100, s100, %d\ns_add_u32 s99, s100, 16384" % (sB, sRID, WS_YP))
        fl = [opl, "buffer_load_dwordx4 v[%d:%d], v15, %s, s99 offen %s" % (x(8), x(11), WS, ldpol)]
        A(fl[0]); A(fl[1])
        A("v_lshlrev_b32 v9, 4, v9\nv_lshrrev_b32 v10, 4, v%d\nv_lshl_add_u32 v9, v10, 2, v9\ns_lshl_b32 s63, s3, 7\nv_add_u32 v9, s63, v9" % vL)
        A("v_and_b32 v10, 15, v%d\nv_lshlrev_b32 v11, 3, v10\nv_lshrrev_b32 v12, 1, v10\nv_and_b32 v10, 1, v10\nv_lshlrev_b32 v10, 2, v10\nv_lshl_add_u32 v10, v12, 4, v10" % vL)
        A("s_lshl_b32 s63, s%d, 10\ns_lshr_b32 s65, s64, 1\ns_lshl_b32 s65, s65, 7\ns_add_u32 s63, s63, s65\ns_and_b32 s65, s64, 1\ns_lshl_b32 s65, s65, 3\ns_add_u32 s63, s63, s65\nv_add_u32 v10, s63, v10" % sB)
        poll(fl, [x(1), x(3), x(9), x(11)], sleep2, first=False)
        ST("yg")
        A("v_lshlrev_b32 v%d, 16, v%d\nv_lshlrev_b32 v%d, 16, v%d\nv_and_b32 v%d, 0xffff0000, v%d\nv_and_b32 v%d, 0xffff0000, v%d" % (x(12), x(8), x(14), x(10), x(13), x(8), x(15), x(10)))
        unpack4(x(0))
        A("v_pk_add_f32 v[%d:%d], v[%d:%d], v[%d:%d]\nv_pk_add_f32 v[%d:%d], v[%d:%d], v[%d:%d]\ns_nop 1" % (x(4), x(5), x(4), x(5), x(12), x(13), x(6), x(7), x(6), x(7), x(14), x(15)))
        red4(["row_ror:8"])
        A("ds_write_b32 v9, v%d offset:%d\ns_waitcnt lgkmcnt(0)\ns_barrier" % (x(4), LDS_A))
        only_wave(0, "L_exit")
        for w in range(8):
            A("ds_read_b64 v[%d:%d], v11 offset:%d" % (64 + 2 * w, 65 + 2 * w, LDS_A + 128 * w))
        A("s_waitcnt lgkmcnt(4)\nv_pk_add_f32 v[64:65], v[64:65], v[66:67]\nv_pk_add_f32 v[68:69], v[68:69], v[70:71]\nv_pk_add_f32 v[64:65], v[64:65], v[68:69]")
        A("s_waitcnt lgkmcnt(0)\nv_pk_add_f32 v[72:73], v[72:73], v[74:75]\nv_pk_add_f32 v[76:77], v[76:77], v[78:79]\nv_pk_add_f32 v[72:73], v[72:73], v[76:77]\nv_pk_add_f32 v[64:65], v[64:65], v[72:73]")
        A("s_mov_b64 exec, 0xffff\nv_cvt_pk_bf16_f32 v64, v64, v65")
    A("global_store_dword v10, v64, s[24:25] %s" % outpol)
    A("s_mov_b64 exec, -1")
    A("L_exit:")
    if gprobe:
        name, ref = gprobe
        only_wave(0, "L_gp1")
        ST("end")
        A("s_waitcnt lgkmcnt(0)\ns_lshl_b32 s63, s2, 7\ns_add_u32 s63, s63, %d\nv_mov_b32 v20, s70\nv_mov_b32 v21, s%d\nv_mov_b32 v22, s%d\nv_mov_b32 v23, s%d\nv_mov_b32 v24, 0" % (WS_MK, sTAG, stn[name], sTAG))
        A("s_mov_b64 exec, 1\nbuffer_store_dwordx4 v[20:23], v24, %s, s63 offen sc1\ns_mov_b64 exec, -1" % WS)
        A("L_gp1:")
        only_wave(7, "L_gp2")
        A("s_cmp_lg_u32 s2, 0\ns_cbranch_scc1 L_gp2")
        A("L_gpw:\ns_sleep 16\ns_memrealtime s[64:65]\ns_waitcnt lgkmcnt(0)\ns_sub_u32 s64, s64, s70\ns_cmp_lt_u32 s64, 3500\ns_cbranch_scc1 L_gpw")
        A("v_lshlrev_b32 v48, 9, v%d\ns_mov_b32 s64, %d" % (vL, WS_MK))
        poll(["buffer_load_dwordx4 v[%d:%d], v48, %s, s64 offen offset:%d sc1" % (32 + 4 * a, 35 + 4 * a, WS, 128 * a) for a in range(4)], [33 + 2 * a for a in range(8)], 8)
        for a in range(8): A("v_subrev_u32 v%d, s70, v%d" % (32 + 2 * a, 32 + 2 * a))
        op0 = "v_max_i32" if ref == "late" else "v_min_i32"
        A("%s v50, v32, v36\n%s v51, v40, v44\n%s v50, v50, v51\nv_max_i32 v52, v34, v38\nv_max_i32 v51, v42, v46\nv_max_i32 v52, v52, v51\ns_nop 1" % (op0, op0, op0))
        for r, op in ((50, op0), (52, "v_max_i32")):
            for c in ("quad_perm:[1,0,3,2]", "quad_perm:[2,3,0,1]", "row_half_mirror", "row_mirror"):
                dpp(op, r, r, r, c); A("s_nop 1")
            xrows(op, r, 54)
        A("v_sub_u32 v52, v52, v50\ns_nop 0\nv_readfirstlane_b32 s63, v52\ns_sub_u32 s63, s63, %d\ns_max_i32 s63, s63, 0\ns_mul_i32 s63, s63, 10\ns_add_u32 s63, s63, 6000" % aoff)
        A("L_gpl:\ns_sleep 4\ns_memrealtime s[64:65]\ns_waitcnt lgkmcnt(0)\ns_sub_u32 s64, s64, s70\ns_cmp_lt_u32 s64, s63\ns_cbranch_scc1 L_gpl")
        A("L_gp2:")
    if skewprobe:
        only_wave(7, "L_sk1")
        A("s_waitcnt lgkmcnt(0)\ns_lshl_b32 s63, s2, 7\ns_add_u32 s63, s63, %d\nv_mov_b32 v20, s70\nv_mov_b32 v21, s%d\nv_mov_b32 v22, 0" % (WS_MK, sTAG))
        A("s_mov_b64 exec, 1\nbuffer_store_dwordx2 v[20:21], v22, %s, s63 offen sc1\ns_mov_b64 exec, -1" % WS)
        A("s_cmp_lg_u32 s2, 255\ns_cbranch_scc1 L_sk1")
        A("v_lshlrev_b32 v48, 9, v%d\ns_mov_b32 s64, %d" % (vL, WS_MK))
        poll(["buffer_load_dwordx2 v[%d:%d], v48, %s, s64 offen offset:%d sc1" % (32 + 2 * a, 33 + 2 * a, WS, 128 * a) for a in range(4)], [33, 35, 37, 39], 8)
        for a in range(4): A("v_subrev_u32 v%d, s70, v%d" % (32 + 2 * a, 32 + 2 * a))
        A("v_min_i32 v40, v32, v34\nv_min_i32 v41, v36, v38\nv_min_i32 v40, v40, v41\nv_max_i32 v42, v32, v34\nv_max_i32 v41, v36, v38\nv_max_i32 v42, v42, v41\ns_nop 1")
        for r, op in ((40, "v_min_i32"), (42, "v_max_i32")):
            for c in ("quad_perm:[1,0,3,2]", "quad_perm:[2,3,0,1]", "row_half_mirror", "row_mirror"):
                dpp(op, r, r, r, c); A("s_nop 1")
            xrows(op, r, 44)
        A("v_sub_u32 v42, v42, v40\ns_nop 0\nv_readfirstlane_b32 s63, v42\nv_readfirstlane_b32 s62, v40\ns_mul_i32 s63, s63, %d\ns_add_u32 s63, s63, 6000\ns_add_u32 s63, s63, s62" % (skewprobe - 1))
        A("L_skl:\ns_sleep 4\ns_memrealtime s[64:65]\ns_waitcnt lgkmcnt(0)\ns_sub_u32 s64, s64, s70\ns_cmp_lt_u32 s64, s63\ns_cbranch_scc1 L_skl")
        A("L_sk1:")
    if probe:
        ST("end")
        name, sign, waves = probe
        A("s_waitcnt lgkmcnt(0)")
        A("s_lshl_b32 s63, 1, s3\ns_and_b32 s63, s63, %d\ns_cbranch_scc0 L_pe" % waves)
        A("s_and_b32 s63, s2, 7\ns_lshl_b32 s63, 1, s63\ns_and_b32 s63, s63, %d\ns_cbranch_scc0 L_pe" % pslot)
        if prow is not None: A("s_lshr_b32 s63, s2, 3\ns_cmp_lg_u32 s63, %d\ns_cbranch_scc1 L_pe" % prow)
        if name == "W": A("s_cmp_ge_u32 s%d, 120\ns_cbranch_scc1 L_pe" % sTILE)
        if name == "yg": A("s_cmp_lt_u32 s%d, 96\ns_cbranch_scc1 L_pe" % sRID)
        A("s_sub_u32 s63, s%d, s70" % stn[name])
        if amp > 1: A("s_sub_u32 s63, s63, %d\ns_max_i32 s63, s63, 0\ns_mul_i32 s63, s63, %d" % (aoff, amp))
        if sign < 0: A("s_sub_u32 s63, 4000, s63")
        A("s_add_u32 s63, s63, %d" % pbase)
        A("L_pl:\ns_sleep 4\ns_memrealtime s[64:65]\ns_waitcnt lgkmcnt(0)\ns_sub_u32 s64, s64, s70\ns_cmp_lt_u32 s64, s63\ns_cbranch_scc1 L_pl")
        A("L_pe:")
    if stamp:
        ST("end")
        A("s_waitcnt lgkmcnt(0)")
        A("s_lshl_b32 s63, s2, 3\ns_add_u32 s63, s63, s3\ns_lshl_b32 s63, s63, 6\ns_add_u32 s63, s63, %d\nv_mov_b32 v9, 0" % WS_STAMP)
        for i in range(0, 16, 4):
            for j in range(4):
                A("v_mov_b32 v%d, s%d" % (20 + j, 70 + 2 * (i + j)) if i + j < len(names) else "v_mov_b32 v%d, s71" % (20 + j))
            A("buffer_store_dwordx4 v[20:23], v9, %s, s63 offen offset:%d\ns_nop 1" % (WS, 4 * i))
    A("s_endpgm")
    A("L_bail:")
    A("s_mov_b64 exec, 1\nv_mov_b32 v9, 0\nv_mov_b32 v10, 0xdead\nglobal_store_dword v9, v10, s[26:27]")
    A("L_end:\ns_endpgm")
    L.append('.section .rodata,"a"\n.p2align 6\n.amdhsa_kernel %s_kernel' % NAME)
    L.append("  .amdhsa_next_free_vgpr 256\n  .amdhsa_next_free_sgpr 102\n  .amdhsa_accum_offset 256\n  .amdhsa_group_segment_fixed_size 0\n  .amdhsa_kernarg_size 104\n  .amdhsa_user_sgpr_count 2\n  .amdhsa_user_sgpr_kernarg_segment_ptr 1\n  .amdhsa_system_sgpr_workgroup_id_x 1\n.end_amdhsa_kernel")
    if now2:
        L[:] = [ln for ln in L if not (ln.strip().startswith("buffer_load") and ("s[48:51]" in ln or "s[52:55]" in ln))]
    if noside:
        out = []; inh = False
        for i, ln in enumerate(L):
            if ln == "L_helper:": inh = True
            if ln == "L_noep:": inh = False
            if inh:
                t = ln.strip()
                if t.startswith("buffer_store") and "s" in noside: continue
                if t.startswith("buffer_load") and "l" in noside: continue
                if t.startswith("global_load") and "x" in noside: continue
                if t.startswith("s_wqm_b64 exec, vcc"): ln = "    s_and_b64 vcc, 0, 0"
            out.append(ln)
        L[:] = out
    return "\n".join(L) + "\n"
```

```python
import sys, struct
NAME = "gated_mix__gqa_block_cached__glu_gated_glu__decode"
def f2u(x): return struct.unpack("<I", struct.pack("<f", x))[0]
LOG2E = 1.4426950408889634

WS_EPOCH = 0
WS_QG = 0x1000
WS_ML = 0x20000
WS_OP = 0x40000
WS_YP = 0xC0000
WS_MK = 0x140000
WS_STAMP = 0x400000
WS_USED = 0x180000
LDS_A = 0
LDS_Q = 4096
LDS_M = 5120
LDS_L = 5184
LDS_F = 5248
LDS_H = 5312
LDS_C = 5376
LDS_o = 5632
LDS_R = 5888
HFS = 1152
WVS = 2304
LDS_O = 6400
LDS_K = LDS_O + 4 * WVS
assert LDS_K % 256 == 0
LDS_END = LDS_K + 4 * 12288

class VM:
    def __init__(self): self.ops = []
    def issue(self, name, counted=True, w=None): self.ops.append((name, counted, (1.0 if counted else None) if w is None else w))
    def after(self, name):
        idx = max(i for i, (n, c, w) in enumerate(self.ops) if n == name)
        return sum(1 for n, c, w in self.ops[idx + 1:] if c)
    def pace_n(self, room):
        n = 0; tot = 0.0
        for name, c, w in reversed(self.ops):
            if w is None: continue
            if tot + w > room: return n, True
            tot += w; n += 1
        return n, False

def gen(d=5, dpat=None, d0=None, pol="nt", kpol=None, wpol="nt", w2pol="", stamp=False,
        p1=22, p2=100, pe=123, qk_at=37, outpol="", stpol="sc1", ldpol="sc1", spin=200000, header=None, probe=None, pbase=6000,
        sleep1=0, sleep2=0, nap=2, sprio=1, dend=None, lds_pad=0, adapt=None, db=7, alev=None, win=8, mkstr=7, npeer=16, adelay=True, aw=6, skewprobe=0, gprobe=None, pslot=255, prow=None, p0=None, thr=None, pm=16, pend=126, noside=None, pub4=True, ns1=1, ns2=1, stag=3, amp=1, aoff=2000, preG=True, preP=False, b5b=True, ssl=0, now2=False, touch=0, pt=116, tx=1, tpol="", tearly=False, tout=False, par=0, dodd=None, nred=64, plate=0, pbase0=0, tlb=0, xmap=False, lateg=0, stlb=0, pstl=12, cpre=0):
    if kpol is None: kpol = pol
    if d0 is None: d0 = d
    L = []
    def A(s):
        for line in s.strip("\n").split("\n"):
            t = line.strip()
            L.append(t if t.endswith(":") else "    " + t)
    vm = VM()
    diag = stamp or probe or skewprobe or gprobe
    names = ["start", "W", "pubA", "qw", "q", "exp", "pubML", "V7", "B5", "pubO", "og", "pubY", "yg", "end"]
    stn = {n: 70 + 2 * i for i, n in enumerate(names)}
    def ST(name):
        if diag and (not gprobe or name in ("start", "end", gprobe[0])): A("s_memrealtime s[%d:%d]" % (stn[name], stn[name] + 1))
    def wait(name, extra=0):
        n = vm.after(name) + extra
        assert n <= 63
        A("s_waitcnt vmcnt(%d)" % n)
    npace = [0]; amode = [False]
    def pace(dd=None, w=1.0):
        if dodd and dd is None:
            de = dpat[npace[0] % len(dpat)] if dpat else d
            do = dodd[npace[0] % len(dodd)]
            npace[0] += 1
            (ne, need_e), (no, need_o) = vm.pace_n(de - w), vm.pace_n(do - w)
            if max(ne, no) != min(ne, no):
                l1 = newlabel("pc")
                if need_e and need_o: A("s_waitcnt vmcnt(%d)" % max(ne, no))
                A("s_cbranch_%s %s\ns_waitcnt vmcnt(%d)\n%s:" % ("vccnz" if ne < no else "vccz", l1, min(ne, no), l1))
            elif need_e: A("s_waitcnt vmcnt(%d)" % ne)
            return
        if amode[0] and dd is None:
            l1 = newlabel("pc")
            dd = dpat[npace[0] % len(dpat)] if dpat else d
            npace[0] += 1
            A("s_waitcnt vmcnt(%d)\ns_cbranch_vccnz %s\ns_waitcnt vmcnt(%d)\n%s:" % (vm.pace_n(db - w)[0], l1, vm.pace_n(dd - w)[0], l1))
            return
        if dd is None:
            dd = dpat[npace[0] % len(dpat)] if dpat else d
            npace[0] += 1
        n, need = vm.pace_n(dd - w)
        if need: A("s_waitcnt vmcnt(%d)" % n)
    lab = [0]
    def newlabel(p):
        lab[0] += 1; return "L_%s%d" % (p, lab[0])

    vL, vVO, vSP, vG = 1, 3, 4, 8
    Q0, O0, AX0, S0 = 16, 16, 24, 32
    vKS, vKR = 88, 92
    YA, PUB, vWO, vWD2, vHH = 64, 72, 76, 77, 78
    WOR, WDR, WOF, T = 128, 144, 160, 192
    def buf(i): return 96 + 16 * (i % 10)
    def Kreg(t): return buf(t)
    def Vreg(t): return buf(t + 6)
    sK, sV, sW, sWS, sWO, sWD = 32, 36, 40, 44, 48, 52
    sB, sREST, sTAG, sSTR = 30, 31, 56, 58
    sKO, sVO, sSLOT, sM0 = 66, 67, 59, 101
    sTILE, sRID = (57, 61) if xmap else (sREST, sREST)
    WS = "s[%d:%d]" % (sWS, sWS + 3)
    tstep = 4 * 4096

    def dpp(op, dst, a, b, ctrl):
        A("%s_dpp v%d, v%d, v%d %s row_mask:0xf bank_mask:0xf" % (op, dst, a, b, ctrl))
    def xrows(op, x, t):
        A("v_mov_b32 v%d, v%d\ns_nop 1\nv_permlane16_swap_b32 v%d, v%d\n%s v%d, v%d, v%d" % (t, x, t, x, op, x, t, x))
        A("v_mov_b32 v%d, v%d\ns_nop 1\nv_permlane32_swap_b32 v%d, v%d\n%s v%d, v%d, v%d" % (t, x, t, x, op, x, t, x))
    def cmpn(tagregs):
        A("v_cmp_ne_u32 vcc, s%d, v%d" % (sTAG, tagregs[0]))
        for r in tagregs[1:]:
            A("v_cmp_ne_u32 s[68:69], s%d, v%d\ns_or_b64 vcc, vcc, s[68:69]" % (sTAG, r))
    def poll(loads, tagregs, sleep=0, first=True):
        lo, lc = newlabel("spin"), newlabel("chk")
        A("s_mov_b32 s62, 0")
        if not first: A("s_branch %s" % lc)
        elif sleep: A("s_branch %s_n" % lo)
        A("%s:" % lo)
        if sleep: A("s_sleep %d\n%s_n:" % (sleep, lo))
        for s in loads: A(s)
        A("s_add_u32 s62, s62, 1\ns_cmp_gt_u32 s62, %d\ns_cbranch_scc1 L_bail" % spin)
        A("%s:" % lc)
        A("s_waitcnt vmcnt(0)")
        cmpn(tagregs)
        A("s_wqm_b64 exec, vcc\ns_cbranch_scc1 %s" % lo)
        A("s_mov_b64 exec, -1")
    def bump(off):
        A("v_mov_b32 v12, 0\nv_mov_b32 v13, 1\ns_mov_b64 exec, 1\nds_add_u32 v12, v13 offset:%d\ns_mov_b64 exec, -1" % off)
    def await_lds(off, val, sleep):
        lo = newlabel("lw")
        A("v_mov_b32 v12, 0\ns_mov_b32 s62, 0\ns_branch %s_n\n%s:" % (lo, lo))
        if sleep: A("s_sleep %d" % sleep)
        A("%s_n:\nds_read_b32 v13, v12 offset:%d\ns_add_u32 s62, s62, 1\ns_cmp_gt_u32 s62, %d\ns_cbranch_scc1 L_bail" % (lo, off, spin * 8))
        A("s_waitcnt lgkmcnt(0)\nv_readfirstlane_b32 s63, v13\ns_cmp_lt_u32 s63, %d\ns_cbranch_scc1 %s" % (val, lo))
    def only_wave(w, skip): A("s_cmp_lg_u32 s3, %d\ns_cbranch_scc1 %s" % (w, skip))

    def srds2():
        A("s_mov_b32 s%d, s28\ns_mov_b32 s%d, s29\ns_mov_b32 s%d, %d\ns_mov_b32 s%d, 0x20000" % (sWS, sWS + 1, sWS + 2, 0x500000 if stamp else WS_USED, sWS + 3))
        A("s_mov_b32 s%d, s12\ns_mov_b32 s%d, s13\ns_mov_b32 s%d, 0x400000\ns_mov_b32 s%d, 0x20000" % (sWO, sWO + 1, sWO + 2, sWO + 3))
        A("s_mov_b32 s%d, s20\ns_mov_b32 s%d, s21\ns_mov_b32 s%d, 1835008\ns_mov_b32 s%d, 0x20000" % (sWD, sWD + 1, sWD + 2, sWD + 3))
    def tag():
        A("s_waitcnt lgkmcnt(0)")
        A("s_mul_i32 s%d, s%d, 0x9e3779b5\ns_add_u32 s%d, s%d, 0x7f4a7c15" % (sTAG, sTAG, sTAG, sTAG))
    def w2_prep():
        A("v_lshrrev_b32 v9, 3, v%d\nv_and_b32 v12, 7, v%d\nv_lshlrev_b32 v%d, 4, v12\nv_lshl_add_u32 v%d, v9, 10, v%d" % (vL, vL, vWO, vWO, vWO))
        A("v_cmp_gt_u32 s[68:69], 6, v9\nv_mov_b32 v13, 0x10000000\ns_mul_i32 s58, s%d, %d\ns_lshl_b32 s64, s3, 7\ns_add_u32 s58, s58, s64" % (sREST, 14 * 1024))
        A("v_cndmask_b32 v%d, v13, v%d, s[68:69]\ns_lshl_b32 s57, s%d, 15\ns_add_u32 s57, s57, s64" % (vWD2, vWO, sREST))
    def load_wo(a):
        A("buffer_load_dwordx4 v[%d:%d], v%d, s[%d:%d], s57 offen %s" % (WOR + 4 * a, WOR + 4 * a + 3, vWO, sWO, sWO + 3, w2pol))
        vm.issue("wo")
        if a < 3: A("s_add_u32 s57, s57, 8192")
    def load_wd(a):
        if a == 1: A("s_add_u32 s58, s58, 8192")
        A("buffer_load_dwordx4 v[%d:%d], v%d, s[%d:%d], s58 offen %s" % (WDR + 4 * a, WDR + 4 * a + 3, vWD2 if a else vWO, sWD, sWD + 3, w2pol)); vm.issue("wd")

    L.append((header or "") + "; @launch grid=(256,1,1) block=(512,1,1) lds=%d" % (LDS_END + lds_pad))
    if stamp: L.append("; stamps: " + " ".join(names))
    L.append('.amdgcn_target "amdgcn-amd-amdhsa--gfx950"\n.text\n.globl %s_kernel\n.p2align 8\n.type %s_kernel,@function\n%s_kernel:' % (NAME, NAME, NAME))
    A("s_cmp_ge_u32 s2, 256\ns_cbranch_scc1 L_end")
    A("s_load_dwordx16 s[4:19], s[0:1], 0\ns_load_dwordx8 s[20:27], s[0:1], 64\ns_load_dwordx2 s[28:29], s[0:1], 96")
    ST("start")
    A("v_lshrrev_b32 v9, 6, v0\nv_and_b32 v%d, 63, v0\nv_readfirstlane_b32 s3, v9" % vL)
    A("s_bfe_u32 s%d, s2, 0x10003" % sB)
    A("s_and_b32 s%d, s2, 7\ns_lshr_b32 s63, s2, 4\ns_lshl_b32 s63, s63, 3\ns_or_b32 s%d, s%d, s63" % (sREST, sREST, sREST))
    if xmap: A("s_mov_b32 s%d, s%d" % (sRID, sREST))
    if xmap:
        A("s_and_b32 s64, s2, 7\ns_lshr_b32 s63, s2, 4\ns_lshl_b32 s%d, s64, 4\ns_or_b32 s%d, s%d, s63" % (sREST, sREST, sREST))
        A("s_sub_u32 s%d, s%d, s64\ns_cmp_eq_u32 s63, 15\ns_cselect_b32 s%d, 127, s%d" % (sTILE, sREST, sTILE, sTILE))
    A("s_lshl_b32 s%d, s%d, 7\ns_add_u32 s%d, s%d, s%d" % (sSLOT, sB, sSLOT, sSLOT, sREST))
    A("v_lshrrev_b32 v10, 4, v%d\nv_and_b32 v11, 15, v%d\nv_lshlrev_b32 v%d, 4, v%d" % (vL, vL, vVO, vL))
    A("s_cmp_ge_u32 s3, 4\ns_cbranch_scc1 L_helper")

    if sprio: A("s_setprio %d" % sprio)
    A("v_lshlrev_b32 v12, 2, v10\nv_xor_b32 v12, v12, v11\nv_lshlrev_b32 v12, 4, v12\nv_lshl_add_u32 v%d, v10, 8, v12" % vKS)
    for i in range(1, 4): A("v_xor_b32 v%d, %d, v%d" % (vKS + i, 16 * i, vKS))
    A("s_lshl_b32 s%d, s3, 12\ns_mov_b32 s%d, s%d" % (sKO, sVO, sKO))
    A("s_lshl_b32 s65, s%d, 18" % sSLOT)
    A("s_mul_i32 s%d, s3, 12288\ns_add_u32 s%d, s%d, %d" % (sM0, sM0, sM0, LDS_K))
    A("s_movk_i32 s%d, 3584\ns_cmp_lt_u32 s%d, 64\ns_cselect_b32 s%d, 8192, s%d" % (sSTR, sTILE, sSTR, sSTR))
    A("s_lshl_b32 s63, s%d, 4\nv_mul_u32_u24 v12, s63, v10\nv_lshl_add_u32 v12, v11, 3, v12" % sSTR)
    A("s_lshl_b32 s62, s%d, 2\ns_add_u32 s62, s62, s3\ns_lshl_b32 s62, s62, 6" % sB)
    A("v_bfe_u32 v13, v11, 2, 1\nv_lshlrev_b32 v13, 10, v13\nv_lshl_add_u32 v13, v10, 5, v13\ns_lshl_b32 s63, s62, 1\nv_add_u32 v13, s63, v13")
    A("s_mul_i32 s63, s62, s%d" % sSTR)
    A("s_sub_u32 s64, s%d, 64\ns_cmp_lt_u32 s%d, 64\ns_cselect_b32 s64, s%d, s64\ns_sub_u32 s62, s%d, 92\ns_cmp_ge_u32 s%d, 92\ns_cselect_b32 s64, s62, s64\ns_lshl_b32 s64, s64, 7" % (sTILE, sTILE, sTILE, sTILE, sTILE))
    A("s_mul_i32 s%d, s%d, 511\ns_add_u32 s%d, s%d, 128\ns_mov_b32 s%d, 0x20000" % (sW + 2, sSTR, sW + 2, sW + 2, sW + 3))
    A("s_mov_b32 s%d, 0x40000\ns_mov_b32 s%d, 0x20000" % (sK + 2, sK + 3))
    A("s_waitcnt lgkmcnt(0)")
    A("s_add_u32 s%d, s6, s65\ns_addc_u32 s%d, s7, 0" % (sK, sK + 1))
    A("s_cmp_ge_u32 s%d, 120\ns_cbranch_scc1 L_noA1" % sTILE)
    A("s_cmp_lt_u32 s%d, 64\ns_cselect_b32 s%d, s10, s16\ns_cselect_b32 s%d, s11, s17" % (sTILE, sW, sW + 1))
    A("s_cmp_ge_u32 s%d, 92\ns_cselect_b32 s%d, s18, s%d\ns_cselect_b32 s%d, s19, s%d" % (sTILE, sW, sW, sW + 1, sW + 1))
    A("s_add_u32 s%d, s%d, s64\ns_addc_u32 s%d, s%d, 0" % (sW, sW, sW + 1, sW + 1))
    A("global_load_dwordx4 v[64:67], v13, s[4:5]\nglobal_load_dwordx4 v[68:71], v13, s[4:5] offset:16")
    vm.issue("X", False); vm.issue("X", False)
    for q in range(16):
        pace(d0, 0.5)
        A("buffer_load_dwordx2 v[%d:%d], v12, s[%d:%d], s63 offen %s" % (32 + 2 * q, 33 + 2 * q, sW, sW + 3, wpol))
        vm.issue("W%d" % q, False, 0.5)
        if q < 15: A("s_add_u32 s63, s63, s%d" % sSTR)
    A("L_noA1:")
    slots = {}
    def at(i, f): slots.setdefault(i, []).append(f)
    def loadK(t, i):
        if i == 0:
            A("s_add_u32 s63, s%d, %d\ns_mov_b32 m0, s63" % (sM0, (t % 3) * 4096))
            A("s_waitcnt lgkmcnt(0)" if t >= 3 else "s_nop 0")
        A("buffer_load_dwordx4 v%d, s[%d:%d], s%d offen offset:%d %s lds" % (vKS + i, sK, sK + 3, sKO, 1024 * i, kpol))
        vm.issue("K%d" % t)
        if i == 3 and t < 15: A("s_add_u32 s%d, s%d, %d" % (sKO, sKO, tstep))
    def readK(t):
        wait("K%d" % t)
        for i in range(4):
            A("ds_read_b128 v[%d:%d], v%d offset:%d" % (Kreg(t) + 4 * i, Kreg(t) + 4 * i + 3, vKR + i, (t % 3) * 4096))
    def loadV(t, i):
        A("buffer_load_dwordx4 v[%d:%d], v%d, s[%d:%d], s%d offen offset:%d %s" % (Vreg(t) + 4 * i, Vreg(t) + 4 * i + 3, vVO, sV, sV + 3, sVO, 1024 * i, pol))
        vm.issue("V%d.%d" % (t, i))
        if i == 3 and t < 15: A("s_add_u32 s%d, s%d, %d" % (sVO, sVO, tstep))
    def setup2():
        A("s_load_dword s%d, s[28:29], %d" % (sTAG, WS_EPOCH))
        A("s_barrier")
        A("s_add_u32 s%d, s8, s65\ns_addc_u32 s%d, s9, 0\ns_mov_b32 s%d, 0x40000\ns_mov_b32 s%d, 0x20000" % (sV, sV + 1, sV + 2, sV + 3))
        A("v_and_b32 v9, 1, v%d\nv_cmp_eq_u32 vcc, 1, v9\nv_mov_b32 v12, 0x0c0c0100\nv_mov_b32 v9, 0x01000c0c\nv_mov_b32 v13, 0x0c0c0302\nv_mov_b32 v15, 0x03020c0c" % vL)
        A("v_cndmask_b32 v12, v12, v9, vcc\nv_cndmask_b32 v13, v13, v15, vcc")
        A("v_and_b32 v9, 2, v%d\nv_cmp_eq_u32 vcc, 2, v9\nv_mov_b32 v15, 0x0c0c0c0c\ns_nop 0" % vL)
        A("v_cndmask_b32 v%d, v12, v15, vcc\nv_cndmask_b32 v%d, v15, v12, vcc\nv_cndmask_b32 v%d, v13, v15, vcc\nv_cndmask_b32 v%d, v15, v13, vcc" % (vSP, vSP + 1, vSP + 2, vSP + 3))
        A("v_and_b32 v12, 3, v11\nv_lshlrev_b32 v12, 10, v12\nv_lshrrev_b32 v13, 2, v11\nv_lshl_add_u32 v12, v13, 8, v12\nv_xor_b32 v13, v10, v11\nv_lshl_add_u32 v12, v13, 4, v12\nv_add_u32 v%d, s%d, v12" % (vKR, sM0))
        for i in range(1, 4): A("v_xor_b32 v%d, %d, v%d" % (vKR + i, 64 * i, vKR))
        if dodd: A("s_getreg_b32 s63, hwreg(HW_REG_XCC_ID, 0, 1)\ns_cmp_eq_u32 s63, 1\ns_cselect_b64 vcc, -1, 0")
    def phaseA(half):
        def f():
            l1 = newlabel("skipA")
            A("s_cmp_ge_u32 s%d, 120\ns_cbranch_scc1 %s" % (sTILE, l1))
            A("s_waitcnt vmcnt(%d)" % (vm.after("W15") + (8 if half == 0 else 0)))
            for u in range(8 * half, 8 * half + 8):
                for j2 in range(2):
                    A("v_perm_b32 v%d, v%d, v%d, v%d" % (96 + 2 * (u & 7) + j2, 64 + (u >> 1), 64 + (u >> 1), vSP + 2 * (u & 1) + j2))
            for u in range(8 * half, 8 * half + 8):
                A("v_mfma_f32_16x16x16_bf16 v[72:75], v[%d:%d], v[%d:%d], %s" % (96 + 2 * (u & 7), 97 + 2 * (u & 7), 32 + 2 * u, 33 + 2 * u, "0" if u == 0 else "v[72:75]"))
            if half == 1:
                ST("W")
                A("s_lshl_b32 s63, s3, 10\nv_add_u32 v9, s63, v%d\ns_nop 6" % vVO)
                A("ds_write_b128 v9, v[72:75] offset:%d" % LDS_A)
                bump(LDS_C)
            A("%s:" % l1)
        return f
    def progress(val):
        def f():
            l1 = newlabel("pg")
            only_wave(0, l1)
            A("v_mov_b32 v12, 0\nv_mov_b32 v13, %d\nds_write_b32 v12, v13 offset:%d" % (val, LDS_C + 12))
            A("%s:" % l1)
        return f
    def q_wait():
        ST("qw")
        A("v_lshrrev_b32 v9, 2, v11\nv_lshlrev_b32 v9, 8, v9\nv_lshl_add_u32 v9, v10, 4, v9")
        await_lds(LDS_C + 8, 4, 0)
        for i in range(4):
            A("ds_read_b128 v[%d:%d], v9 offset:%d" % (Q0 + 4 * i, Q0 + 4 * i + 3, LDS_Q + 64 * i))
    def qk(ts):
        def f():
            A("s_waitcnt lgkmcnt(0)")
            for t in ts:
                for i in range(4):
                    A("v_mfma_f32_16x16x32_bf16 v[%d:%d], v[%d:%d], v[%d:%d], %s" % (S0 + 4 * t, S0 + 4 * t + 3, Kreg(t) + 4 * i, Kreg(t) + 4 * i + 3, Q0 + 4 * i, Q0 + 4 * i + 3,
                      "0" if i == 0 else "v[%d:%d]" % (S0 + 4 * t, S0 + 4 * t + 3)))
        return f
    def smax():
        A("v_max3_f32 v9, v32, v33, v34\nv_max3_f32 v14, v35, v36, v37")
        rs = list(range(38, 96))
        for k in range(0, len(rs), 2): A("v_max3_f32 v%d, v%d, v%d, v%d" % ((9, 14)[(k >> 1) & 1], (9, 14)[(k >> 1) & 1], rs[k], rs[k + 1]))
        A("v_max_f32 v9, v9, v14")
        A("s_mov_b32 s65, 0x%08x" % f2u(128 ** -0.5 * LOG2E))
        xrows("v_max_f32", 9, 12)
        A("v_mul_f32 v9, s65, v9")
    def sexp(lo, hi):
        def f():
            for r in range(lo, hi): A("v_fma_f32 v%d, v%d, s65, -v9" % (r, r))
            for r in range(lo, hi): A("v_exp_f32 v%d, v%d" % (r, r))
            if hi == 96: ST("exp")
        return f
    def ssum(lo, hi):
        def f():
            for r in range(lo, hi, 2):
                if r == 32: A("v_mov_b32 v14, v32\nv_mov_b32 v15, v33")
                else: A("v_pk_add_f32 v[14:15], v[14:15], v[%d:%d]" % (r, r + 1))
            for r in range(lo, hi, 2): A("v_cvt_pk_bf16_f32 v%d, v%d, v%d" % (32 + (r - 32) // 2, r, r + 1))
            if hi == 96:
                A("v_add_f32 v15, v15, v14")
                xrows("v_add_f32", 15, 14)
                A("v_lshrrev_b32 v14, 2, v11\nv_lshlrev_b32 v14, 4, v14\ns_lshl_b32 s63, s3, 2\nv_add_u32 v14, s63, v14")
                A("ds_write_b32 v14, v9 offset:%d\nds_write_b32 v14, v15 offset:%d" % (LDS_M, LDS_L))
                bump(LDS_C + 4)
        return f
    def expand(t):
        for r in range(4):
            for j2 in range(2):
                A("v_perm_b32 v%d, v%d, v%d, v%d" % (AX0 + 2 * r + j2, 32 + 2 * t + (r >> 1), 32 + 2 * t + (r >> 1), vSP + 2 * (r & 1) + j2))
    def pvm(t, r):
        for hf in range(2):
            A("v_mfma_f32_16x16x16_bf16 v[%d:%d], v[%d:%d], v[%d:%d], %s" % (O0 + 4 * hf, O0 + 4 * hf + 3, AX0 + 2 * r, AX0 + 2 * r + 1,
              Vreg(t) + 4 * r + 2 * hf, Vreg(t) + 4 * r + 2 * hf + 1, "0" if (t == 0 and r == 0) else "v[%d:%d]" % (O0 + 4 * hf, O0 + 4 * hf + 3)))
    def pv(t):
        def f():
            expand(t); wait("V%d.3" % t)
            for r in range(4): pvm(t, r)
        return f
    def s_prep():
        srds2(); tag(); w2_prep()
        A("v_lshlrev_b32 v10, 4, v%d\ns_mul_i32 s63, s3, %d\nv_add_u32 v10, s63, v10" % (vL, WVS))
        A("v_mov_b32 v15, 0\ns_mov_b32 s60, 1")
        A("v_mov_b32 v%d, s%d\nv_mov_b32 v%d, s%d" % (PUB + 1, sTAG, PUB + 3, sTAG))
    dm = max(dpat) if dpat else d
    if adapt or p0 is not None or par: dm = max(dm, db)
    if dodd: dm = max(dm, max(dodd))
    dmv = max(dm, dend[1]) if dend else dm
    assert 4 <= dm <= 8
    at(0, setup2)
    at(1, phaseA(0)); at(min(dm, 6), phaseA(1))
    assert min(dm, 6) < 3 + dm
    for t in range(16): at(4 * t + 3 + dm, lambda t=t: readK(t))
    for p in sorted(set([p1, p2, pe] + ([lateg] if lateg else []) + ([pstl] if stlb else []) + ([pt] if touch else []) + (adapt or []) + ([p0] if p0 is not None else []))): at(p, progress(p))
    if p0 is not None or par:
        if p0 is not None:
            at(pm - 1, lambda: A("v_mov_b32 v2, 0\nds_read_b32 v0, v2 offset:%d" % (LDS_C + 16)))
            at(pm, lambda: A("s_waitcnt lgkmcnt(0)"))
        else: at(pm, lambda: A("v_mov_b32 v0, 0"))
        if par: at(pm, lambda: A("s_getreg_b32 s63, hwreg(HW_REG_XCC_ID, 0, 1)\ns_mul_i32 s63, s63, %d\ns_getreg_b32 s64, hwreg(HW_REG_XCC_ID, 2, 1)\ns_mul_i32 s64, s64, %d\ns_add_u32 s63, s63, s64\ns_add_u32 s63, s63, %d\nv_add_u32 v0, s63, v0" % (par, plate, pbase0)))
        if stamp: at(pm, lambda: A("s_nop 0\nv_readfirstlane_b32 s71, v0"))
        for j, p in enumerate(range(pm, pend, win)):
            at(p, lambda j=j: A("v_cmp_le_u32 vcc, %d, v0" % thr[j % len(thr)]))
        at(pend, lambda: A("s_mov_b64 vcc, 0"))
    if adapt:
        a0 = adapt[0] + win
        at(a0 - 1, lambda: A("s_mov_b64 vcc, 0"))
        for j, p in enumerate(range(a0, 126, win)):
            at(p, lambda: A("v_mov_b32 v2, 0\nds_read_b32 v0, v2 offset:%d" % (LDS_C + 16)))
            at(p + 1, lambda j=j: A("s_waitcnt lgkmcnt(0)\nv_and_b32 v0, %d, v0\nv_cmp_ne_u32 vcc, 0, v0" % (1 << (j % 8))))
    at(qk_at - 1, q_wait)
    t = 0; s = qk_at
    while t < 16:
        ts = [u for u in (t, t + 1) if u < 16 and 4 * u + 3 + dm < s and (u < 14 or s >= 64)]
        if ts:
            assert all(s < 4 * (u + 10) + 3 + dm for u in ts)
            at(s, qk(ts)); t += len(ts); slast = s
        s += 1
    at(slast + 1, smax)
    for k in range(4): at(slast + 2 + k, sexp(32 + 16 * k, 48 + 16 * k))
    at(slast + 6, ssum(32, 64)); at(slast + 7, ssum(64, 96))
    nxt = slast + 8; late = []
    for t in range(15):
        nxt = max(nxt, 67 + 4 * t + dmv)
        if nxt <= 127: at(nxt, pv(t))
        else: late.append(t)
        assert t + 10 > 15 or nxt < 64 + 4 * (t + 10)
        nxt += 1
    at(113, s_prep)
    if stamp:
        at(16, lambda: ST("pubA")); at(96, lambda: ST("pubML")); at(112, lambda: ST("yg")); at(56, lambda: ST("q"))
    for i in range(128):
        if adapt and i == adapt[0] + win: amode[0] = True
        if (p0 is not None or par) and i == pm + 1: amode[0] = True
        if dodd and i == 0: pace(d0)
        elif dend and i >= dend[0]: pace(dend[1])
        else: pace()
        if i < 64: loadK(i >> 2, i & 3)
        else: loadV((i - 64) >> 2, i & 3)
        for f in slots.get(i, []): f()
    amode[0] = False
    for t in late: pv(t)()
    expand(15)
    for r in range(4):
        wait("V15.%d" % r)
        if r == 3: ST("V7")
        pvm(15, r)
    A("s_nop 6")
    A("ds_write_b128 v10, v[16:19] offset:%d\nds_write_b128 v10, v[20:23] offset:%d" % (LDS_O, LDS_O + HFS))
    A("s_waitcnt lgkmcnt(0)\ns_barrier")
    ST("B5")
    if ssl: A("s_sleep %d" % ssl)
    opl = "buffer_load_dwordx4 v[%d:%d], v15, %s, s100 offen %s" % (T, T + 3, WS, ldpol)
    A("s_branch L_join")

    A("L_helper:")
    A("v_mov_b32 v12, 0\nv_mov_b32 v13, 0\nv_mov_b32 v14, 0\nv_mov_b32 v15, 0\nds_write_b128 v12, v[12:15] offset:%d" % LDS_C)
    if adapt or p0 is not None: A("ds_write_b32 v12, v12 offset:%d" % (LDS_C + 16))
    A("s_waitcnt lgkmcnt(0)")
    A("s_load_dword s%d, s[28:29], %d" % (sTAG, WS_EPOCH))
    A("s_barrier")
    srds2()
    if cpre:
        if cpre == 1: A("s_cmp_lt_u32 s%d, 120\ns_cbranch_scc1 L_nocp" % sTILE)
        A("s_getpc_b64 s[34:35]\nL_pc0:\ns_sub_u32 s34, s34, L_pc0-%s_kernel\ns_subb_u32 s35, s35, 0" % NAME)
        A("s_and_b32 s63, s3, 3\ns_lshl_b32 s63, s63, 10\nv_add_u32 v32, s63, v%d" % vVO)
        for k in range(4):
            A("v_min_u32 v33, L_end-%s_kernel-16, v32\nglobal_load_dwordx4 v[36:39], v33, s[34:35]\nv_add_u32 v32, 4096, v32" % NAME)
        A("L_nocp:")
    if tlb:
        only_wave(6, "L_notlb")
        A("s_lshl_b32 s63, s%d, 18\ns_add_u32 s63, s63, 0x3ff80\nv_mov_b32 v32, s63\ns_lshl_b32 s63, s%d, 15\nv_mov_b32 v33, s63\ns_mul_i32 s63, s%d, %d\nv_mov_b32 v34, s63\nv_mov_b32 v35, 0\ns_mov_b64 exec, 1" % (sSLOT, sREST, sREST, 14 * 1024))
        if tlb & 1: A("global_load_dword v36, v32, s[8:9] nt")
        if tlb & 2: A("global_load_dword v37, v33, s[12:13] nt\nglobal_load_dword v38, v34, s[20:21] nt")
        if tlb & 4: A("global_load_dword v39, v35, s[24:25] nt")
        A("s_mov_b64 exec, -1\nL_notlb:")
    if lateg:
        tag()
    if stlb:
        only_wave(6, "L_nostlb")
        await_lds(LDS_C + 12, pstl, nap)
        A("s_lshl_b32 s63, s%d, 18\ns_add_u32 s32, s8, s63\ns_addc_u32 s33, s9, 0\ns_lshl_b32 s63, s%d, 15\ns_add_u32 s34, s12, s63\ns_addc_u32 s35, s13, 0\ns_mul_i32 s63, s%d, %d\ns_add_u32 s36, s20, s63\ns_addc_u32 s37, s21, 0" % (sSLOT, sREST, sREST, 14 * 1024))
        if stlb & 1: A("s_load_dword s38, s[32:33], 0")
        if stlb & 2: A("s_load_dword s39, s[34:35], 0\ns_load_dword s40, s[36:37], 0")
        if stlb & 4: A("s_load_dword s41, s[24:25], 0")
        A("L_nostlb:")
    only_wave(5, "L_nox")
    if lateg: await_lds(LDS_C + 12, lateg, nap)
    A("s_lshl_b32 s63, s%d, 10\nv_add_u32 v9, s63, v%d" % (sB, vVO))
    A("global_load_dwordx4 v[32:35], v9, s[4:5]\nglobal_load_dwordx4 v[36:39], v%d, s[22:23]" % vVO)
    if tearly:
        A("s_lshl_b32 s63, s%d, 7\ns_add_u32 s63, s63, %d\nv_mov_b32 v12, 0\nbuffer_load_dword v44, v12, %s, s63 offen %s" % (sSLOT, WS_ML, WS, tpol))
    A("s_waitcnt vmcnt(0)")
    A("v_dot2_f32_bf16 v%d, v32, v36, 0" % vG)
    for i in range(1, 4): A("v_dot2_f32_bf16 v%d, v%d, v%d, v%d" % (vG, 32 + i, 36 + i, vG))
    A("s_nop 2")
    for c in ("quad_perm:[1,0,3,2]", "quad_perm:[2,3,0,1]", "row_half_mirror", "row_mirror"):
        dpp("v_add_f32", vG, vG, vG, c); A("s_nop 1")
    xrows("v_add_f32", vG, 9)
    A("v_mul_f32 v%d, 0x%08x, v%d\nv_exp_f32 v%d, v%d\ns_nop 0\nv_add_f32 v%d, 1.0, v%d\nv_rcp_f32 v%d, v%d" % (vG, f2u(-LOG2E), vG, vG, vG, vG, vG, vG, vG))
    A("L_nox:")
    if not lateg: tag()
    only_wave(4, "L_noA2")
    A("s_cmp_ge_u32 s%d, 120\ns_cbranch_scc1 L_noA2" % sTILE)
    if pub4:
        A("v_and_b32 v14, 31, v%d\nv_lshlrev_b32 v9, 4, v14\nv_lshrrev_b32 v15, 5, v%d\nv_lshl_add_u32 v9, v15, 3, v9" % (vL, vL))
        A("v_lshrrev_b32 v14, 4, v14\nv_mul_u32_u24 v14, %d, v14\nv_add_u32 v14, v14, v%d" % (30720 - 256, vVO))
    else:
        A("v_lshlrev_b32 v9, 3, v%d\nv_lshrrev_b32 v14, 5, v%d\nv_mul_u32_u24 v14, %d, v14\nv_add_u32 v14, v14, v9" % (vL, vL, 30720 - 256))
    A("s_mul_i32 s64, s%d, 61440\ns_lshl_b32 s65, s%d, 8\ns_add_u32 s64, s64, s65\ns_add_u32 s64, s64, %d" % (sB, sTILE, WS_QG))
    if tearly:
        A("s_mov_b32 exec_hi, 0\nbuffer_load_dwordx4 v[44:47], v14, %s, s64 offen %s\ns_mov_b32 exec_hi, -1" % (WS, tpol))
    await_lds(LDS_C, 4, 1)
    for w in range(4):
        A("ds_read_b64 v[%d:%d], v9 offset:%d" % (32 + 2 * w, 33 + 2 * w, LDS_A + 1024 * w))
    A("s_waitcnt lgkmcnt(0)\nv_pk_add_f32 v[32:33], v[32:33], v[34:35]\nv_pk_add_f32 v[36:37], v[36:37], v[38:39]\nv_pk_add_f32 v[32:33], v[32:33], v[36:37]")
    if pub4:
        A("v_cvt_pk_bf16_f32 v36, v32, v33\nv_cvt_pk_bf16_f32 v38, v32, v33\nv_mov_b32 v37, s%d\nv_mov_b32 v39, s%d\nv_permlane32_swap_b32 v36, v38\ns_mov_b32 exec_hi, 0" % (sTAG, sTAG))
        A("buffer_store_dwordx4 v[36:39], v14, %s, s64 offen %s\ns_mov_b32 exec_hi, -1" % (WS, stpol))
    else:
        A("v_cvt_pk_bf16_f32 v32, v32, v33\nv_mov_b32 v33, s%d" % sTAG)
        A("buffer_store_dwordx2 v[32:33], v14, %s, s64 offen %s" % (WS, stpol))
    A("L_noA2:")
    ST("pubA")
    def adapt_cps(cs, setup=False):
        l1 = newlabel("noad")
        if setup:
            nrow = npeer // 8; span = 32 // nrow
            A("s_lshr_b32 s64, s2, 3\ns_and_b32 s60, s64, %d\ns_mul_i32 s60, s60, %d\ns_lshr_b32 s64, s64, %d\ns_lshl_b32 s64, s64, 3\ns_and_b32 s63, s2, 7\ns_add_u32 s64, s64, s63\ns_add_u32 s64, s64, s60" % (span - 1, npeer, span.bit_length() - 1))
            A("s_lshl_b32 s64, s64, %d\ns_add_u32 s66, s64, %d\ns_lshl_b32 s60, s60, %d\ns_add_u32 s60, s60, %d" % (mkstr, WS_MK, mkstr, WS_MK))
            A("v_and_b32 v50, %d, v%d\nv_lshlrev_b32 v50, %d, v50\nv_mov_b32 v51, 0\nv_mov_b32 v52, s%d" % (npeer - 1, vL, mkstr, sTAG))
            if stamp: A("s_mov_b32 s71, 0")
        only_wave(aw, l1)
        for c in cs:
            await_lds(LDS_C + 12, adapt[c], 1)
            A("s_mov_b64 exec, 1\nbuffer_store_dword v52, v51, %s, s66 offen %s\ns_mov_b64 exec, -1" % (WS, stpol))
            if adelay: A("s_waitcnt vmcnt(0)")
            A("buffer_load_dword v53, v50, %s, s60 offen %s" % (WS, ldpol))
            A("s_add_u32 s66, s66, 32768\ns_add_u32 s60, s60, 32768\ns_waitcnt vmcnt(0)")
            A("v_cmp_eq_u32 vcc, s%d, v53\ns_bcnt1_i32_b64 s63, vcc\ns_mov_b32 s61, 0" % sTAG)
            for thr, m in alev:
                A("s_cmp_ge_u32 s63, %d\ns_cselect_b32 s61, %d, s61" % (thr, m))
            A("v_mov_b32 v53, s61\nds_write_b32 v51, v53 offset:%d" % (LDS_C + 16))
            if stamp: A("s_min_u32 s63, s63, 63\ns_lshl_b32 s63, s63, %d\ns_or_b32 s71, s71, s63" % (6 * c))
        A("%s:" % l1)
    if adapt: adapt_cps([c for c, cp in enumerate(adapt) if cp < p1], True)
    A("v_lshrrev_b32 v40, 5, v%d\nv_mul_u32_u24 v40, %d, v40\nv_add_u32 v40, v40, v%d" % (vL, 61440 - 512, vVO))
    A("s_mul_i32 s98, s%d, 30720\ns_lshr_b32 s64, s%d, 4\ns_lshl_b32 s64, s64, 11\ns_add_u32 s98, s98, s64\ns_and_b32 s65, s3, 3\ns_lshl_b32 s64, s65, 9\ns_add_u32 s98, s98, s64\ns_add_u32 s98, s98, %d" % (sB, sREST, WS_QG))
    qld = "buffer_load_dwordx4 v[32:35], v40, %s, s98 offen %s" % (WS, ldpol)
    if p0 is None:
        await_lds(LDS_C + 12, p1, nap)
        poll([qld], [33, 35], 4)
    else:
        await_lds(LDS_C + 12, p0, 1)
        A(qld + "\ns_waitcnt vmcnt(0)")
        cmpn([33, 35])
        A("s_wqm_b64 s[60:61], vcc\ns_bcnt0_i32_b64 s63, s[60:61]\nv_mov_b32 v12, 0\nv_mov_b32 v13, s63\ns_mov_b64 exec, 1\nds_add_u32 v12, v13 offset:%d\ns_mov_b64 exec, -1" % (LDS_C + 16))
        A("s_cmp_eq_u32 s63, 64\ns_cbranch_scc1 L_qok")
        await_lds(LDS_C + 12, p1, nap)
        A("s_mov_b64 exec, s[60:61]")
        poll([qld], [33, 35], 4)
        A("L_qok:")
    A("v_mov_b32 v36, v32\nv_mov_b32 v37, v34\ns_lshl_b32 s63, s65, 8\ns_add_u32 s63, s63, %d\nv_permlane32_swap_b32 v36, v32\nv_permlane32_swap_b32 v37, v34" % LDS_Q)
    for a, b in ((36, 32), (37, 34)):
        A("v_lshlrev_b32 v12, 16, v%d\nv_lshlrev_b32 v13, 16, v%d\nv_and_b32 v14, 0xffff0000, v%d\nv_and_b32 v15, 0xffff0000, v%d" % (a, b, a, b))
        A("v_add_f32 v12, v12, v13\nv_add_f32 v14, v14, v15\nv_cvt_pk_bf16_f32 v%d, v12, v14" % a)
    A("v_and_b32 v9, 31, v%d\nv_lshl_add_u32 v9, v9, 3, s63" % vL)
    A("ds_write2_b32 v9, v36, v37 offset0:0 offset1:1")
    bump(LDS_C + 8)
    if touch & 4:
        await_lds(LDS_C + 12, pt, nap)
        A(("s_xor_b32 s63, s%d, %d\ns_lshl_b32 s63, s63, 11" % (sSLOT, tx)) if tx else "s_lshl_b32 s63, s%d, 11" % sSLOT)
        A("s_and_b32 s64, s3, 1\ns_lshl_b32 s64, s64, 10\ns_add_u32 s63, s63, s64\ns_add_u32 s63, s63, %d" % WS_OP)
        A("s_and_b32 s64, s3, 2\ns_mul_i32 s64, s64, %d\ns_add_u32 s63, s63, s64" % ((WS_YP - WS_OP) // 2))
        A("buffer_load_dwordx4 v[%d:%d], v%d, %s, s63 offen %s" % (T + 20, T + 23, vVO, WS, tpol))
    only_wave(5, "L_noside")
    A("v_min_u32 v40, 13, v11\nv_lshrrev_b32 v40, 1, v40\nv_lshlrev_b32 v40, 3, v40")
    A("s_mul_i32 s63, s%d, 7\ns_mul_i32 s64, s%d, 3840\ns_add_u32 s63, s63, s64\ns_lshl_b32 s63, s63, 3\ns_add_u32 s63, s63, %d" % (sREST, sB, WS_QG + 2048 * 8))
    A("v_and_b32 v41, 1, v10\nv_mul_u32_u24 v41, 61440, v41\nv_lshrrev_b32 v42, 1, v10\nv_mul_u32_u24 v42, %d, v42\nv_add3_u32 v40, v40, v41, v42\nv_add_u32 v40, s63, v40" % (896 * 8))
    poll(["buffer_load_dwordx2 v[32:33], v40, %s, 0 offen %s" % (WS, ldpol)], [33], 4)
    A("v_and_b32 v34, 1, v%d\nv_cmp_eq_u32 vcc, 1, v34\nv_lshlrev_b32 v34, 16, v32\nv_and_b32 v35, 0xffff0000, v32" % vL)
    A("v_cndmask_b32 v34, v34, v35, vcc\nv_cmp_gt_u32 vcc, 14, v11\nv_mov_b32 v35, v34\ns_nop 1\nv_permlane16_swap_b32 v35, v34\nv_add_f32 v34, v34, v35")
    A("v_mov_b32 v36, v34\ns_nop 1\nv_permlane32_swap_b32 v34, v36")
    A("v_mul_f32 v34, 0x%08x, v34\nv_exp_f32 v34, v34\nv_sub_f32 v37, 1.0, v%d\nv_add_f32 v34, 1.0, v34\nv_rcp_f32 v34, v34\nv_mul_f32 v36, v36, v37" % (f2u(-LOG2E), vG))
    A("v_mul_f32 v34, v34, v36\nv_cndmask_b32 v34, 0, v34, vcc")
    A("v_and_b32 v35, 7, v11\nv_lshlrev_b32 v35, 3, v35\nv_lshrrev_b32 v36, 3, v11\nv_lshl_add_u32 v35, v36, 2, v35")
    A("ds_write_b32 v35, v34 offset:%d" % LDS_H)
    A("v_and_b32 v40, 3, v%d\nv_lshlrev_b32 v40, 4, v40\nv_bfe_u32 v41, v%d, 2, 1\nv_lshl_add_u32 v41, v41, 6, v40" % (vL, vL))
    A("s_lshl_b32 s64, s%d, 7\ns_add_u32 s64, s64, %d\nv_mov_b32 v45, s%d\nv_mov_b32 v47, s%d" % (sSLOT, WS_ML, sTAG, sTAG))
    await_lds(LDS_C + 4, 4, nap)
    A("ds_read_b128 v[32:35], v40 offset:%d\nds_read_b128 v[36:39], v40 offset:%d" % (LDS_M, LDS_L))
    A("v_and_b32 v42, 12, v%d\nv_add_u32 v42, v42, v40\nds_read_b32 v43, v42 offset:%d" % (vL, LDS_M))
    A("s_waitcnt lgkmcnt(0)\nv_max3_f32 v44, v32, v33, v34\nv_max_f32 v44, v44, v35")
    for w in range(4): A("v_sub_f32 v%d, v%d, v44" % (32 + w, 32 + w))
    for w in range(4): A("v_exp_f32 v%d, v%d" % (32 + w, 32 + w))
    A("v_mul_f32 v46, v32, v36")
    for w in range(1, 4): A("v_fmac_f32 v46, v%d, v%d" % (32 + w, 36 + w))
    A("s_mov_b64 exec, 0xff")
    A("buffer_store_dwordx4 v[44:47], v41, %s, s64 offen %s" % (WS, stpol))
    A("s_mov_b64 exec, -1")
    ST("pubML")
    A("s_and_b32 s64, s%d, 0xf0\ns_lshl_b32 s64, s64, 7\ns_add_u32 s64, s64, %d" % (sSLOT, WS_ML))
    A("v_lshrrev_b32 v41, 2, v%d\nv_lshl_add_u32 v41, v41, 7, v40" % vL)
    await_lds(LDS_C + 12, p2, nap)
    poll(["buffer_load_dwordx4 v[32:35], v41, %s, s64 offen %s" % (WS, ldpol)], [33, 35], 4)
    A("v_mov_b32 v36, v32\ns_nop 1")
    for c in ("row_ror:4", "row_ror:8"):
        dpp("v_max_f32", 36, 36, 36, c); A("s_nop 1")
    xrows("v_max_f32", 36, 37)
    A("v_sub_f32 v37, v32, v36\nv_exp_f32 v37, v37\ns_nop 0\nv_mul_f32 v37, v37, v34\ns_nop 1")
    for c in ("row_ror:4", "row_ror:8"):
        dpp("v_add_f32", 37, 37, 37, c); A("s_nop 1")
    xrows("v_add_f32", 37, 38)
    A("v_sub_f32 v43, v43, v36\nv_rcp_f32 v37, v37\nv_exp_f32 v43, v43\nv_mul_f32 v37, v37, v%d\nv_mul_f32 v43, v43, v37" % vG)
    A("ds_write_b32 v42, v43 offset:%d" % LDS_F)
    A("L_noside:")
    if adapt: adapt_cps([c for c, cp in enumerate(adapt) if cp >= p1])
    A("s_cmp_lg_u32 s2, 255\ns_cbranch_scc1 L_noep")
    only_wave(7, "L_noep")
    A("v_lshlrev_b32 v48, 9, v%d\ns_mov_b32 s64, %d" % (vL, WS_ML))
    await_lds(LDS_C + 12, pe, nap)
    poll(["buffer_load_dwordx4 v[%d:%d], v48, %s, s64 offen offset:%d %s" % (32 + 4 * a, 35 + 4 * a, WS, 128 * a, ldpol) for a in range(4)], [33 + 2 * a for a in range(8)], 8)
    A("v_mov_b32 v48, %d\nv_mov_b32 v49, s%d\ns_mov_b64 exec, 1" % (WS_EPOCH, sTAG))
    A("buffer_store_dword v49, v48, %s, 0 offen %s" % (WS, stpol))
    A("s_mov_b64 exec, -1")
    A("L_noep:")
    w2_prep()
    A("v_lshrrev_b32 v11, 1, v%d\nv_lshlrev_b32 v11, 4, v11\nv_and_b32 v13, 1, v%d\nv_mul_u32_u24 v13, %d, v13" % (vL, vL, HFS))
    A("s_and_b32 s65, s3, 1\ns_lshl_b32 s63, s65, 9\nv_add3_u32 v11, v11, v13, s63")
    A("v_lshrrev_b32 v14, 5, v%d\nv_lshlrev_b32 v14, 4, v14\ns_lshl_b32 s63, s65, 5\nv_add_u32 v14, s63, v14" % vL)
    A("s_lshl_b32 s99, s%d, 11\ns_lshl_b32 s63, s65, 10\ns_add_u32 s99, s99, s63\ns_add_u32 s99, s99, %d" % (sSLOT, WS_OP))
    A("v_lshlrev_b32 v15, 11, v9\nv_lshl_add_u32 v15, v12, 4, v15")
    A("s_and_b32 s100, s%d, 0xf0\ns_lshl_b32 s63, s65, 3\ns_add_u32 s100, s100, s63\ns_lshl_b32 s100, s100, 11\ns_and_b32 s63, s%d, 15\ns_lshl_b32 s63, s63, 7\ns_add_u32 s100, s100, s63\ns_add_u32 s100, s100, %d" % (sSLOT, sREST, WS_OP))
    A("v_mov_b32 v%d, s%d\nv_mov_b32 v%d, s%d" % (PUB + 1, sTAG, PUB + 3, sTAG))
    if touch & 3 or tout:
        await_lds(LDS_C + 12, pt, nap)
        if touch & 1:
            A("s_cmp_ge_u32 s3, 6\ns_cbranch_scc0 L_t1")
            A(opl)
            A("L_t1:")
        if tout:
            A("s_cmp_lt_u32 s%d, 96\ns_cbranch_scc1 L_t3\ns_lshl_b32 s63, s%d, 10\ns_sub_u32 s64, s%d, 96\ns_lshr_b32 s64, s64, 2\ns_lshl_b32 s64, s64, 7\ns_add_u32 s63, s63, s64\nv_mov_b32 v12, s63" % (sRID, sB, sRID))
            only_wave(4, "L_t3")
            A("global_load_dword v%d, v12, s[24:25]\nL_t3:" % (T + 21))
        if touch & 2:
            A("s_cmp_lt_u32 s%d, 96\ns_cbranch_scc1 L_t2" % sRID)
            A("v_lshrrev_b32 v12, 2, v%d\nv_lshlrev_b32 v12, 11, v12\nv_and_b32 v13, 3, v%d\nv_lshl_add_u32 v12, v13, 4, v12" % (vL, vL))
            A("s_lshl_b32 s64, s%d, 7\ns_and_b32 s63, s3, 3\ns_lshl_b32 s63, s63, 5\ns_add_u32 s64, s64, s63\ns_lshl_b32 s64, s64, 11\ns_sub_u32 s63, s%d, 96\ns_lshl_b32 s63, s63, 6\ns_add_u32 s64, s64, s63\ns_add_u32 s64, s64, %d\ns_add_u32 s63, s64, 32768" % (sB, sRID, WS_YP))
            A("buffer_load_dwordx4 v[%d:%d], v12, %s, s64 offen %s\nbuffer_load_dwordx4 v[%d:%d], v12, %s, s63 offen %s" % (T + 20, T + 23, WS, ldpol, T + 20, T + 23, WS, ldpol))
            A("L_t2:")
    A("s_cmp_ge_u32 s3, 6\ns_cselect_b32 s60, %d, %d" % (0 if preG else 1, 0 if preP else 1))
    if preG or preP:
        A("s_cmp_eq_u32 s60, 1\ns_cbranch_scc1 L_nopre")
        await_lds(LDS_C + 12, pe, nap)
        load_wd(0); load_wd(1)
        for a in range(4): load_wo(a)
        A("L_nopre:")
    A("s_waitcnt lgkmcnt(0)\ns_barrier")
    ST("B5")
    x = lambda k: T + k
    A("s_cmp_ge_u32 s3, 6\ns_cbranch_scc0 L_pub")
    A(opl)
    A("s_branch L_join\nL_pub:")
    A("ds_read_b128 v[%d:%d], v14 offset:%d" % (x(16), x(19), LDS_F))
    for w in range(4):
        A("ds_read_b128 v[%d:%d], v11 offset:%d" % (x(4 * w), x(4 * w + 3), LDS_O + w * WVS))
    for w in range(4):
        A("s_waitcnt lgkmcnt(%d)" % (3 - w))
        for j in (0, 2):
            sel = "op_sel:[0,%d,0] op_sel_hi:[1,%d,1]" % (w & 1, w & 1)
            if w == 0: A("v_pk_mul_f32 v[%d:%d], v[%d:%d], v[%d:%d] op_sel:[0,0] op_sel_hi:[1,0]" % (x(j), x(j + 1), x(j), x(j + 1), x(16), x(17)))
            else: A("v_pk_fma_f32 v[%d:%d], v[%d:%d], v[%d:%d], v[%d:%d] %s" % (x(j), x(j + 1), x(4 * w + j), x(4 * w + j + 1), x(16 + (w & 2)), x(17 + (w & 2)), x(j), x(j + 1), sel))
    A("v_cvt_pk_bf16_f32 v%d, v%d, v%d\nv_cvt_pk_bf16_f32 v%d, v%d, v%d" % (PUB, x(0), x(1), PUB + 2, x(2), x(3)))
    A("buffer_store_dwordx4 v[%d:%d], v%d, %s, s99 offen %s" % (PUB, PUB + 3, vVO, WS, stpol))

    A("L_join:")
    ST("pubO")
    if b5b: A("s_barrier")
    A("s_cmp_eq_u32 s60, 0\ns_cbranch_scc1 L_nopost")
    load_wd(0); load_wd(1)
    for a in range(4): load_wo(a)
    A("L_nopost:")
    A("v_lshlrev_b32 v13, 3, v9\nds_read_b64 v[%d:%d], v13 offset:%d" % (vHH, vHH + 1, LDS_H))
    A("v_lshlrev_b32 v13, 4, v9")
    A("v_and_b32 v12, 7, v%d\nv_lshrrev_b32 v80, 4, v%d" % (vL, vL))
    A("v_lshlrev_b32 v14, 4, v12\nv_lshrrev_b32 v81, 1, v80\nv_lshl_add_u32 v14, v81, 7, v14")
    A("s_lshl_b32 s99, s%d, 11\ns_lshl_b32 s63, s3, 8\ns_add_u32 s99, s99, s63\ns_add_u32 s99, s99, %d" % (sSLOT, WS_YP))
    A("v_and_b32 v11, 1, v12\nv_lshlrev_b32 v11, 6, v11\nv_lshl_add_u32 v11, v80, 4, v11\nv_lshrrev_b32 v12, 1, v12\nv_lshl_add_u32 v11, v12, 2, v11\ns_and_b32 s63, s3, 1\ns_lshl_b32 s63, s63, 7\nv_add_u32 v11, s63, v11")
    A("s_waitcnt vmcnt(4)\ns_cmp_eq_u32 s60, 1\ns_cbranch_scc1 L_wd\ns_waitcnt vmcnt(1)\nL_wd:")
    A("s_waitcnt lgkmcnt(0)")
    for a in range(2):
        for j in range(4):
            A("v_lshlrev_b32 v80, 16, v%d\nv_and_b32 v81, 0xffff0000, v%d" % (WDR + 4 * a + j, WDR + 4 * a + j))
            op = "v_mul_f32" if a == 0 else "v_fmac_f32"
            A("%s v%d, v%d, v80\n%s v%d, v%d, v81" % (op, YA + 2 * j, vHH + a, op, YA + 2 * j + 1, vHH + a))
    A("s_cmp_eq_u32 s60, 0\ns_cbranch_scc1 L_wo\ns_waitcnt vmcnt(0)\nL_wo:")
    for r in range(16):
        A("v_lshlrev_b32 v%d, 16, v%d\nv_and_b32 v%d, 0xffff0000, v%d" % (WOF + 2 * r, WOR + r, WOF + 2 * r + 1, WOR + r))
    def unpack4(b):
        A("v_lshlrev_b32 v%d, 16, v%d\nv_lshlrev_b32 v%d, 16, v%d\nv_and_b32 v%d, 0xffff0000, v%d\nv_and_b32 v%d, 0xffff0000, v%d\ns_nop 0" % (x(4), b, x(6), b + 2, x(5), b, x(7), b + 2))
    def mpoll(ns, sleep):
        if ns == 1:
            poll([opl], [x(1), x(3)], sleep, first=False); unpack4(x(0)); return
        base = [x(0)] + [x(8 + 4 * k) for k in range(ns - 1)]
        ld = lambda k: "buffer_load_dwordx4 v[%d:%d], v15, %s, s100 offen %s" % (base[k], base[k] + 3, WS, ldpol)
        pend = [34, 40, 42, 32][:ns]
        lo, fin = newlabel("mp"), newlabel("mf")
        A("s_waitcnt vmcnt(0)")
        cmpn([base[0] + 1, base[0] + 3])
        A("s_wqm_b64 exec, vcc\ns_cbranch_scc0 %s_0\ns_mov_b32 s62, 0" % fin)
        A("s_mov_b64 s[%d:%d], exec" % (pend[0], pend[0] + 1))
        A(ld(0))
        A("s_mov_b64 exec, -1")
        for k in range(1, ns):
            A("s_mov_b64 s[%d:%d], -1\ns_sleep %d" % (pend[k], pend[k] + 1, stag)); A(ld(k))
        A("%s:" % lo)
        for k in range(ns):
            A("s_mov_b64 exec, s[%d:%d]\ns_waitcnt vmcnt(%d)" % (pend[k], pend[k] + 1, ns - 1))
            cmpn([base[k] + 1, base[k] + 3])
            A("s_wqm_b64 exec, vcc\ns_cbranch_scc0 %s_%d" % (fin, k))
            A("s_mov_b64 s[%d:%d], exec" % (pend[k], pend[k] + 1))
            A(ld(k))
        A("s_add_u32 s62, s62, 1\ns_cmp_gt_u32 s62, %d\ns_cbranch_scc0 %s\ns_branch L_bail" % (spin, lo))
        for k in range(ns - 1, -1, -1):
            A("%s_%d:\ns_mov_b64 exec, -1" % (fin, k)); unpack4(base[k])
            if k: A("s_branch %s" % fin)
        A("%s:" % fin)
    def red4(steps):
        A("v_permlane32_swap_b32 v%d, v%d\nv_permlane32_swap_b32 v%d, v%d\nv_add_f32 v%d, v%d, v%d\nv_add_f32 v%d, v%d, v%d\ns_nop 1" % (x(4), x(6), x(5), x(7), x(4), x(4), x(6), x(5), x(5), x(7)))
        A("v_permlane16_swap_b32 v%d, v%d\nv_add_f32 v%d, v%d, v%d" % (x(4), x(5), x(4), x(4), x(5)))
        for c in steps:
            A("s_nop 1"); dpp("v_add_f32", x(4), x(4), x(4), c)
    A("s_cmp_lt_u32 s3, 6\ns_cbranch_scc1 L_nog2")
    mpoll(ns1, sleep1)
    red4(["row_ror:8"])
    A("ds_write_b32 v11, v%d offset:%d\ns_waitcnt lgkmcnt(0)" % (x(4), LDS_o))
    A("L_nog2:")
    ST("og")
    A("s_barrier")
    y = lambda k: T + 24 + k
    A("ds_read_b128 v[%d:%d], v13 offset:%d\nds_read_b128 v[%d:%d], v13 offset:%d" % (y(0), y(3), LDS_o, y(4), y(7), LDS_o + 128))
    A("s_waitcnt lgkmcnt(0)")
    A("v_pk_add_f32 v[%d:%d], v[%d:%d], v[%d:%d]\nv_pk_add_f32 v[%d:%d], v[%d:%d], v[%d:%d]" % (y(0), y(1), y(0), y(1), y(4), y(5), y(2), y(3), y(2), y(3), y(6), y(7)))
    for a in range(4):
        for j in range(0, 8, 2):
            lo = a & 1
            A("v_pk_fma_f32 v[%d:%d], v[%d:%d], v[%d:%d], v[%d:%d] op_sel:[0,%d,0] op_sel_hi:[1,%d,1]" % (YA + j, YA + j + 1, WOF + 8 * a + j, WOF + 8 * a + j + 1, y(a & 2), y((a & 2) + 1), YA + j, YA + j + 1, lo, lo))
    A("s_nop 1")
    for k in range(4): A("v_permlane32_swap_b32 v%d, v%d" % (YA + k, YA + k + 4))
    for k in range(4): A("v_add_f32 v%d, v%d, v%d" % (YA + k, YA + k, YA + k + 4))
    A("s_nop 0\nv_permlane16_swap_b32 v%d, v%d\nv_permlane16_swap_b32 v%d, v%d" % (YA, YA + 2, YA + 1, YA + 3))
    A("v_add_f32 v%d, v%d, v%d\nv_add_f32 v%d, v%d, v%d\ns_nop 0" % (YA, YA, YA + 2, YA + 1, YA + 1, YA + 3))
    dpp("v_add_f32", YA, YA, YA, "row_ror:8"); dpp("v_add_f32", YA + 1, YA + 1, YA + 1, "row_ror:8")
    A("v_cvt_pk_bf16_f32 v%d, v%d, v%d\nv_cvt_pk_bf16_f32 v%d, v%d, v%d\ns_nop 1\nv_permlane16_swap_b32 v%d, v%d" % (PUB + 2, YA, YA + 1, PUB, YA, YA + 1, PUB, PUB + 2))
    A("s_mov_b32 exec_lo, 0xff\ns_mov_b32 exec_hi, 0xff")
    A("buffer_store_dwordx4 v[%d:%d], v14, %s, s99 offen %s" % (PUB, PUB + 3, WS, stpol))
    A("s_mov_b64 exec, -1")
    ST("pubY")
    if nred == 64:
        A("s_cmp_lt_u32 s%d, 96\ns_cbranch_scc1 L_exit" % sRID)
        A("v_lshrrev_b32 v15, 2, v%d\nv_lshlrev_b32 v15, 11, v15\nv_and_b32 v9, 3, v%d\nv_lshl_add_u32 v15, v9, 4, v15" % (vL, vL))
        A("s_lshl_b32 s100, s%d, 7\ns_lshl_b32 s63, s3, 4\ns_add_u32 s100, s100, s63\ns_lshl_b32 s100, s100, 11\ns_sub_u32 s64, s%d, 96\ns_lshl_b32 s63, s64, 6\ns_add_u32 s100, s100, s63\ns_add_u32 s100, s100, %d" % (sB, sRID, WS_YP))
        A(opl)
        A("v_lshlrev_b32 v9, 4, v9\nv_lshrrev_b32 v10, 4, v%d\nv_lshl_add_u32 v9, v10, 2, v9\ns_lshl_b32 s63, s3, 6\nv_add_u32 v9, s63, v9" % vL)
        A("v_and_b32 v10, 7, v%d\nv_lshlrev_b32 v11, 3, v10\nv_lshrrev_b32 v12, 1, v10\nv_and_b32 v10, 1, v10\nv_lshlrev_b32 v10, 2, v10\nv_lshl_add_u32 v10, v12, 4, v10" % vL)
        A("s_lshl_b32 s63, s%d, 10\ns_lshr_b32 s65, s64, 2\ns_lshl_b32 s65, s65, 7\ns_add_u32 s63, s63, s65\ns_and_b32 s65, s64, 1\ns_lshl_b32 s65, s65, 6\ns_add_u32 s63, s63, s65\ns_and_b32 s65, s64, 2\ns_lshl_b32 s65, s65, 2\ns_add_u32 s63, s63, s65\nv_add_u32 v10, s63, v10" % sB)
        mpoll(ns2, sleep2)
        ST("yg")
        red4(["row_ror:4", "row_ror:8"])
        A("ds_write_b32 v9, v%d offset:%d\ns_waitcnt lgkmcnt(0)\ns_barrier" % (x(4), LDS_R))
        only_wave(0, "L_exit")
        for w in range(8):
            A("ds_read_b64 v[%d:%d], v11 offset:%d" % (64 + 2 * w, 65 + 2 * w, LDS_R + 64 * w))
        A("s_waitcnt lgkmcnt(4)\nv_pk_add_f32 v[64:65], v[64:65], v[66:67]\nv_pk_add_f32 v[68:69], v[68:69], v[70:71]\nv_pk_add_f32 v[64:65], v[64:65], v[68:69]")
        A("s_waitcnt lgkmcnt(0)\nv_pk_add_f32 v[72:73], v[72:73], v[74:75]\nv_pk_add_f32 v[76:77], v[76:77], v[78:79]\nv_pk_add_f32 v[72:73], v[72:73], v[76:77]\nv_pk_add_f32 v[64:65], v[64:65], v[72:73]")
        A("s_mov_b64 exec, 0xff\nv_cvt_pk_bf16_f32 v64, v64, v65")
    else:
        A("s_cmp_lt_u32 s%d, 112\ns_cbranch_scc1 L_exit" % sRID)
        A("v_lshrrev_b32 v15, 3, v%d\nv_lshlrev_b32 v15, 11, v15\nv_and_b32 v9, 7, v%d\nv_lshl_add_u32 v15, v9, 4, v15" % (vL, vL))
        A("s_lshl_b32 s100, s%d, 7\ns_lshl_b32 s63, s3, 4\ns_add_u32 s100, s100, s63\ns_lshl_b32 s100, s100, 11\ns_sub_u32 s64, s%d, 112\ns_lshl_b32 s63, s64, 7\ns_add_u32 s100, s100, s63\ns_add_u32 s100, s100, %d\ns_add_u32 s99, s100, 16384" % (sB, sRID, WS_YP))
        fl = [opl, "buffer_load_dwordx4 v[%d:%d], v15, %s, s99 offen %s" % (x(8), x(11), WS, ldpol)]
        A(fl[0]); A(fl[1])
        A("v_lshlrev_b32 v9, 4, v9\nv_lshrrev_b32 v10, 4, v%d\nv_lshl_add_u32 v9, v10, 2, v9\ns_lshl_b32 s63, s3, 7\nv_add_u32 v9, s63, v9" % vL)
        A("v_and_b32 v10, 15, v%d\nv_lshlrev_b32 v11, 3, v10\nv_lshrrev_b32 v12, 1, v10\nv_and_b32 v10, 1, v10\nv_lshlrev_b32 v10, 2, v10\nv_lshl_add_u32 v10, v12, 4, v10" % vL)
        A("s_lshl_b32 s63, s%d, 10\ns_lshr_b32 s65, s64, 1\ns_lshl_b32 s65, s65, 7\ns_add_u32 s63, s63, s65\ns_and_b32 s65, s64, 1\ns_lshl_b32 s65, s65, 3\ns_add_u32 s63, s63, s65\nv_add_u32 v10, s63, v10" % sB)
        poll(fl, [x(1), x(3), x(9), x(11)], sleep2, first=False)
        ST("yg")
        A("v_lshlrev_b32 v%d, 16, v%d\nv_lshlrev_b32 v%d, 16, v%d\nv_and_b32 v%d, 0xffff0000, v%d\nv_and_b32 v%d, 0xffff0000, v%d" % (x(12), x(8), x(14), x(10), x(13), x(8), x(15), x(10)))
        unpack4(x(0))
        A("v_pk_add_f32 v[%d:%d], v[%d:%d], v[%d:%d]\nv_pk_add_f32 v[%d:%d], v[%d:%d], v[%d:%d]\ns_nop 1" % (x(4), x(5), x(4), x(5), x(12), x(13), x(6), x(7), x(6), x(7), x(14), x(15)))
        red4(["row_ror:8"])
        A("ds_write_b32 v9, v%d offset:%d\ns_waitcnt lgkmcnt(0)\ns_barrier" % (x(4), LDS_A))
        only_wave(0, "L_exit")
        for w in range(8):
            A("ds_read_b64 v[%d:%d], v11 offset:%d" % (64 + 2 * w, 65 + 2 * w, LDS_A + 128 * w))
        A("s_waitcnt lgkmcnt(4)\nv_pk_add_f32 v[64:65], v[64:65], v[66:67]\nv_pk_add_f32 v[68:69], v[68:69], v[70:71]\nv_pk_add_f32 v[64:65], v[64:65], v[68:69]")
        A("s_waitcnt lgkmcnt(0)\nv_pk_add_f32 v[72:73], v[72:73], v[74:75]\nv_pk_add_f32 v[76:77], v[76:77], v[78:79]\nv_pk_add_f32 v[72:73], v[72:73], v[76:77]\nv_pk_add_f32 v[64:65], v[64:65], v[72:73]")
        A("s_mov_b64 exec, 0xffff\nv_cvt_pk_bf16_f32 v64, v64, v65")
    A("global_store_dword v10, v64, s[24:25] %s" % outpol)
    A("s_mov_b64 exec, -1")
    A("L_exit:")
    if gprobe:
        name, ref = gprobe
        only_wave(0, "L_gp1")
        ST("end")
        A("s_waitcnt lgkmcnt(0)\ns_lshl_b32 s63, s2, 7\ns_add_u32 s63, s63, %d\nv_mov_b32 v20, s70\nv_mov_b32 v21, s%d\nv_mov_b32 v22, s%d\nv_mov_b32 v23, s%d\nv_mov_b32 v24, 0" % (WS_MK, sTAG, stn[name], sTAG))
        A("s_mov_b64 exec, 1\nbuffer_store_dwordx4 v[20:23], v24, %s, s63 offen sc1\ns_mov_b64 exec, -1" % WS)
        A("L_gp1:")
        only_wave(7, "L_gp2")
        A("s_cmp_lg_u32 s2, 0\ns_cbranch_scc1 L_gp2")
        A("L_gpw:\ns_sleep 16\ns_memrealtime s[64:65]\ns_waitcnt lgkmcnt(0)\ns_sub_u32 s64, s64, s70\ns_cmp_lt_u32 s64, 3500\ns_cbranch_scc1 L_gpw")
        A("v_lshlrev_b32 v48, 9, v%d\ns_mov_b32 s64, %d" % (vL, WS_MK))
        poll(["buffer_load_dwordx4 v[%d:%d], v48, %s, s64 offen offset:%d sc1" % (32 + 4 * a, 35 + 4 * a, WS, 128 * a) for a in range(4)], [33 + 2 * a for a in range(8)], 8)
        for a in range(8): A("v_subrev_u32 v%d, s70, v%d" % (32 + 2 * a, 32 + 2 * a))
        op0 = "v_max_i32" if ref == "late" else "v_min_i32"
        A("%s v50, v32, v36\n%s v51, v40, v44\n%s v50, v50, v51\nv_max_i32 v52, v34, v38\nv_max_i32 v51, v42, v46\nv_max_i32 v52, v52, v51\ns_nop 1" % (op0, op0, op0))
        for r, op in ((50, op0), (52, "v_max_i32")):
            for c in ("quad_perm:[1,0,3,2]", "quad_perm:[2,3,0,1]", "row_half_mirror", "row_mirror"):
                dpp(op, r, r, r, c); A("s_nop 1")
            xrows(op, r, 54)
        A("v_sub_u32 v52, v52, v50\ns_nop 0\nv_readfirstlane_b32 s63, v52\ns_sub_u32 s63, s63, %d\ns_max_i32 s63, s63, 0\ns_mul_i32 s63, s63, 10\ns_add_u32 s63, s63, 6000" % aoff)
        A("L_gpl:\ns_sleep 4\ns_memrealtime s[64:65]\ns_waitcnt lgkmcnt(0)\ns_sub_u32 s64, s64, s70\ns_cmp_lt_u32 s64, s63\ns_cbranch_scc1 L_gpl")
        A("L_gp2:")
    if skewprobe:
        only_wave(7, "L_sk1")
        A("s_waitcnt lgkmcnt(0)\ns_lshl_b32 s63, s2, 7\ns_add_u32 s63, s63, %d\nv_mov_b32 v20, s70\nv_mov_b32 v21, s%d\nv_mov_b32 v22, 0" % (WS_MK, sTAG))
        A("s_mov_b64 exec, 1\nbuffer_store_dwordx2 v[20:21], v22, %s, s63 offen sc1\ns_mov_b64 exec, -1" % WS)
        A("s_cmp_lg_u32 s2, 255\ns_cbranch_scc1 L_sk1")
        A("v_lshlrev_b32 v48, 9, v%d\ns_mov_b32 s64, %d" % (vL, WS_MK))
        poll(["buffer_load_dwordx2 v[%d:%d], v48, %s, s64 offen offset:%d sc1" % (32 + 2 * a, 33 + 2 * a, WS, 128 * a) for a in range(4)], [33, 35, 37, 39], 8)
        for a in range(4): A("v_subrev_u32 v%d, s70, v%d" % (32 + 2 * a, 32 + 2 * a))
        A("v_min_i32 v40, v32, v34\nv_min_i32 v41, v36, v38\nv_min_i32 v40, v40, v41\nv_max_i32 v42, v32, v34\nv_max_i32 v41, v36, v38\nv_max_i32 v42, v42, v41\ns_nop 1")
        for r, op in ((40, "v_min_i32"), (42, "v_max_i32")):
            for c in ("quad_perm:[1,0,3,2]", "quad_perm:[2,3,0,1]", "row_half_mirror", "row_mirror"):
                dpp(op, r, r, r, c); A("s_nop 1")
            xrows(op, r, 44)
        A("v_sub_u32 v42, v42, v40\ns_nop 0\nv_readfirstlane_b32 s63, v42\nv_readfirstlane_b32 s62, v40\ns_mul_i32 s63, s63, %d\ns_add_u32 s63, s63, 6000\ns_add_u32 s63, s63, s62" % (skewprobe - 1))
        A("L_skl:\ns_sleep 4\ns_memrealtime s[64:65]\ns_waitcnt lgkmcnt(0)\ns_sub_u32 s64, s64, s70\ns_cmp_lt_u32 s64, s63\ns_cbranch_scc1 L_skl")
        A("L_sk1:")
    if probe:
        ST("end")
        name, sign, waves = probe
        A("s_waitcnt lgkmcnt(0)")
        A("s_lshl_b32 s63, 1, s3\ns_and_b32 s63, s63, %d\ns_cbranch_scc0 L_pe" % waves)
        A("s_and_b32 s63, s2, 7\ns_lshl_b32 s63, 1, s63\ns_and_b32 s63, s63, %d\ns_cbranch_scc0 L_pe" % pslot)
        if prow is not None: A("s_lshr_b32 s63, s2, 3\ns_cmp_lg_u32 s63, %d\ns_cbranch_scc1 L_pe" % prow)
        if name == "W": A("s_cmp_ge_u32 s%d, 120\ns_cbranch_scc1 L_pe" % sTILE)
        if name == "yg": A("s_cmp_lt_u32 s%d, 96\ns_cbranch_scc1 L_pe" % sRID)
        A("s_sub_u32 s63, s%d, s70" % stn[name])
        if amp > 1: A("s_sub_u32 s63, s63, %d\ns_max_i32 s63, s63, 0\ns_mul_i32 s63, s63, %d" % (aoff, amp))
        if sign < 0: A("s_sub_u32 s63, 4000, s63")
        A("s_add_u32 s63, s63, %d" % pbase)
        A("L_pl:\ns_sleep 4\ns_memrealtime s[64:65]\ns_waitcnt lgkmcnt(0)\ns_sub_u32 s64, s64, s70\ns_cmp_lt_u32 s64, s63\ns_cbranch_scc1 L_pl")
        A("L_pe:")
    if stamp:
        ST("end")
        A("s_waitcnt lgkmcnt(0)")
        A("s_lshl_b32 s63, s2, 3\ns_add_u32 s63, s63, s3\ns_lshl_b32 s63, s63, 6\ns_add_u32 s63, s63, %d\nv_mov_b32 v9, 0" % WS_STAMP)
        for i in range(0, 16, 4):
            for j in range(4):
                A("v_mov_b32 v%d, s%d" % (20 + j, 70 + 2 * (i + j)) if i + j < len(names) else "v_mov_b32 v%d, s71" % (20 + j))
            A("buffer_store_dwordx4 v[20:23], v9, %s, s63 offen offset:%d\ns_nop 1" % (WS, 4 * i))
    A("s_endpgm")
    A("L_bail:")
    A("s_mov_b64 exec, 1\nv_mov_b32 v9, 0\nv_mov_b32 v10, 0xdead\nglobal_store_dword v9, v10, s[26:27]")
    A("L_end:\ns_endpgm")
    L.append('.section .rodata,"a"\n.p2align 6\n.amdhsa_kernel %s_kernel' % NAME)
    L.append("  .amdhsa_next_free_vgpr 256\n  .amdhsa_next_free_sgpr 102\n  .amdhsa_accum_offset 256\n  .amdhsa_group_segment_fixed_size 0\n  .amdhsa_kernarg_size 104\n  .amdhsa_user_sgpr_count 2\n  .amdhsa_user_sgpr_kernarg_segment_ptr 1\n  .amdhsa_system_sgpr_workgroup_id_x 1\n.end_amdhsa_kernel")
    if now2:
        L[:] = [ln for ln in L if not (ln.strip().startswith("buffer_load") and ("s[48:51]" in ln or "s[52:55]" in ln))]
    if noside:
        out = []; inh = False
        for i, ln in enumerate(L):
            if ln == "L_helper:": inh = True
            if ln == "L_noep:": inh = False
            if inh:
                t = ln.strip()
                if t.startswith("buffer_store") and "s" in noside: continue
                if t.startswith("buffer_load") and "l" in noside: continue
                if t.startswith("global_load") and "x" in noside: continue
                if t.startswith("s_wqm_b64 exec, vcc"): ln = "    s_and_b64 vcc, 0, 0"
            out.append(ln)
        L[:] = out
    return "\n".join(L) + "\n"
```

```python
import sys, struct
NAME = "gated_mix__gqa_block_cached__glu_gated_glu__decode"
def f2u(x): return struct.unpack("<I", struct.pack("<f", x))[0]
LOG2E = 1.4426950408889634

WS_EPOCH = 0
WS_QG = 0x1000
WS_ML = 0x20000
WS_OP = 0x40000
WS_YP = 0xC0000
WS_MK = 0x140000
WS_STAMP = 0x400000
WS_USED = 0x180000
LDS_A = 0
LDS_Q = 4096
LDS_M = 5120
LDS_L = 5184
LDS_F = 5248
LDS_H = 5312
LDS_C = 5376
LDS_o = 5632
LDS_R = 5888
HFS = 1152
WVS = 2304
LDS_O = 6400
LDS_K = LDS_O + 4 * WVS
assert LDS_K % 256 == 0
LDS_END = LDS_K + 4 * 12288

class VM:
    def __init__(self): self.ops = []
    def issue(self, name, counted=True, w=None): self.ops.append((name, counted, (1.0 if counted else None) if w is None else w))
    def after(self, name):
        idx = max(i for i, (n, c, w) in enumerate(self.ops) if n == name)
        return sum(1 for n, c, w in self.ops[idx + 1:] if c)
    def pace_n(self, room):
        n = 0; tot = 0.0
        for name, c, w in reversed(self.ops):
            if w is None: continue
            if tot + w > room: return n, True
            tot += w; n += 1
        return n, False

def gen(d=5, dpat=None, d0=None, pol="nt", kpol=None, wpol="nt", w2pol="", stamp=False,
        p1=22, p2=100, pe=123, qk_at=37, outpol="", stpol="sc1", ldpol="sc1", spin=200000, header=None, probe=None, pbase=6000,
        sleep1=0, sleep2=0, nap=2, sprio=1, dend=None, lds_pad=0, adapt=None, db=7, alev=None, win=8, mkstr=7, npeer=16, adelay=True, aw=6, skewprobe=0, gprobe=None, pslot=255, prow=None, p0=None, thr=None, pm=16, pend=126, noside=None, pub4=True, ns1=1, ns2=1, stag=3, amp=1, aoff=2000, preG=True, preP=False, b5b=True, ssl=0, now2=False, touch=0, pt=116, tx=1, tpol="", tearly=False, tout=False, par=0, dodd=None, nred=64, plate=0, pbase0=0, tlb=0, xmap=False, lateg=0, stlb=0, pstl=12, cpre=0, estamp=None):
    if kpol is None: kpol = pol
    if d0 is None: d0 = d
    L = []
    def A(s):
        for line in s.strip("\n").split("\n"):
            t = line.strip()
            L.append(t if t.endswith(":") else "    " + t)
    vm = VM()
    diag = stamp or probe or skewprobe or gprobe
    names = ["start", "W", "pubA", "qw", "q", "exp", "pubML", "V7", "B5", "pubO", "og", "pubY", "yg", "end"]
    stn = {n: 70 + 2 * i for i, n in enumerate(names)}
    def ST(name):
        if diag and (not gprobe or name in ("start", "end", gprobe[0])): A("s_memrealtime s[%d:%d]" % (stn[name], stn[name] + 1))
    def wait(name, extra=0):
        n = vm.after(name) + extra
        assert n <= 63
        A("s_waitcnt vmcnt(%d)" % n)
    npace = [0]; amode = [False]
    def pace(dd=None, w=1.0):
        if dodd and dd is None:
            de = dpat[npace[0] % len(dpat)] if dpat else d
            do = dodd[npace[0] % len(dodd)]
            npace[0] += 1
            (ne, need_e), (no, need_o) = vm.pace_n(de - w), vm.pace_n(do - w)
            if max(ne, no) != min(ne, no):
                l1 = newlabel("pc")
                if need_e and need_o: A("s_waitcnt vmcnt(%d)" % max(ne, no))
                A("s_cbranch_%s %s\ns_waitcnt vmcnt(%d)\n%s:" % ("vccnz" if ne < no else "vccz", l1, min(ne, no), l1))
            elif need_e: A("s_waitcnt vmcnt(%d)" % ne)
            return
        if amode[0] and dd is None:
            l1 = newlabel("pc")
            dd = dpat[npace[0] % len(dpat)] if dpat else d
            npace[0] += 1
            A("s_waitcnt vmcnt(%d)\ns_cbranch_vccnz %s\ns_waitcnt vmcnt(%d)\n%s:" % (vm.pace_n(db - w)[0], l1, vm.pace_n(dd - w)[0], l1))
            return
        if dd is None:
            dd = dpat[npace[0] % len(dpat)] if dpat else d
            npace[0] += 1
        n, need = vm.pace_n(dd - w)
        if need: A("s_waitcnt vmcnt(%d)" % n)
    lab = [0]
    def newlabel(p):
        lab[0] += 1; return "L_%s%d" % (p, lab[0])

    vL, vVO, vSP, vG = 1, 3, 4, 8
    Q0, O0, AX0, S0 = 16, 16, 24, 32
    vKS, vKR = 88, 92
    YA, PUB, vWO, vWD2, vHH = 64, 72, 76, 77, 78
    WOR, WDR, WOF, T = 128, 144, 160, 192
    def buf(i): return 96 + 16 * (i % 10)
    def Kreg(t): return buf(t)
    def Vreg(t): return buf(t + 6)
    sK, sV, sW, sWS, sWO, sWD = 32, 36, 40, 44, 48, 52
    sB, sREST, sTAG, sSTR = 30, 31, 56, 58
    sKO, sVO, sSLOT, sM0 = 66, 67, 59, 101
    sTILE, sRID = (57, 61) if xmap else (sREST, sREST)
    WS = "s[%d:%d]" % (sWS, sWS + 3)
    tstep = 4 * 4096

    def dpp(op, dst, a, b, ctrl):
        A("%s_dpp v%d, v%d, v%d %s row_mask:0xf bank_mask:0xf" % (op, dst, a, b, ctrl))
    def xrows(op, x, t):
        A("v_mov_b32 v%d, v%d\ns_nop 1\nv_permlane16_swap_b32 v%d, v%d\n%s v%d, v%d, v%d" % (t, x, t, x, op, x, t, x))
        A("v_mov_b32 v%d, v%d\ns_nop 1\nv_permlane32_swap_b32 v%d, v%d\n%s v%d, v%d, v%d" % (t, x, t, x, op, x, t, x))
    def cmpn(tagregs):
        A("v_cmp_ne_u32 vcc, s%d, v%d" % (sTAG, tagregs[0]))
        for r in tagregs[1:]:
            A("v_cmp_ne_u32 s[68:69], s%d, v%d\ns_or_b64 vcc, vcc, s[68:69]" % (sTAG, r))
    def poll(loads, tagregs, sleep=0, first=True):
        lo, lc = newlabel("spin"), newlabel("chk")
        A("s_mov_b32 s62, 0")
        if not first: A("s_branch %s" % lc)
        elif sleep: A("s_branch %s_n" % lo)
        A("%s:" % lo)
        if sleep: A("s_sleep %d\n%s_n:" % (sleep, lo))
        for s in loads: A(s)
        A("s_add_u32 s62, s62, 1\ns_cmp_gt_u32 s62, %d\ns_cbranch_scc1 L_bail" % spin)
        A("%s:" % lc)
        A("s_waitcnt vmcnt(0)")
        cmpn(tagregs)
        A("s_wqm_b64 exec, vcc\ns_cbranch_scc1 %s" % lo)
        A("s_mov_b64 exec, -1")
    def bump(off):
        A("v_mov_b32 v12, 0\nv_mov_b32 v13, 1\ns_mov_b64 exec, 1\nds_add_u32 v12, v13 offset:%d\ns_mov_b64 exec, -1" % off)
    def await_lds(off, val, sleep):
        lo = newlabel("lw")
        A("v_mov_b32 v12, 0\ns_mov_b32 s62, 0\ns_branch %s_n\n%s:" % (lo, lo))
        if sleep: A("s_sleep %d" % sleep)
        A("%s_n:\nds_read_b32 v13, v12 offset:%d\ns_add_u32 s62, s62, 1\ns_cmp_gt_u32 s62, %d\ns_cbranch_scc1 L_bail" % (lo, off, spin * 8))
        A("s_waitcnt lgkmcnt(0)\nv_readfirstlane_b32 s63, v13\ns_cmp_lt_u32 s63, %d\ns_cbranch_scc1 %s" % (val, lo))
    def only_wave(w, skip): A("s_cmp_lg_u32 s3, %d\ns_cbranch_scc1 %s" % (w, skip))

    def srds2():
        A("s_mov_b32 s%d, s28\ns_mov_b32 s%d, s29\ns_mov_b32 s%d, %d\ns_mov_b32 s%d, 0x20000" % (sWS, sWS + 1, sWS + 2, 0x500000 if stamp else WS_USED, sWS + 3))
        A("s_mov_b32 s%d, s12\ns_mov_b32 s%d, s13\ns_mov_b32 s%d, 0x400000\ns_mov_b32 s%d, 0x20000" % (sWO, sWO + 1, sWO + 2, sWO + 3))
        A("s_mov_b32 s%d, s20\ns_mov_b32 s%d, s21\ns_mov_b32 s%d, 1835008\ns_mov_b32 s%d, 0x20000" % (sWD, sWD + 1, sWD + 2, sWD + 3))
    def tag():
        A("s_waitcnt lgkmcnt(0)")
        A("s_mul_i32 s%d, s%d, 0x9e3779b5\ns_add_u32 s%d, s%d, 0x7f4a7c15" % (sTAG, sTAG, sTAG, sTAG))
    def w2_prep():
        A("v_lshrrev_b32 v9, 3, v%d\nv_and_b32 v12, 7, v%d\nv_lshlrev_b32 v%d, 4, v12\nv_lshl_add_u32 v%d, v9, 10, v%d" % (vL, vL, vWO, vWO, vWO))
        A("v_cmp_gt_u32 s[68:69], 6, v9\nv_mov_b32 v13, 0x10000000\ns_mul_i32 s58, s%d, %d\ns_lshl_b32 s64, s3, 7\ns_add_u32 s58, s58, s64" % (sREST, 14 * 1024))
        A("v_cndmask_b32 v%d, v13, v%d, s[68:69]\ns_lshl_b32 s57, s%d, 15\ns_add_u32 s57, s57, s64" % (vWD2, vWO, sREST))
    def load_wo(a):
        A("buffer_load_dwordx4 v[%d:%d], v%d, s[%d:%d], s57 offen %s" % (WOR + 4 * a, WOR + 4 * a + 3, vWO, sWO, sWO + 3, w2pol))
        vm.issue("wo")
        if a < 3: A("s_add_u32 s57, s57, 8192")
    def load_wd(a):
        if a == 1: A("s_add_u32 s58, s58, 8192")
        A("buffer_load_dwordx4 v[%d:%d], v%d, s[%d:%d], s58 offen %s" % (WDR + 4 * a, WDR + 4 * a + 3, vWD2 if a else vWO, sWD, sWD + 3, w2pol)); vm.issue("wd")

    L.append((header or "") + "; @launch grid=(256,1,1) block=(512,1,1) lds=%d" % (LDS_END + lds_pad))
    if stamp: L.append("; stamps: " + " ".join(names))
    L.append('.amdgcn_target "amdgcn-amd-amdhsa--gfx950"\n.text\n.globl %s_kernel\n.p2align 8\n.type %s_kernel,@function\n%s_kernel:' % (NAME, NAME, NAME))
    A("s_cmp_ge_u32 s2, 256\ns_cbranch_scc1 L_end")
    A("s_load_dwordx16 s[4:19], s[0:1], 0\ns_load_dwordx8 s[20:27], s[0:1], 64\ns_load_dwordx2 s[28:29], s[0:1], 96")
    ST("start")
    A("v_lshrrev_b32 v9, 6, v0\nv_and_b32 v%d, 63, v0\nv_readfirstlane_b32 s3, v9" % vL)
    A("s_bfe_u32 s%d, s2, 0x10003" % sB)
    A("s_and_b32 s%d, s2, 7\ns_lshr_b32 s63, s2, 4\ns_lshl_b32 s63, s63, 3\ns_or_b32 s%d, s%d, s63" % (sREST, sREST, sREST))
    if xmap: A("s_mov_b32 s%d, s%d" % (sRID, sREST))
    if xmap:
        A("s_and_b32 s64, s2, 7\ns_lshr_b32 s63, s2, 4\ns_lshl_b32 s%d, s64, 4\ns_or_b32 s%d, s%d, s63" % (sREST, sREST, sREST))
        A("s_sub_u32 s%d, s%d, s64\ns_cmp_eq_u32 s63, 15\ns_cselect_b32 s%d, 127, s%d" % (sTILE, sREST, sTILE, sTILE))
    A("s_lshl_b32 s%d, s%d, 7\ns_add_u32 s%d, s%d, s%d" % (sSLOT, sB, sSLOT, sSLOT, sREST))
    A("v_lshrrev_b32 v10, 4, v%d\nv_and_b32 v11, 15, v%d\nv_lshlrev_b32 v%d, 4, v%d" % (vL, vL, vVO, vL))
    A("s_cmp_ge_u32 s3, 4\ns_cbranch_scc1 L_helper")

    if sprio: A("s_setprio %d" % sprio)
    A("v_lshlrev_b32 v12, 2, v10\nv_xor_b32 v12, v12, v11\nv_lshlrev_b32 v12, 4, v12\nv_lshl_add_u32 v%d, v10, 8, v12" % vKS)
    for i in range(1, 4): A("v_xor_b32 v%d, %d, v%d" % (vKS + i, 16 * i, vKS))
    A("s_lshl_b32 s%d, s3, 12\ns_mov_b32 s%d, s%d" % (sKO, sVO, sKO))
    A("s_lshl_b32 s65, s%d, 18" % sSLOT)
    A("s_mul_i32 s%d, s3, 12288\ns_add_u32 s%d, s%d, %d" % (sM0, sM0, sM0, LDS_K))
    A("s_movk_i32 s%d, 3584\ns_cmp_lt_u32 s%d, 64\ns_cselect_b32 s%d, 8192, s%d" % (sSTR, sTILE, sSTR, sSTR))
    A("s_lshl_b32 s63, s%d, 4\nv_mul_u32_u24 v12, s63, v10\nv_lshl_add_u32 v12, v11, 3, v12" % sSTR)
    A("s_lshl_b32 s62, s%d, 2\ns_add_u32 s62, s62, s3\ns_lshl_b32 s62, s62, 6" % sB)
    A("v_bfe_u32 v13, v11, 2, 1\nv_lshlrev_b32 v13, 10, v13\nv_lshl_add_u32 v13, v10, 5, v13\ns_lshl_b32 s63, s62, 1\nv_add_u32 v13, s63, v13")
    A("s_mul_i32 s63, s62, s%d" % sSTR)
    A("s_sub_u32 s64, s%d, 64\ns_cmp_lt_u32 s%d, 64\ns_cselect_b32 s64, s%d, s64\ns_sub_u32 s62, s%d, 92\ns_cmp_ge_u32 s%d, 92\ns_cselect_b32 s64, s62, s64\ns_lshl_b32 s64, s64, 7" % (sTILE, sTILE, sTILE, sTILE, sTILE))
    A("s_mul_i32 s%d, s%d, 511\ns_add_u32 s%d, s%d, 128\ns_mov_b32 s%d, 0x20000" % (sW + 2, sSTR, sW + 2, sW + 2, sW + 3))
    A("s_mov_b32 s%d, 0x40000\ns_mov_b32 s%d, 0x20000" % (sK + 2, sK + 3))
    A("s_waitcnt lgkmcnt(0)")
    if estamp == "karg": ST("q")
    A("s_add_u32 s%d, s6, s65\ns_addc_u32 s%d, s7, 0" % (sK, sK + 1))
    A("s_cmp_ge_u32 s%d, 120\ns_cbranch_scc1 L_noA1" % sTILE)
    A("s_cmp_lt_u32 s%d, 64\ns_cselect_b32 s%d, s10, s16\ns_cselect_b32 s%d, s11, s17" % (sTILE, sW, sW + 1))
    A("s_cmp_ge_u32 s%d, 92\ns_cselect_b32 s%d, s18, s%d\ns_cselect_b32 s%d, s19, s%d" % (sTILE, sW, sW, sW + 1, sW + 1))
    A("s_add_u32 s%d, s%d, s64\ns_addc_u32 s%d, s%d, 0" % (sW, sW, sW + 1, sW + 1))
    A("global_load_dwordx4 v[64:67], v13, s[4:5]\nglobal_load_dwordx4 v[68:71], v13, s[4:5] offset:16")
    if estamp == "x": A("s_waitcnt vmcnt(0)"); ST("q")
    vm.issue("X", False); vm.issue("X", False)
    for q in range(16):
        pace(d0, 0.5)
        A("buffer_load_dwordx2 v[%d:%d], v12, s[%d:%d], s63 offen %s" % (32 + 2 * q, 33 + 2 * q, sW, sW + 3, wpol))
        vm.issue("W%d" % q, False, 0.5)
        if q < 15: A("s_add_u32 s63, s63, s%d" % sSTR)
    A("L_noA1:")
    if estamp == "x": A("s_cmp_lt_u32 s%d, 120\ns_cbranch_scc1 L_es1" % sTILE); ST("q"); A("L_es1:")
    if estamp == "w": ST("q")
    slots = {}
    def at(i, f): slots.setdefault(i, []).append(f)
    def loadK(t, i):
        if i == 0:
            A("s_add_u32 s63, s%d, %d\ns_mov_b32 m0, s63" % (sM0, (t % 3) * 4096))
            A("s_waitcnt lgkmcnt(0)" if t >= 3 else "s_nop 0")
        A("buffer_load_dwordx4 v%d, s[%d:%d], s%d offen offset:%d %s lds" % (vKS + i, sK, sK + 3, sKO, 1024 * i, kpol))
        vm.issue("K%d" % t)
        if i == 3 and t < 15: A("s_add_u32 s%d, s%d, %d" % (sKO, sKO, tstep))
    def readK(t):
        wait("K%d" % t)
        for i in range(4):
            A("ds_read_b128 v[%d:%d], v%d offset:%d" % (Kreg(t) + 4 * i, Kreg(t) + 4 * i + 3, vKR + i, (t % 3) * 4096))
    def loadV(t, i):
        A("buffer_load_dwordx4 v[%d:%d], v%d, s[%d:%d], s%d offen offset:%d %s" % (Vreg(t) + 4 * i, Vreg(t) + 4 * i + 3, vVO, sV, sV + 3, sVO, 1024 * i, pol))
        vm.issue("V%d.%d" % (t, i))
        if i == 3 and t < 15: A("s_add_u32 s%d, s%d, %d" % (sVO, sVO, tstep))
    def setup2():
        A("s_load_dword s%d, s[28:29], %d" % (sTAG, WS_EPOCH))
        A("s_barrier")
        A("s_add_u32 s%d, s8, s65\ns_addc_u32 s%d, s9, 0\ns_mov_b32 s%d, 0x40000\ns_mov_b32 s%d, 0x20000" % (sV, sV + 1, sV + 2, sV + 3))
        A("v_and_b32 v9, 1, v%d\nv_cmp_eq_u32 vcc, 1, v9\nv_mov_b32 v12, 0x0c0c0100\nv_mov_b32 v9, 0x01000c0c\nv_mov_b32 v13, 0x0c0c0302\nv_mov_b32 v15, 0x03020c0c" % vL)
        A("v_cndmask_b32 v12, v12, v9, vcc\nv_cndmask_b32 v13, v13, v15, vcc")
        A("v_and_b32 v9, 2, v%d\nv_cmp_eq_u32 vcc, 2, v9\nv_mov_b32 v15, 0x0c0c0c0c\ns_nop 0" % vL)
        A("v_cndmask_b32 v%d, v12, v15, vcc\nv_cndmask_b32 v%d, v15, v12, vcc\nv_cndmask_b32 v%d, v13, v15, vcc\nv_cndmask_b32 v%d, v15, v13, vcc" % (vSP, vSP + 1, vSP + 2, vSP + 3))
        A("v_and_b32 v12, 3, v11\nv_lshlrev_b32 v12, 10, v12\nv_lshrrev_b32 v13, 2, v11\nv_lshl_add_u32 v12, v13, 8, v12\nv_xor_b32 v13, v10, v11\nv_lshl_add_u32 v12, v13, 4, v12\nv_add_u32 v%d, s%d, v12" % (vKR, sM0))
        for i in range(1, 4): A("v_xor_b32 v%d, %d, v%d" % (vKR + i, 64 * i, vKR))
        if dodd: A("s_getreg_b32 s63, hwreg(HW_REG_XCC_ID, 0, 1)\ns_cmp_eq_u32 s63, 1\ns_cselect_b64 vcc, -1, 0")
    def phaseA(half):
        def f():
            l1 = newlabel("skipA")
            A("s_cmp_ge_u32 s%d, 120\ns_cbranch_scc1 %s" % (sTILE, l1))
            A("s_waitcnt vmcnt(%d)" % (vm.after("W15") + (8 if half == 0 else 0)))
            for u in range(8 * half, 8 * half + 8):
                for j2 in range(2):
                    A("v_perm_b32 v%d, v%d, v%d, v%d" % (96 + 2 * (u & 7) + j2, 64 + (u >> 1), 64 + (u >> 1), vSP + 2 * (u & 1) + j2))
            for u in range(8 * half, 8 * half + 8):
                A("v_mfma_f32_16x16x16_bf16 v[72:75], v[%d:%d], v[%d:%d], %s" % (96 + 2 * (u & 7), 97 + 2 * (u & 7), 32 + 2 * u, 33 + 2 * u, "0" if u == 0 else "v[72:75]"))
            if half == 1:
                ST("W")
                A("s_lshl_b32 s63, s3, 10\nv_add_u32 v9, s63, v%d\ns_nop 6" % vVO)
                A("ds_write_b128 v9, v[72:75] offset:%d" % LDS_A)
                bump(LDS_C)
            A("%s:" % l1)
        return f
    def progress(val):
        def f():
            l1 = newlabel("pg")
            only_wave(0, l1)
            A("v_mov_b32 v12, 0\nv_mov_b32 v13, %d\nds_write_b32 v12, v13 offset:%d" % (val, LDS_C + 12))
            A("%s:" % l1)
        return f
    def q_wait():
        ST("qw")
        A("v_lshrrev_b32 v9, 2, v11\nv_lshlrev_b32 v9, 8, v9\nv_lshl_add_u32 v9, v10, 4, v9")
        await_lds(LDS_C + 8, 4, 0)
        for i in range(4):
            A("ds_read_b128 v[%d:%d], v9 offset:%d" % (Q0 + 4 * i, Q0 + 4 * i + 3, LDS_Q + 64 * i))
    def qk(ts):
        def f():
            A("s_waitcnt lgkmcnt(0)")
            for t in ts:
                for i in range(4):
                    A("v_mfma_f32_16x16x32_bf16 v[%d:%d], v[%d:%d], v[%d:%d], %s" % (S0 + 4 * t, S0 + 4 * t + 3, Kreg(t) + 4 * i, Kreg(t) + 4 * i + 3, Q0 + 4 * i, Q0 + 4 * i + 3,
                      "0" if i == 0 else "v[%d:%d]" % (S0 + 4 * t, S0 + 4 * t + 3)))
        return f
    def smax():
        A("v_max3_f32 v9, v32, v33, v34\nv_max3_f32 v14, v35, v36, v37")
        rs = list(range(38, 96))
        for k in range(0, len(rs), 2): A("v_max3_f32 v%d, v%d, v%d, v%d" % ((9, 14)[(k >> 1) & 1], (9, 14)[(k >> 1) & 1], rs[k], rs[k + 1]))
        A("v_max_f32 v9, v9, v14")
        A("s_mov_b32 s65, 0x%08x" % f2u(128 ** -0.5 * LOG2E))
        xrows("v_max_f32", 9, 12)
        A("v_mul_f32 v9, s65, v9")
    def sexp(lo, hi):
        def f():
            for r in range(lo, hi): A("v_fma_f32 v%d, v%d, s65, -v9" % (r, r))
            for r in range(lo, hi): A("v_exp_f32 v%d, v%d" % (r, r))
            if hi == 96: ST("exp")
        return f
    def ssum(lo, hi):
        def f():
            for r in range(lo, hi, 2):
                if r == 32: A("v_mov_b32 v14, v32\nv_mov_b32 v15, v33")
                else: A("v_pk_add_f32 v[14:15], v[14:15], v[%d:%d]" % (r, r + 1))
            for r in range(lo, hi, 2): A("v_cvt_pk_bf16_f32 v%d, v%d, v%d" % (32 + (r - 32) // 2, r, r + 1))
            if hi == 96:
                A("v_add_f32 v15, v15, v14")
                xrows("v_add_f32", 15, 14)
                A("v_lshrrev_b32 v14, 2, v11\nv_lshlrev_b32 v14, 4, v14\ns_lshl_b32 s63, s3, 2\nv_add_u32 v14, s63, v14")
                A("ds_write_b32 v14, v9 offset:%d\nds_write_b32 v14, v15 offset:%d" % (LDS_M, LDS_L))
                bump(LDS_C + 4)
        return f
    def expand(t):
        for r in range(4):
            for j2 in range(2):
                A("v_perm_b32 v%d, v%d, v%d, v%d" % (AX0 + 2 * r + j2, 32 + 2 * t + (r >> 1), 32 + 2 * t + (r >> 1), vSP + 2 * (r & 1) + j2))
    def pvm(t, r):
        for hf in range(2):
            A("v_mfma_f32_16x16x16_bf16 v[%d:%d], v[%d:%d], v[%d:%d], %s" % (O0 + 4 * hf, O0 + 4 * hf + 3, AX0 + 2 * r, AX0 + 2 * r + 1,
              Vreg(t) + 4 * r + 2 * hf, Vreg(t) + 4 * r + 2 * hf + 1, "0" if (t == 0 and r == 0) else "v[%d:%d]" % (O0 + 4 * hf, O0 + 4 * hf + 3)))
    def pv(t):
        def f():
            expand(t); wait("V%d.3" % t)
            for r in range(4): pvm(t, r)
        return f
    def s_prep():
        srds2(); tag(); w2_prep()
        A("v_lshlrev_b32 v10, 4, v%d\ns_mul_i32 s63, s3, %d\nv_add_u32 v10, s63, v10" % (vL, WVS))
        A("v_mov_b32 v15, 0\ns_mov_b32 s60, 1")
        A("v_mov_b32 v%d, s%d\nv_mov_b32 v%d, s%d" % (PUB + 1, sTAG, PUB + 3, sTAG))
    dm = max(dpat) if dpat else d
    if adapt or p0 is not None or par: dm = max(dm, db)
    if dodd: dm = max(dm, max(dodd))
    dmv = max(dm, dend[1]) if dend else dm
    assert 4 <= dm <= 8
    at(0, setup2)
    at(1, phaseA(0)); at(min(dm, 6), phaseA(1))
    assert min(dm, 6) < 3 + dm
    for t in range(16): at(4 * t + 3 + dm, lambda t=t: readK(t))
    for p in sorted(set([p1, p2, pe] + ([lateg] if lateg else []) + ([pstl] if stlb else []) + ([pt] if touch else []) + (adapt or []) + ([p0] if p0 is not None else []))): at(p, progress(p))
    if p0 is not None or par:
        if p0 is not None:
            at(pm - 1, lambda: A("v_mov_b32 v2, 0\nds_read_b32 v0, v2 offset:%d" % (LDS_C + 16)))
            at(pm, lambda: A("s_waitcnt lgkmcnt(0)"))
        else: at(pm, lambda: A("v_mov_b32 v0, 0"))
        if par: at(pm, lambda: A("s_getreg_b32 s63, hwreg(HW_REG_XCC_ID, 0, 1)\ns_mul_i32 s63, s63, %d\ns_getreg_b32 s64, hwreg(HW_REG_XCC_ID, 2, 1)\ns_mul_i32 s64, s64, %d\ns_add_u32 s63, s63, s64\ns_add_u32 s63, s63, %d\nv_add_u32 v0, s63, v0" % (par, plate, pbase0)))
        if stamp: at(pm, lambda: A("s_nop 0\nv_readfirstlane_b32 s71, v0"))
        for j, p in enumerate(range(pm, pend, win)):
            at(p, lambda j=j: A("v_cmp_le_u32 vcc, %d, v0" % thr[j % len(thr)]))
        at(pend, lambda: A("s_mov_b64 vcc, 0"))
    if adapt:
        a0 = adapt[0] + win
        at(a0 - 1, lambda: A("s_mov_b64 vcc, 0"))
        for j, p in enumerate(range(a0, 126, win)):
            at(p, lambda: A("v_mov_b32 v2, 0\nds_read_b32 v0, v2 offset:%d" % (LDS_C + 16)))
            at(p + 1, lambda j=j: A("s_waitcnt lgkmcnt(0)\nv_and_b32 v0, %d, v0\nv_cmp_ne_u32 vcc, 0, v0" % (1 << (j % 8))))
    at(qk_at - 1, q_wait)
    t = 0; s = qk_at
    while t < 16:
        ts = [u for u in (t, t + 1) if u < 16 and 4 * u + 3 + dm < s and (u < 14 or s >= 64)]
        if ts:
            assert all(s < 4 * (u + 10) + 3 + dm for u in ts)
            at(s, qk(ts)); t += len(ts); slast = s
        s += 1
    at(slast + 1, smax)
    for k in range(4): at(slast + 2 + k, sexp(32 + 16 * k, 48 + 16 * k))
    at(slast + 6, ssum(32, 64)); at(slast + 7, ssum(64, 96))
    nxt = slast + 8; late = []
    for t in range(15):
        nxt = max(nxt, 67 + 4 * t + dmv)
        if nxt <= 127: at(nxt, pv(t))
        else: late.append(t)
        assert t + 10 > 15 or nxt < 64 + 4 * (t + 10)
        nxt += 1
    at(113, s_prep)
    if isinstance(estamp, int): at(estamp, lambda: ST("q"))
    if stamp:
        at(16, lambda: ST("pubA")); at(96, lambda: ST("pubML")); at(112, lambda: ST("yg")); at(56, lambda: ST("q"))
    for i in range(128):
        if adapt and i == adapt[0] + win: amode[0] = True
        if (p0 is not None or par) and i == pm + 1: amode[0] = True
        if dodd and i == 0: pace(d0)
        elif dend and i >= dend[0]: pace(dend[1])
        else: pace()
        if i < 64: loadK(i >> 2, i & 3)
        else: loadV((i - 64) >> 2, i & 3)
        for f in slots.get(i, []): f()
    amode[0] = False
    for t in late: pv(t)()
    expand(15)
    for r in range(4):
        wait("V15.%d" % r)
        if r == 3: ST("V7")
        pvm(15, r)
    A("s_nop 6")
    A("ds_write_b128 v10, v[16:19] offset:%d\nds_write_b128 v10, v[20:23] offset:%d" % (LDS_O, LDS_O + HFS))
    A("s_waitcnt lgkmcnt(0)\ns_barrier")
    ST("B5")
    if ssl: A("s_sleep %d" % ssl)
    opl = "buffer_load_dwordx4 v[%d:%d], v15, %s, s100 offen %s" % (T, T + 3, WS, ldpol)
    A("s_branch L_join")

    A("L_helper:")
    A("v_mov_b32 v12, 0\nv_mov_b32 v13, 0\nv_mov_b32 v14, 0\nv_mov_b32 v15, 0\nds_write_b128 v12, v[12:15] offset:%d" % LDS_C)
    if adapt or p0 is not None: A("ds_write_b32 v12, v12 offset:%d" % (LDS_C + 16))
    A("s_waitcnt lgkmcnt(0)")
    A("s_load_dword s%d, s[28:29], %d" % (sTAG, WS_EPOCH))
    A("s_barrier")
    srds2()
    if cpre:
        if cpre == 1: A("s_cmp_lt_u32 s%d, 120\ns_cbranch_scc1 L_nocp" % sTILE)
        A("s_getpc_b64 s[34:35]\nL_pc0:\ns_sub_u32 s34, s34, L_pc0-%s_kernel\ns_subb_u32 s35, s35, 0" % NAME)
        A("s_and_b32 s63, s3, 3\ns_lshl_b32 s63, s63, 10\nv_add_u32 v32, s63, v%d" % vVO)
        for k in range(4):
            A("v_min_u32 v33, L_end-%s_kernel-16, v32\nglobal_load_dwordx4 v[36:39], v33, s[34:35]\nv_add_u32 v32, 4096, v32" % NAME)
        A("L_nocp:")
    if tlb:
        only_wave(6, "L_notlb")
        A("s_lshl_b32 s63, s%d, 18\ns_add_u32 s63, s63, 0x3ff80\nv_mov_b32 v32, s63\ns_lshl_b32 s63, s%d, 15\nv_mov_b32 v33, s63\ns_mul_i32 s63, s%d, %d\nv_mov_b32 v34, s63\nv_mov_b32 v35, 0\ns_mov_b64 exec, 1" % (sSLOT, sREST, sREST, 14 * 1024))
        if tlb & 1: A("global_load_dword v36, v32, s[8:9] nt")
        if tlb & 2: A("global_load_dword v37, v33, s[12:13] nt\nglobal_load_dword v38, v34, s[20:21] nt")
        if tlb & 4: A("global_load_dword v39, v35, s[24:25] nt")
        A("s_mov_b64 exec, -1\nL_notlb:")
    if lateg:
        tag()
    if stlb:
        only_wave(6, "L_nostlb")
        await_lds(LDS_C + 12, pstl, nap)
        A("s_lshl_b32 s63, s%d, 18\ns_add_u32 s32, s8, s63\ns_addc_u32 s33, s9, 0\ns_lshl_b32 s63, s%d, 15\ns_add_u32 s34, s12, s63\ns_addc_u32 s35, s13, 0\ns_mul_i32 s63, s%d, %d\ns_add_u32 s36, s20, s63\ns_addc_u32 s37, s21, 0" % (sSLOT, sREST, sREST, 14 * 1024))
        if stlb & 1: A("s_load_dword s38, s[32:33], 0")
        if stlb & 2: A("s_load_dword s39, s[34:35], 0\ns_load_dword s40, s[36:37], 0")
        if stlb & 4: A("s_load_dword s41, s[24:25], 0")
        A("L_nostlb:")
    only_wave(5, "L_nox")
    if lateg: await_lds(LDS_C + 12, lateg, nap)
    A("s_lshl_b32 s63, s%d, 10\nv_add_u32 v9, s63, v%d" % (sB, vVO))
    A("global_load_dwordx4 v[32:35], v9, s[4:5]\nglobal_load_dwordx4 v[36:39], v%d, s[22:23]" % vVO)
    if tearly:
        A("s_lshl_b32 s63, s%d, 7\ns_add_u32 s63, s63, %d\nv_mov_b32 v12, 0\nbuffer_load_dword v44, v12, %s, s63 offen %s" % (sSLOT, WS_ML, WS, tpol))
    A("s_waitcnt vmcnt(0)")
    A("v_dot2_f32_bf16 v%d, v32, v36, 0" % vG)
    for i in range(1, 4): A("v_dot2_f32_bf16 v%d, v%d, v%d, v%d" % (vG, 32 + i, 36 + i, vG))
    A("s_nop 2")
    for c in ("quad_perm:[1,0,3,2]", "quad_perm:[2,3,0,1]", "row_half_mirror", "row_mirror"):
        dpp("v_add_f32", vG, vG, vG, c); A("s_nop 1")
    xrows("v_add_f32", vG, 9)
    A("v_mul_f32 v%d, 0x%08x, v%d\nv_exp_f32 v%d, v%d\ns_nop 0\nv_add_f32 v%d, 1.0, v%d\nv_rcp_f32 v%d, v%d" % (vG, f2u(-LOG2E), vG, vG, vG, vG, vG, vG, vG))
    A("L_nox:")
    if not lateg: tag()
    only_wave(4, "L_noA2")
    A("s_cmp_ge_u32 s%d, 120\ns_cbranch_scc1 L_noA2" % sTILE)
    if pub4:
        A("v_and_b32 v14, 31, v%d\nv_lshlrev_b32 v9, 4, v14\nv_lshrrev_b32 v15, 5, v%d\nv_lshl_add_u32 v9, v15, 3, v9" % (vL, vL))
        A("v_lshrrev_b32 v14, 4, v14\nv_mul_u32_u24 v14, %d, v14\nv_add_u32 v14, v14, v%d" % (30720 - 256, vVO))
    else:
        A("v_lshlrev_b32 v9, 3, v%d\nv_lshrrev_b32 v14, 5, v%d\nv_mul_u32_u24 v14, %d, v14\nv_add_u32 v14, v14, v9" % (vL, vL, 30720 - 256))
    A("s_mul_i32 s64, s%d, 61440\ns_lshl_b32 s65, s%d, 8\ns_add_u32 s64, s64, s65\ns_add_u32 s64, s64, %d" % (sB, sTILE, WS_QG))
    if tearly:
        A("s_mov_b32 exec_hi, 0\nbuffer_load_dwordx4 v[44:47], v14, %s, s64 offen %s\ns_mov_b32 exec_hi, -1" % (WS, tpol))
    await_lds(LDS_C, 4, 1)
    for w in range(4):
        A("ds_read_b64 v[%d:%d], v9 offset:%d" % (32 + 2 * w, 33 + 2 * w, LDS_A + 1024 * w))
    A("s_waitcnt lgkmcnt(0)\nv_pk_add_f32 v[32:33], v[32:33], v[34:35]\nv_pk_add_f32 v[36:37], v[36:37], v[38:39]\nv_pk_add_f32 v[32:33], v[32:33], v[36:37]")
    if pub4:
        A("v_cvt_pk_bf16_f32 v36, v32, v33\nv_cvt_pk_bf16_f32 v38, v32, v33\nv_mov_b32 v37, s%d\nv_mov_b32 v39, s%d\nv_permlane32_swap_b32 v36, v38\ns_mov_b32 exec_hi, 0" % (sTAG, sTAG))
        A("buffer_store_dwordx4 v[36:39], v14, %s, s64 offen %s\ns_mov_b32 exec_hi, -1" % (WS, stpol))
    else:
        A("v_cvt_pk_bf16_f32 v32, v32, v33\nv_mov_b32 v33, s%d" % sTAG)
        A("buffer_store_dwordx2 v[32:33], v14, %s, s64 offen %s" % (WS, stpol))
    A("L_noA2:")
    ST("pubA")
    def adapt_cps(cs, setup=False):
        l1 = newlabel("noad")
        if setup:
            nrow = npeer // 8; span = 32 // nrow
            A("s_lshr_b32 s64, s2, 3\ns_and_b32 s60, s64, %d\ns_mul_i32 s60, s60, %d\ns_lshr_b32 s64, s64, %d\ns_lshl_b32 s64, s64, 3\ns_and_b32 s63, s2, 7\ns_add_u32 s64, s64, s63\ns_add_u32 s64, s64, s60" % (span - 1, npeer, span.bit_length() - 1))
            A("s_lshl_b32 s64, s64, %d\ns_add_u32 s66, s64, %d\ns_lshl_b32 s60, s60, %d\ns_add_u32 s60, s60, %d" % (mkstr, WS_MK, mkstr, WS_MK))
            A("v_and_b32 v50, %d, v%d\nv_lshlrev_b32 v50, %d, v50\nv_mov_b32 v51, 0\nv_mov_b32 v52, s%d" % (npeer - 1, vL, mkstr, sTAG))
            if stamp: A("s_mov_b32 s71, 0")
        only_wave(aw, l1)
        for c in cs:
            await_lds(LDS_C + 12, adapt[c], 1)
            A("s_mov_b64 exec, 1\nbuffer_store_dword v52, v51, %s, s66 offen %s\ns_mov_b64 exec, -1" % (WS, stpol))
            if adelay: A("s_waitcnt vmcnt(0)")
            A("buffer_load_dword v53, v50, %s, s60 offen %s" % (WS, ldpol))
            A("s_add_u32 s66, s66, 32768\ns_add_u32 s60, s60, 32768\ns_waitcnt vmcnt(0)")
            A("v_cmp_eq_u32 vcc, s%d, v53\ns_bcnt1_i32_b64 s63, vcc\ns_mov_b32 s61, 0" % sTAG)
            for thr, m in alev:
                A("s_cmp_ge_u32 s63, %d\ns_cselect_b32 s61, %d, s61" % (thr, m))
            A("v_mov_b32 v53, s61\nds_write_b32 v51, v53 offset:%d" % (LDS_C + 16))
            if stamp: A("s_min_u32 s63, s63, 63\ns_lshl_b32 s63, s63, %d\ns_or_b32 s71, s71, s63" % (6 * c))
        A("%s:" % l1)
    if adapt: adapt_cps([c for c, cp in enumerate(adapt) if cp < p1], True)
    A("v_lshrrev_b32 v40, 5, v%d\nv_mul_u32_u24 v40, %d, v40\nv_add_u32 v40, v40, v%d" % (vL, 61440 - 512, vVO))
    A("s_mul_i32 s98, s%d, 30720\ns_lshr_b32 s64, s%d, 4\ns_lshl_b32 s64, s64, 11\ns_add_u32 s98, s98, s64\ns_and_b32 s65, s3, 3\ns_lshl_b32 s64, s65, 9\ns_add_u32 s98, s98, s64\ns_add_u32 s98, s98, %d" % (sB, sREST, WS_QG))
    qld = "buffer_load_dwordx4 v[32:35], v40, %s, s98 offen %s" % (WS, ldpol)
    if p0 is None:
        await_lds(LDS_C + 12, p1, nap)
        poll([qld], [33, 35], 4)
    else:
        await_lds(LDS_C + 12, p0, 1)
        A(qld + "\ns_waitcnt vmcnt(0)")
        cmpn([33, 35])
        A("s_wqm_b64 s[60:61], vcc\ns_bcnt0_i32_b64 s63, s[60:61]\nv_mov_b32 v12, 0\nv_mov_b32 v13, s63\ns_mov_b64 exec, 1\nds_add_u32 v12, v13 offset:%d\ns_mov_b64 exec, -1" % (LDS_C + 16))
        A("s_cmp_eq_u32 s63, 64\ns_cbranch_scc1 L_qok")
        await_lds(LDS_C + 12, p1, nap)
        A("s_mov_b64 exec, s[60:61]")
        poll([qld], [33, 35], 4)
        A("L_qok:")
    A("v_mov_b32 v36, v32\nv_mov_b32 v37, v34\ns_lshl_b32 s63, s65, 8\ns_add_u32 s63, s63, %d\nv_permlane32_swap_b32 v36, v32\nv_permlane32_swap_b32 v37, v34" % LDS_Q)
    for a, b in ((36, 32), (37, 34)):
        A("v_lshlrev_b32 v12, 16, v%d\nv_lshlrev_b32 v13, 16, v%d\nv_and_b32 v14, 0xffff0000, v%d\nv_and_b32 v15, 0xffff0000, v%d" % (a, b, a, b))
        A("v_add_f32 v12, v12, v13\nv_add_f32 v14, v14, v15\nv_cvt_pk_bf16_f32 v%d, v12, v14" % a)
    A("v_and_b32 v9, 31, v%d\nv_lshl_add_u32 v9, v9, 3, s63" % vL)
    A("ds_write2_b32 v9, v36, v37 offset0:0 offset1:1")
    bump(LDS_C + 8)
    if touch & 4:
        await_lds(LDS_C + 12, pt, nap)
        A(("s_xor_b32 s63, s%d, %d\ns_lshl_b32 s63, s63, 11" % (sSLOT, tx)) if tx else "s_lshl_b32 s63, s%d, 11" % sSLOT)
        A("s_and_b32 s64, s3, 1\ns_lshl_b32 s64, s64, 10\ns_add_u32 s63, s63, s64\ns_add_u32 s63, s63, %d" % WS_OP)
        A("s_and_b32 s64, s3, 2\ns_mul_i32 s64, s64, %d\ns_add_u32 s63, s63, s64" % ((WS_YP - WS_OP) // 2))
        A("buffer_load_dwordx4 v[%d:%d], v%d, %s, s63 offen %s" % (T + 20, T + 23, vVO, WS, tpol))
    only_wave(5, "L_noside")
    A("v_min_u32 v40, 13, v11\nv_lshrrev_b32 v40, 1, v40\nv_lshlrev_b32 v40, 3, v40")
    A("s_mul_i32 s63, s%d, 7\ns_mul_i32 s64, s%d, 3840\ns_add_u32 s63, s63, s64\ns_lshl_b32 s63, s63, 3\ns_add_u32 s63, s63, %d" % (sREST, sB, WS_QG + 2048 * 8))
    A("v_and_b32 v41, 1, v10\nv_mul_u32_u24 v41, 61440, v41\nv_lshrrev_b32 v42, 1, v10\nv_mul_u32_u24 v42, %d, v42\nv_add3_u32 v40, v40, v41, v42\nv_add_u32 v40, s63, v40" % (896 * 8))
    poll(["buffer_load_dwordx2 v[32:33], v40, %s, 0 offen %s" % (WS, ldpol)], [33], 4)
    A("v_and_b32 v34, 1, v%d\nv_cmp_eq_u32 vcc, 1, v34\nv_lshlrev_b32 v34, 16, v32\nv_and_b32 v35, 0xffff0000, v32" % vL)
    A("v_cndmask_b32 v34, v34, v35, vcc\nv_cmp_gt_u32 vcc, 14, v11\nv_mov_b32 v35, v34\ns_nop 1\nv_permlane16_swap_b32 v35, v34\nv_add_f32 v34, v34, v35")
    A("v_mov_b32 v36, v34\ns_nop 1\nv_permlane32_swap_b32 v34, v36")
    A("v_mul_f32 v34, 0x%08x, v34\nv_exp_f32 v34, v34\nv_sub_f32 v37, 1.0, v%d\nv_add_f32 v34, 1.0, v34\nv_rcp_f32 v34, v34\nv_mul_f32 v36, v36, v37" % (f2u(-LOG2E), vG))
    A("v_mul_f32 v34, v34, v36\nv_cndmask_b32 v34, 0, v34, vcc")
    A("v_and_b32 v35, 7, v11\nv_lshlrev_b32 v35, 3, v35\nv_lshrrev_b32 v36, 3, v11\nv_lshl_add_u32 v35, v36, 2, v35")
    A("ds_write_b32 v35, v34 offset:%d" % LDS_H)
    A("v_and_b32 v40, 3, v%d\nv_lshlrev_b32 v40, 4, v40\nv_bfe_u32 v41, v%d, 2, 1\nv_lshl_add_u32 v41, v41, 6, v40" % (vL, vL))
    A("s_lshl_b32 s64, s%d, 7\ns_add_u32 s64, s64, %d\nv_mov_b32 v45, s%d\nv_mov_b32 v47, s%d" % (sSLOT, WS_ML, sTAG, sTAG))
    await_lds(LDS_C + 4, 4, nap)
    A("ds_read_b128 v[32:35], v40 offset:%d\nds_read_b128 v[36:39], v40 offset:%d" % (LDS_M, LDS_L))
    A("v_and_b32 v42, 12, v%d\nv_add_u32 v42, v42, v40\nds_read_b32 v43, v42 offset:%d" % (vL, LDS_M))
    A("s_waitcnt lgkmcnt(0)\nv_max3_f32 v44, v32, v33, v34\nv_max_f32 v44, v44, v35")
    for w in range(4): A("v_sub_f32 v%d, v%d, v44" % (32 + w, 32 + w))
    for w in range(4): A("v_exp_f32 v%d, v%d" % (32 + w, 32 + w))
    A("v_mul_f32 v46, v32, v36")
    for w in range(1, 4): A("v_fmac_f32 v46, v%d, v%d" % (32 + w, 36 + w))
    A("s_mov_b64 exec, 0xff")
    A("buffer_store_dwordx4 v[44:47], v41, %s, s64 offen %s" % (WS, stpol))
    A("s_mov_b64 exec, -1")
    ST("pubML")
    A("s_and_b32 s64, s%d, 0xf0\ns_lshl_b32 s64, s64, 7\ns_add_u32 s64, s64, %d" % (sSLOT, WS_ML))
    A("v_lshrrev_b32 v41, 2, v%d\nv_lshl_add_u32 v41, v41, 7, v40" % vL)
    await_lds(LDS_C + 12, p2, nap)
    poll(["buffer_load_dwordx4 v[32:35], v41, %s, s64 offen %s" % (WS, ldpol)], [33, 35], 4)
    A("v_mov_b32 v36, v32\ns_nop 1")
    for c in ("row_ror:4", "row_ror:8"):
        dpp("v_max_f32", 36, 36, 36, c); A("s_nop 1")
    xrows("v_max_f32", 36, 37)
    A("v_sub_f32 v37, v32, v36\nv_exp_f32 v37, v37\ns_nop 0\nv_mul_f32 v37, v37, v34\ns_nop 1")
    for c in ("row_ror:4", "row_ror:8"):
        dpp("v_add_f32", 37, 37, 37, c); A("s_nop 1")
    xrows("v_add_f32", 37, 38)
    A("v_sub_f32 v43, v43, v36\nv_rcp_f32 v37, v37\nv_exp_f32 v43, v43\nv_mul_f32 v37, v37, v%d\nv_mul_f32 v43, v43, v37" % vG)
    A("ds_write_b32 v42, v43 offset:%d" % LDS_F)
    A("L_noside:")
    if adapt: adapt_cps([c for c, cp in enumerate(adapt) if cp >= p1])
    A("s_cmp_lg_u32 s2, 255\ns_cbranch_scc1 L_noep")
    only_wave(7, "L_noep")
    A("v_lshlrev_b32 v48, 9, v%d\ns_mov_b32 s64, %d" % (vL, WS_ML))
    await_lds(LDS_C + 12, pe, nap)
    poll(["buffer_load_dwordx4 v[%d:%d], v48, %s, s64 offen offset:%d %s" % (32 + 4 * a, 35 + 4 * a, WS, 128 * a, ldpol) for a in range(4)], [33 + 2 * a for a in range(8)], 8)
    A("v_mov_b32 v48, %d\nv_mov_b32 v49, s%d\ns_mov_b64 exec, 1" % (WS_EPOCH, sTAG))
    A("buffer_store_dword v49, v48, %s, 0 offen %s" % (WS, stpol))
    A("s_mov_b64 exec, -1")
    A("L_noep:")
    w2_prep()
    A("v_lshrrev_b32 v11, 1, v%d\nv_lshlrev_b32 v11, 4, v11\nv_and_b32 v13, 1, v%d\nv_mul_u32_u24 v13, %d, v13" % (vL, vL, HFS))
    A("s_and_b32 s65, s3, 1\ns_lshl_b32 s63, s65, 9\nv_add3_u32 v11, v11, v13, s63")
    A("v_lshrrev_b32 v14, 5, v%d\nv_lshlrev_b32 v14, 4, v14\ns_lshl_b32 s63, s65, 5\nv_add_u32 v14, s63, v14" % vL)
    A("s_lshl_b32 s99, s%d, 11\ns_lshl_b32 s63, s65, 10\ns_add_u32 s99, s99, s63\ns_add_u32 s99, s99, %d" % (sSLOT, WS_OP))
    A("v_lshlrev_b32 v15, 11, v9\nv_lshl_add_u32 v15, v12, 4, v15")
    A("s_and_b32 s100, s%d, 0xf0\ns_lshl_b32 s63, s65, 3\ns_add_u32 s100, s100, s63\ns_lshl_b32 s100, s100, 11\ns_and_b32 s63, s%d, 15\ns_lshl_b32 s63, s63, 7\ns_add_u32 s100, s100, s63\ns_add_u32 s100, s100, %d" % (sSLOT, sREST, WS_OP))
    A("v_mov_b32 v%d, s%d\nv_mov_b32 v%d, s%d" % (PUB + 1, sTAG, PUB + 3, sTAG))
    if touch & 3 or tout:
        await_lds(LDS_C + 12, pt, nap)
        if touch & 1:
            A("s_cmp_ge_u32 s3, 6\ns_cbranch_scc0 L_t1")
            A(opl)
            A("L_t1:")
        if tout:
            A("s_cmp_lt_u32 s%d, 96\ns_cbranch_scc1 L_t3\ns_lshl_b32 s63, s%d, 10\ns_sub_u32 s64, s%d, 96\ns_lshr_b32 s64, s64, 2\ns_lshl_b32 s64, s64, 7\ns_add_u32 s63, s63, s64\nv_mov_b32 v12, s63" % (sRID, sB, sRID))
            only_wave(4, "L_t3")
            A("global_load_dword v%d, v12, s[24:25]\nL_t3:" % (T + 21))
        if touch & 2:
            A("s_cmp_lt_u32 s%d, 96\ns_cbranch_scc1 L_t2" % sRID)
            A("v_lshrrev_b32 v12, 2, v%d\nv_lshlrev_b32 v12, 11, v12\nv_and_b32 v13, 3, v%d\nv_lshl_add_u32 v12, v13, 4, v12" % (vL, vL))
            A("s_lshl_b32 s64, s%d, 7\ns_and_b32 s63, s3, 3\ns_lshl_b32 s63, s63, 5\ns_add_u32 s64, s64, s63\ns_lshl_b32 s64, s64, 11\ns_sub_u32 s63, s%d, 96\ns_lshl_b32 s63, s63, 6\ns_add_u32 s64, s64, s63\ns_add_u32 s64, s64, %d\ns_add_u32 s63, s64, 32768" % (sB, sRID, WS_YP))
            A("buffer_load_dwordx4 v[%d:%d], v12, %s, s64 offen %s\nbuffer_load_dwordx4 v[%d:%d], v12, %s, s63 offen %s" % (T + 20, T + 23, WS, ldpol, T + 20, T + 23, WS, ldpol))
            A("L_t2:")
    A("s_cmp_ge_u32 s3, 6\ns_cselect_b32 s60, %d, %d" % (0 if preG else 1, 0 if preP else 1))
    if preG or preP:
        A("s_cmp_eq_u32 s60, 1\ns_cbranch_scc1 L_nopre")
        await_lds(LDS_C + 12, pe, nap)
        load_wd(0); load_wd(1)
        for a in range(4): load_wo(a)
        A("L_nopre:")
    A("s_waitcnt lgkmcnt(0)\ns_barrier")
    ST("B5")
    x = lambda k: T + k
    A("s_cmp_ge_u32 s3, 6\ns_cbranch_scc0 L_pub")
    A(opl)
    A("s_branch L_join\nL_pub:")
    A("ds_read_b128 v[%d:%d], v14 offset:%d" % (x(16), x(19), LDS_F))
    for w in range(4):
        A("ds_read_b128 v[%d:%d], v11 offset:%d" % (x(4 * w), x(4 * w + 3), LDS_O + w * WVS))
    for w in range(4):
        A("s_waitcnt lgkmcnt(%d)" % (3 - w))
        for j in (0, 2):
            sel = "op_sel:[0,%d,0] op_sel_hi:[1,%d,1]" % (w & 1, w & 1)
            if w == 0: A("v_pk_mul_f32 v[%d:%d], v[%d:%d], v[%d:%d] op_sel:[0,0] op_sel_hi:[1,0]" % (x(j), x(j + 1), x(j), x(j + 1), x(16), x(17)))
            else: A("v_pk_fma_f32 v[%d:%d], v[%d:%d], v[%d:%d], v[%d:%d] %s" % (x(j), x(j + 1), x(4 * w + j), x(4 * w + j + 1), x(16 + (w & 2)), x(17 + (w & 2)), x(j), x(j + 1), sel))
    A("v_cvt_pk_bf16_f32 v%d, v%d, v%d\nv_cvt_pk_bf16_f32 v%d, v%d, v%d" % (PUB, x(0), x(1), PUB + 2, x(2), x(3)))
    A("buffer_store_dwordx4 v[%d:%d], v%d, %s, s99 offen %s" % (PUB, PUB + 3, vVO, WS, stpol))

    A("L_join:")
    ST("pubO")
    if b5b: A("s_barrier")
    A("s_cmp_eq_u32 s60, 0\ns_cbranch_scc1 L_nopost")
    load_wd(0); load_wd(1)
    for a in range(4): load_wo(a)
    A("L_nopost:")
    A("v_lshlrev_b32 v13, 3, v9\nds_read_b64 v[%d:%d], v13 offset:%d" % (vHH, vHH + 1, LDS_H))
    A("v_lshlrev_b32 v13, 4, v9")
    A("v_and_b32 v12, 7, v%d\nv_lshrrev_b32 v80, 4, v%d" % (vL, vL))
    A("v_lshlrev_b32 v14, 4, v12\nv_lshrrev_b32 v81, 1, v80\nv_lshl_add_u32 v14, v81, 7, v14")
    A("s_lshl_b32 s99, s%d, 11\ns_lshl_b32 s63, s3, 8\ns_add_u32 s99, s99, s63\ns_add_u32 s99, s99, %d" % (sSLOT, WS_YP))
    A("v_and_b32 v11, 1, v12\nv_lshlrev_b32 v11, 6, v11\nv_lshl_add_u32 v11, v80, 4, v11\nv_lshrrev_b32 v12, 1, v12\nv_lshl_add_u32 v11, v12, 2, v11\ns_and_b32 s63, s3, 1\ns_lshl_b32 s63, s63, 7\nv_add_u32 v11, s63, v11")
    A("s_waitcnt vmcnt(4)\ns_cmp_eq_u32 s60, 1\ns_cbranch_scc1 L_wd\ns_waitcnt vmcnt(1)\nL_wd:")
    A("s_waitcnt lgkmcnt(0)")
    for a in range(2):
        for j in range(4):
            A("v_lshlrev_b32 v80, 16, v%d\nv_and_b32 v81, 0xffff0000, v%d" % (WDR + 4 * a + j, WDR + 4 * a + j))
            op = "v_mul_f32" if a == 0 else "v_fmac_f32"
            A("%s v%d, v%d, v80\n%s v%d, v%d, v81" % (op, YA + 2 * j, vHH + a, op, YA + 2 * j + 1, vHH + a))
    A("s_cmp_eq_u32 s60, 0\ns_cbranch_scc1 L_wo\ns_waitcnt vmcnt(0)\nL_wo:")
    for r in range(16):
        A("v_lshlrev_b32 v%d, 16, v%d\nv_and_b32 v%d, 0xffff0000, v%d" % (WOF + 2 * r, WOR + r, WOF + 2 * r + 1, WOR + r))
    def unpack4(b):
        A("v_lshlrev_b32 v%d, 16, v%d\nv_lshlrev_b32 v%d, 16, v%d\nv_and_b32 v%d, 0xffff0000, v%d\nv_and_b32 v%d, 0xffff0000, v%d\ns_nop 0" % (x(4), b, x(6), b + 2, x(5), b, x(7), b + 2))
    def mpoll(ns, sleep):
        if ns == 1:
            poll([opl], [x(1), x(3)], sleep, first=False); unpack4(x(0)); return
        base = [x(0)] + [x(8 + 4 * k) for k in range(ns - 1)]
        ld = lambda k: "buffer_load_dwordx4 v[%d:%d], v15, %s, s100 offen %s" % (base[k], base[k] + 3, WS, ldpol)
        pend = [34, 40, 42, 32][:ns]
        lo, fin = newlabel("mp"), newlabel("mf")
        A("s_waitcnt vmcnt(0)")
        cmpn([base[0] + 1, base[0] + 3])
        A("s_wqm_b64 exec, vcc\ns_cbranch_scc0 %s_0\ns_mov_b32 s62, 0" % fin)
        A("s_mov_b64 s[%d:%d], exec" % (pend[0], pend[0] + 1))
        A(ld(0))
        A("s_mov_b64 exec, -1")
        for k in range(1, ns):
            A("s_mov_b64 s[%d:%d], -1\ns_sleep %d" % (pend[k], pend[k] + 1, stag)); A(ld(k))
        A("%s:" % lo)
        for k in range(ns):
            A("s_mov_b64 exec, s[%d:%d]\ns_waitcnt vmcnt(%d)" % (pend[k], pend[k] + 1, ns - 1))
            cmpn([base[k] + 1, base[k] + 3])
            A("s_wqm_b64 exec, vcc\ns_cbranch_scc0 %s_%d" % (fin, k))
            A("s_mov_b64 s[%d:%d], exec" % (pend[k], pend[k] + 1))
            A(ld(k))
        A("s_add_u32 s62, s62, 1\ns_cmp_gt_u32 s62, %d\ns_cbranch_scc0 %s\ns_branch L_bail" % (spin, lo))
        for k in range(ns - 1, -1, -1):
            A("%s_%d:\ns_mov_b64 exec, -1" % (fin, k)); unpack4(base[k])
            if k: A("s_branch %s" % fin)
        A("%s:" % fin)
    def red4(steps):
        A("v_permlane32_swap_b32 v%d, v%d\nv_permlane32_swap_b32 v%d, v%d\nv_add_f32 v%d, v%d, v%d\nv_add_f32 v%d, v%d, v%d\ns_nop 1" % (x(4), x(6), x(5), x(7), x(4), x(4), x(6), x(5), x(5), x(7)))
        A("v_permlane16_swap_b32 v%d, v%d\nv_add_f32 v%d, v%d, v%d" % (x(4), x(5), x(4), x(4), x(5)))
        for c in steps:
            A("s_nop 1"); dpp("v_add_f32", x(4), x(4), x(4), c)
    A("s_cmp_lt_u32 s3, 6\ns_cbranch_scc1 L_nog2")
    mpoll(ns1, sleep1)
    red4(["row_ror:8"])
    A("ds_write_b32 v11, v%d offset:%d\ns_waitcnt lgkmcnt(0)" % (x(4), LDS_o))
    A("L_nog2:")
    ST("og")
    A("s_barrier")
    y = lambda k: T + 24 + k
    A("ds_read_b128 v[%d:%d], v13 offset:%d\nds_read_b128 v[%d:%d], v13 offset:%d" % (y(0), y(3), LDS_o, y(4), y(7), LDS_o + 128))
    A("s_waitcnt lgkmcnt(0)")
    A("v_pk_add_f32 v[%d:%d], v[%d:%d], v[%d:%d]\nv_pk_add_f32 v[%d:%d], v[%d:%d], v[%d:%d]" % (y(0), y(1), y(0), y(1), y(4), y(5), y(2), y(3), y(2), y(3), y(6), y(7)))
    for a in range(4):
        for j in range(0, 8, 2):
            lo = a & 1
            A("v_pk_fma_f32 v[%d:%d], v[%d:%d], v[%d:%d], v[%d:%d] op_sel:[0,%d,0] op_sel_hi:[1,%d,1]" % (YA + j, YA + j + 1, WOF + 8 * a + j, WOF + 8 * a + j + 1, y(a & 2), y((a & 2) + 1), YA + j, YA + j + 1, lo, lo))
    A("s_nop 1")
    for k in range(4): A("v_permlane32_swap_b32 v%d, v%d" % (YA + k, YA + k + 4))
    for k in range(4): A("v_add_f32 v%d, v%d, v%d" % (YA + k, YA + k, YA + k + 4))
    A("s_nop 0\nv_permlane16_swap_b32 v%d, v%d\nv_permlane16_swap_b32 v%d, v%d" % (YA, YA + 2, YA + 1, YA + 3))
    A("v_add_f32 v%d, v%d, v%d\nv_add_f32 v%d, v%d, v%d\ns_nop 0" % (YA, YA, YA + 2, YA + 1, YA + 1, YA + 3))
    dpp("v_add_f32", YA, YA, YA, "row_ror:8"); dpp("v_add_f32", YA + 1, YA + 1, YA + 1, "row_ror:8")
    A("v_cvt_pk_bf16_f32 v%d, v%d, v%d\nv_cvt_pk_bf16_f32 v%d, v%d, v%d\ns_nop 1\nv_permlane16_swap_b32 v%d, v%d" % (PUB + 2, YA, YA + 1, PUB, YA, YA + 1, PUB, PUB + 2))
    A("s_mov_b32 exec_lo, 0xff\ns_mov_b32 exec_hi, 0xff")
    A("buffer_store_dwordx4 v[%d:%d], v14, %s, s99 offen %s" % (PUB, PUB + 3, WS, stpol))
    A("s_mov_b64 exec, -1")
    ST("pubY")
    if nred == 64:
        A("s_cmp_lt_u32 s%d, 96\ns_cbranch_scc1 L_exit" % sRID)
        A("v_lshrrev_b32 v15, 2, v%d\nv_lshlrev_b32 v15, 11, v15\nv_and_b32 v9, 3, v%d\nv_lshl_add_u32 v15, v9, 4, v15" % (vL, vL))
        A("s_lshl_b32 s100, s%d, 7\ns_lshl_b32 s63, s3, 4\ns_add_u32 s100, s100, s63\ns_lshl_b32 s100, s100, 11\ns_sub_u32 s64, s%d, 96\ns_lshl_b32 s63, s64, 6\ns_add_u32 s100, s100, s63\ns_add_u32 s100, s100, %d" % (sB, sRID, WS_YP))
        A(opl)
        A("v_lshlrev_b32 v9, 4, v9\nv_lshrrev_b32 v10, 4, v%d\nv_lshl_add_u32 v9, v10, 2, v9\ns_lshl_b32 s63, s3, 6\nv_add_u32 v9, s63, v9" % vL)
        A("v_and_b32 v10, 7, v%d\nv_lshlrev_b32 v11, 3, v10\nv_lshrrev_b32 v12, 1, v10\nv_and_b32 v10, 1, v10\nv_lshlrev_b32 v10, 2, v10\nv_lshl_add_u32 v10, v12, 4, v10" % vL)
        A("s_lshl_b32 s63, s%d, 10\ns_lshr_b32 s65, s64, 2\ns_lshl_b32 s65, s65, 7\ns_add_u32 s63, s63, s65\ns_and_b32 s65, s64, 1\ns_lshl_b32 s65, s65, 6\ns_add_u32 s63, s63, s65\ns_and_b32 s65, s64, 2\ns_lshl_b32 s65, s65, 2\ns_add_u32 s63, s63, s65\nv_add_u32 v10, s63, v10" % sB)
        mpoll(ns2, sleep2)
        ST("yg")
        red4(["row_ror:4", "row_ror:8"])
        A("ds_write_b32 v9, v%d offset:%d\ns_waitcnt lgkmcnt(0)\ns_barrier" % (x(4), LDS_R))
        only_wave(0, "L_exit")
        for w in range(8):
            A("ds_read_b64 v[%d:%d], v11 offset:%d" % (64 + 2 * w, 65 + 2 * w, LDS_R + 64 * w))
        A("s_waitcnt lgkmcnt(4)\nv_pk_add_f32 v[64:65], v[64:65], v[66:67]\nv_pk_add_f32 v[68:69], v[68:69], v[70:71]\nv_pk_add_f32 v[64:65], v[64:65], v[68:69]")
        A("s_waitcnt lgkmcnt(0)\nv_pk_add_f32 v[72:73], v[72:73], v[74:75]\nv_pk_add_f32 v[76:77], v[76:77], v[78:79]\nv_pk_add_f32 v[72:73], v[72:73], v[76:77]\nv_pk_add_f32 v[64:65], v[64:65], v[72:73]")
        A("s_mov_b64 exec, 0xff\nv_cvt_pk_bf16_f32 v64, v64, v65")
    else:
        A("s_cmp_lt_u32 s%d, 112\ns_cbranch_scc1 L_exit" % sRID)
        A("v_lshrrev_b32 v15, 3, v%d\nv_lshlrev_b32 v15, 11, v15\nv_and_b32 v9, 7, v%d\nv_lshl_add_u32 v15, v9, 4, v15" % (vL, vL))
        A("s_lshl_b32 s100, s%d, 7\ns_lshl_b32 s63, s3, 4\ns_add_u32 s100, s100, s63\ns_lshl_b32 s100, s100, 11\ns_sub_u32 s64, s%d, 112\ns_lshl_b32 s63, s64, 7\ns_add_u32 s100, s100, s63\ns_add_u32 s100, s100, %d\ns_add_u32 s99, s100, 16384" % (sB, sRID, WS_YP))
        fl = [opl, "buffer_load_dwordx4 v[%d:%d], v15, %s, s99 offen %s" % (x(8), x(11), WS, ldpol)]
        A(fl[0]); A(fl[1])
        A("v_lshlrev_b32 v9, 4, v9\nv_lshrrev_b32 v10, 4, v%d\nv_lshl_add_u32 v9, v10, 2, v9\ns_lshl_b32 s63, s3, 7\nv_add_u32 v9, s63, v9" % vL)
        A("v_and_b32 v10, 15, v%d\nv_lshlrev_b32 v11, 3, v10\nv_lshrrev_b32 v12, 1, v10\nv_and_b32 v10, 1, v10\nv_lshlrev_b32 v10, 2, v10\nv_lshl_add_u32 v10, v12, 4, v10" % vL)
        A("s_lshl_b32 s63, s%d, 10\ns_lshr_b32 s65, s64, 1\ns_lshl_b32 s65, s65, 7\ns_add_u32 s63, s63, s65\ns_and_b32 s65, s64, 1\ns_lshl_b32 s65, s65, 3\ns_add_u32 s63, s63, s65\nv_add_u32 v10, s63, v10" % sB)
        poll(fl, [x(1), x(3), x(9), x(11)], sleep2, first=False)
        ST("yg")
        A("v_lshlrev_b32 v%d, 16, v%d\nv_lshlrev_b32 v%d, 16, v%d\nv_and_b32 v%d, 0xffff0000, v%d\nv_and_b32 v%d, 0xffff0000, v%d" % (x(12), x(8), x(14), x(10), x(13), x(8), x(15), x(10)))
        unpack4(x(0))
        A("v_pk_add_f32 v[%d:%d], v[%d:%d], v[%d:%d]\nv_pk_add_f32 v[%d:%d], v[%d:%d], v[%d:%d]\ns_nop 1" % (x(4), x(5), x(4), x(5), x(12), x(13), x(6), x(7), x(6), x(7), x(14), x(15)))
        red4(["row_ror:8"])
        A("ds_write_b32 v9, v%d offset:%d\ns_waitcnt lgkmcnt(0)\ns_barrier" % (x(4), LDS_A))
        only_wave(0, "L_exit")
        for w in range(8):
            A("ds_read_b64 v[%d:%d], v11 offset:%d" % (64 + 2 * w, 65 + 2 * w, LDS_A + 128 * w))
        A("s_waitcnt lgkmcnt(4)\nv_pk_add_f32 v[64:65], v[64:65], v[66:67]\nv_pk_add_f32 v[68:69], v[68:69], v[70:71]\nv_pk_add_f32 v[64:65], v[64:65], v[68:69]")
        A("s_waitcnt lgkmcnt(0)\nv_pk_add_f32 v[72:73], v[72:73], v[74:75]\nv_pk_add_f32 v[76:77], v[76:77], v[78:79]\nv_pk_add_f32 v[72:73], v[72:73], v[76:77]\nv_pk_add_f32 v[64:65], v[64:65], v[72:73]")
        A("s_mov_b64 exec, 0xffff\nv_cvt_pk_bf16_f32 v64, v64, v65")
    A("global_store_dword v10, v64, s[24:25] %s" % outpol)
    A("s_mov_b64 exec, -1")
    A("L_exit:")
    if gprobe:
        name, ref = gprobe
        only_wave(0, "L_gp1")
        ST("end")
        A("s_waitcnt lgkmcnt(0)\ns_lshl_b32 s63, s2, 7\ns_add_u32 s63, s63, %d\nv_mov_b32 v20, s70\nv_mov_b32 v21, s%d\nv_mov_b32 v22, s%d\nv_mov_b32 v23, s%d\nv_mov_b32 v24, 0" % (WS_MK, sTAG, stn[name], sTAG))
        A("s_mov_b64 exec, 1\nbuffer_store_dwordx4 v[20:23], v24, %s, s63 offen sc1\ns_mov_b64 exec, -1" % WS)
        A("L_gp1:")
        only_wave(7, "L_gp2")
        A("s_cmp_lg_u32 s2, 0\ns_cbranch_scc1 L_gp2")
        A("L_gpw:\ns_sleep 16\ns_memrealtime s[64:65]\ns_waitcnt lgkmcnt(0)\ns_sub_u32 s64, s64, s70\ns_cmp_lt_u32 s64, 3500\ns_cbranch_scc1 L_gpw")
        A("v_lshlrev_b32 v48, 9, v%d\ns_mov_b32 s64, %d" % (vL, WS_MK))
        poll(["buffer_load_dwordx4 v[%d:%d], v48, %s, s64 offen offset:%d sc1" % (32 + 4 * a, 35 + 4 * a, WS, 128 * a) for a in range(4)], [33 + 2 * a for a in range(8)], 8)
        for a in range(8): A("v_subrev_u32 v%d, s70, v%d" % (32 + 2 * a, 32 + 2 * a))
        op0 = "v_max_i32" if ref == "late" else "v_min_i32"
        A("%s v50, v32, v36\n%s v51, v40, v44\n%s v50, v50, v51\nv_max_i32 v52, v34, v38\nv_max_i32 v51, v42, v46\nv_max_i32 v52, v52, v51\ns_nop 1" % (op0, op0, op0))
        for r, op in ((50, op0), (52, "v_max_i32")):
            for c in ("quad_perm:[1,0,3,2]", "quad_perm:[2,3,0,1]", "row_half_mirror", "row_mirror"):
                dpp(op, r, r, r, c); A("s_nop 1")
            xrows(op, r, 54)
        A("v_sub_u32 v52, v52, v50\ns_nop 0\nv_readfirstlane_b32 s63, v52\ns_sub_u32 s63, s63, %d\ns_max_i32 s63, s63, 0\ns_mul_i32 s63, s63, 10\ns_add_u32 s63, s63, 6000" % aoff)
        A("L_gpl:\ns_sleep 4\ns_memrealtime s[64:65]\ns_waitcnt lgkmcnt(0)\ns_sub_u32 s64, s64, s70\ns_cmp_lt_u32 s64, s63\ns_cbranch_scc1 L_gpl")
        A("L_gp2:")
    if skewprobe:
        only_wave(7, "L_sk1")
        A("s_waitcnt lgkmcnt(0)\ns_lshl_b32 s63, s2, 7\ns_add_u32 s63, s63, %d\nv_mov_b32 v20, s70\nv_mov_b32 v21, s%d\nv_mov_b32 v22, 0" % (WS_MK, sTAG))
        A("s_mov_b64 exec, 1\nbuffer_store_dwordx2 v[20:21], v22, %s, s63 offen sc1\ns_mov_b64 exec, -1" % WS)
        A("s_cmp_lg_u32 s2, 255\ns_cbranch_scc1 L_sk1")
        A("v_lshlrev_b32 v48, 9, v%d\ns_mov_b32 s64, %d" % (vL, WS_MK))
        poll(["buffer_load_dwordx2 v[%d:%d], v48, %s, s64 offen offset:%d sc1" % (32 + 2 * a, 33 + 2 * a, WS, 128 * a) for a in range(4)], [33, 35, 37, 39], 8)
        for a in range(4): A("v_subrev_u32 v%d, s70, v%d" % (32 + 2 * a, 32 + 2 * a))
        A("v_min_i32 v40, v32, v34\nv_min_i32 v41, v36, v38\nv_min_i32 v40, v40, v41\nv_max_i32 v42, v32, v34\nv_max_i32 v41, v36, v38\nv_max_i32 v42, v42, v41\ns_nop 1")
        for r, op in ((40, "v_min_i32"), (42, "v_max_i32")):
            for c in ("quad_perm:[1,0,3,2]", "quad_perm:[2,3,0,1]", "row_half_mirror", "row_mirror"):
                dpp(op, r, r, r, c); A("s_nop 1")
            xrows(op, r, 44)
        A("v_sub_u32 v42, v42, v40\ns_nop 0\nv_readfirstlane_b32 s63, v42\nv_readfirstlane_b32 s62, v40\ns_mul_i32 s63, s63, %d\ns_add_u32 s63, s63, 6000\ns_add_u32 s63, s63, s62" % (skewprobe - 1))
        A("L_skl:\ns_sleep 4\ns_memrealtime s[64:65]\ns_waitcnt lgkmcnt(0)\ns_sub_u32 s64, s64, s70\ns_cmp_lt_u32 s64, s63\ns_cbranch_scc1 L_skl")
        A("L_sk1:")
    if probe:
        ST("end")
        name, sign, waves = probe
        A("s_waitcnt lgkmcnt(0)")
        A("s_lshl_b32 s63, 1, s3\ns_and_b32 s63, s63, %d\ns_cbranch_scc0 L_pe" % waves)
        A("s_and_b32 s63, s2, 7\ns_lshl_b32 s63, 1, s63\ns_and_b32 s63, s63, %d\ns_cbranch_scc0 L_pe" % pslot)
        if prow is not None: A("s_lshr_b32 s63, s2, 3\ns_cmp_lg_u32 s63, %d\ns_cbranch_scc1 L_pe" % prow)
        if name == "W": A("s_cmp_ge_u32 s%d, 120\ns_cbranch_scc1 L_pe" % sTILE)
        if name == "yg": A("s_cmp_lt_u32 s%d, 96\ns_cbranch_scc1 L_pe" % sRID)
        A("s_sub_u32 s63, s%d, s70" % stn[name])
        if amp > 1: A("s_sub_u32 s63, s63, %d\ns_max_i32 s63, s63, 0\ns_mul_i32 s63, s63, %d" % (aoff, amp))
        if sign < 0: A("s_sub_u32 s63, 4000, s63")
        A("s_add_u32 s63, s63, %d" % pbase)
        A("L_pl:\ns_sleep 4\ns_memrealtime s[64:65]\ns_waitcnt lgkmcnt(0)\ns_sub_u32 s64, s64, s70\ns_cmp_lt_u32 s64, s63\ns_cbranch_scc1 L_pl")
        A("L_pe:")
    if stamp:
        ST("end")
        A("s_waitcnt lgkmcnt(0)")
        A("s_lshl_b32 s63, s2, 3\ns_add_u32 s63, s63, s3\ns_lshl_b32 s63, s63, 6\ns_add_u32 s63, s63, %d\nv_mov_b32 v9, 0" % WS_STAMP)
        for i in range(0, 16, 4):
            for j in range(4):
                A("v_mov_b32 v%d, s%d" % (20 + j, 70 + 2 * (i + j)) if i + j < len(names) else "v_mov_b32 v%d, s71" % (20 + j))
            A("buffer_store_dwordx4 v[20:23], v9, %s, s63 offen offset:%d\ns_nop 1" % (WS, 4 * i))
    A("s_endpgm")
    A("L_bail:")
    A("s_mov_b64 exec, 1\nv_mov_b32 v9, 0\nv_mov_b32 v10, 0xdead\nglobal_store_dword v9, v10, s[26:27]")
    A("L_end:\ns_endpgm")
    L.append('.section .rodata,"a"\n.p2align 6\n.amdhsa_kernel %s_kernel' % NAME)
    L.append("  .amdhsa_next_free_vgpr 256\n  .amdhsa_next_free_sgpr 102\n  .amdhsa_accum_offset 256\n  .amdhsa_group_segment_fixed_size 0\n  .amdhsa_kernarg_size 104\n  .amdhsa_user_sgpr_count 2\n  .amdhsa_user_sgpr_kernarg_segment_ptr 1\n  .amdhsa_system_sgpr_workgroup_id_x 1\n.end_amdhsa_kernel")
    if now2:
        L[:] = [ln for ln in L if not (ln.strip().startswith("buffer_load") and ("s[48:51]" in ln or "s[52:55]" in ln))]
    if noside:
        out = []; inh = False
        for i, ln in enumerate(L):
            if ln == "L_helper:": inh = True
            if ln == "L_noep:": inh = False
            if inh:
                t = ln.strip()
                if t.startswith("buffer_store") and "s" in noside: continue
                if t.startswith("buffer_load") and "l" in noside: continue
                if t.startswith("global_load") and "x" in noside: continue
                if t.startswith("s_wqm_b64 exec, vcc"): ln = "    s_and_b64 vcc, 0, 0"
            out.append(ln)
        L[:] = out
    return "\n".join(L) + "\n"
```

```python
import sys, struct
NAME = "gated_mix__gqa_block_cached__glu_gated_glu__decode"
def f2u(x): return struct.unpack("<I", struct.pack("<f", x))[0]
LOG2E = 1.4426950408889634

WS_EPOCH = 0
WS_QG = 0x1000
WS_ML = 0x20000
WS_OP = 0x40000
WS_YP = 0xC0000
WS_MK = 0x140000
WS_STAMP = 0x400000
WS_USED = 0x180000
LDS_A = 0
LDS_Q = 4096
LDS_M = 5120
LDS_L = 5184
LDS_F = 5248
LDS_H = 5312
LDS_C = 5376
LDS_o = 5632
LDS_R = 5888
HFS = 1152
WVS = 2304
LDS_O = 6400
LDS_K = LDS_O + 4 * WVS
assert LDS_K % 256 == 0
LDS_END = LDS_K + 4 * 12288

class VM:
    def __init__(self): self.ops = []
    def issue(self, name, counted=True, w=None): self.ops.append((name, counted, (1.0 if counted else None) if w is None else w))
    def after(self, name):
        idx = max(i for i, (n, c, w) in enumerate(self.ops) if n == name)
        return sum(1 for n, c, w in self.ops[idx + 1:] if c)
    def pace_n(self, room):
        n = 0; tot = 0.0
        for name, c, w in reversed(self.ops):
            if w is None: continue
            if tot + w > room: return n, True
            tot += w; n += 1
        return n, False

def gen(d=5, dpat=None, d0=None, pol="nt", kpol=None, wpol="nt", w2pol="", stamp=False,
        p1=22, p2=100, pe=123, qk_at=37, outpol="", stpol="sc1", ldpol="sc1", spin=200000, header=None, probe=None, pbase=6000,
        sleep1=0, sleep2=0, nap=2, sprio=1, dend=None, lds_pad=0, adapt=None, db=7, alev=None, win=8, mkstr=7, npeer=16, adelay=True, aw=6, skewprobe=0, gprobe=None, pslot=255, prow=None, p0=None, thr=None, pm=16, pend=126, noside=None, pub4=True, ns1=1, ns2=1, stag=3, amp=1, aoff=2000, preG=True, preP=False, b5b=True, ssl=0, now2=False, touch=0, pt=116, tx=1, tpol="", tearly=False, tout=False, par=0, dodd=None, nred=64, plate=0, pbase0=0, tlb=0, xmap=False, lateg=0, stlb=0, pstl=12, cpre=0, estamp=None, ld2pol=None, st2pol=None, warm=0, ystamp=False, ypre=0, y32=True):
    if kpol is None: kpol = pol
    if d0 is None: d0 = d
    if ld2pol is None: ld2pol = ldpol
    if st2pol is None: st2pol = stpol
    L = []
    def A(s):
        for line in s.strip("\n").split("\n"):
            t = line.strip()
            L.append(t if t.endswith(":") else "    " + t)
    vm = VM()
    diag = stamp or probe or skewprobe or gprobe
    names = ["start", "W", "pubA", "qw", "q", "exp", "pubML", "V7", "B5", "pubO", "og", "pubY", "yg", "end"]
    stn = {n: 70 + 2 * i for i, n in enumerate(names)}
    def ST(name):
        if diag and (not gprobe or name in ("start", "end", gprobe[0])): A("s_memrealtime s[%d:%d]" % (stn[name], stn[name] + 1))
    def wait(name, extra=0):
        n = vm.after(name) + extra
        assert n <= 63
        A("s_waitcnt vmcnt(%d)" % n)
    npace = [0]; amode = [False]
    def pace(dd=None, w=1.0):
        if dodd and dd is None:
            de = dpat[npace[0] % len(dpat)] if dpat else d
            do = dodd[npace[0] % len(dodd)]
            npace[0] += 1
            (ne, need_e), (no, need_o) = vm.pace_n(de - w), vm.pace_n(do - w)
            if max(ne, no) != min(ne, no):
                l1 = newlabel("pc")
                if need_e and need_o: A("s_waitcnt vmcnt(%d)" % max(ne, no))
                A("s_cbranch_%s %s\ns_waitcnt vmcnt(%d)\n%s:" % ("vccnz" if ne < no else "vccz", l1, min(ne, no), l1))
            elif need_e: A("s_waitcnt vmcnt(%d)" % ne)
            return
        if amode[0] and dd is None:
            l1 = newlabel("pc")
            dd = dpat[npace[0] % len(dpat)] if dpat else d
            npace[0] += 1
            A("s_waitcnt vmcnt(%d)\ns_cbranch_vccnz %s\ns_waitcnt vmcnt(%d)\n%s:" % (vm.pace_n(db - w)[0], l1, vm.pace_n(dd - w)[0], l1))
            return
        if dd is None:
            dd = dpat[npace[0] % len(dpat)] if dpat else d
            npace[0] += 1
        n, need = vm.pace_n(dd - w)
        if need: A("s_waitcnt vmcnt(%d)" % n)
    lab = [0]
    def newlabel(p):
        lab[0] += 1; return "L_%s%d" % (p, lab[0])

    vL, vVO, vSP, vG = 1, 3, 4, 8
    Q0, O0, AX0, S0 = 16, 16, 24, 32
    vKS, vKR = 88, 92
    YA, PUB, vWO, vWD2, vHH = 64, 72, 76, 77, 78
    WOR, WDR, T = 128, 160, 192
    def buf(i): return 96 + 16 * (i % 10)
    def Kreg(t): return buf(t)
    def Vreg(t): return buf(t + 6)
    sK, sV, sW, sWS, sWO, sWD = 32, 36, 40, 44, 48, 52
    sB, sREST, sTAG, sSTR = 30, 31, 56, 58
    sKO, sVO, sSLOT, sM0 = 66, 67, 59, 101
    sTILE, sRID = (57, 61) if xmap else (sREST, sREST)
    WS = "s[%d:%d]" % (sWS, sWS + 3)
    tstep = 4 * 4096

    def dpp(op, dst, a, b, ctrl):
        A("%s_dpp v%d, v%d, v%d %s row_mask:0xf bank_mask:0xf" % (op, dst, a, b, ctrl))
    def xrows(op, x, t):
        A("v_mov_b32 v%d, v%d\ns_nop 1\nv_permlane16_swap_b32 v%d, v%d\n%s v%d, v%d, v%d" % (t, x, t, x, op, x, t, x))
        A("v_mov_b32 v%d, v%d\ns_nop 1\nv_permlane32_swap_b32 v%d, v%d\n%s v%d, v%d, v%d" % (t, x, t, x, op, x, t, x))
    def cmpn(tagregs):
        A("v_cmp_ne_u32 vcc, s%d, v%d" % (sTAG, tagregs[0]))
        for r in tagregs[1:]:
            A("v_cmp_ne_u32 s[68:69], s%d, v%d\ns_or_b64 vcc, vcc, s[68:69]" % (sTAG, r))
    def poll(loads, tagregs, sleep=0, first=True):
        lo, lc = newlabel("spin"), newlabel("chk")
        A("s_mov_b32 s62, 0")
        if not first: A("s_branch %s" % lc)
        elif sleep: A("s_branch %s_n" % lo)
        A("%s:" % lo)
        if sleep: A("s_sleep %d\n%s_n:" % (sleep, lo))
        for s in loads: A(s)
        A("s_add_u32 s62, s62, 1\ns_cmp_gt_u32 s62, %d\ns_cbranch_scc1 L_bail" % spin)
        A("%s:" % lc)
        A("s_waitcnt vmcnt(0)")
        cmpn(tagregs)
        A("s_wqm_b64 exec, vcc\ns_cbranch_scc1 %s" % lo)
        A("s_mov_b64 exec, -1")
    def bump(off):
        A("v_mov_b32 v12, 0\nv_mov_b32 v13, 1\ns_mov_b64 exec, 1\nds_add_u32 v12, v13 offset:%d\ns_mov_b64 exec, -1" % off)
    def await_lds(off, val, sleep):
        lo = newlabel("lw")
        A("v_mov_b32 v12, 0\ns_mov_b32 s62, 0\ns_branch %s_n\n%s:" % (lo, lo))
        if sleep: A("s_sleep %d" % sleep)
        A("%s_n:\nds_read_b32 v13, v12 offset:%d\ns_add_u32 s62, s62, 1\ns_cmp_gt_u32 s62, %d\ns_cbranch_scc1 L_bail" % (lo, off, spin * 8))
        A("s_waitcnt lgkmcnt(0)\nv_readfirstlane_b32 s63, v13\ns_cmp_lt_u32 s63, %d\ns_cbranch_scc1 %s" % (val, lo))
    def only_wave(w, skip): A("s_cmp_lg_u32 s3, %d\ns_cbranch_scc1 %s" % (w, skip))

    def srds2():
        A("s_mov_b32 s%d, s28\ns_mov_b32 s%d, s29\ns_mov_b32 s%d, %d\ns_mov_b32 s%d, 0x20000" % (sWS, sWS + 1, sWS + 2, 0x500000 if stamp else WS_USED, sWS + 3))
        A("s_mov_b32 s%d, s12\ns_mov_b32 s%d, s13\ns_mov_b32 s%d, 0x400000\ns_mov_b32 s%d, 0x20000" % (sWO, sWO + 1, sWO + 2, sWO + 3))
        A("s_mov_b32 s%d, s20\ns_mov_b32 s%d, s21\ns_mov_b32 s%d, 1835008\ns_mov_b32 s%d, 0x20000" % (sWD, sWD + 1, sWD + 2, sWD + 3))
    def tag():
        A("s_waitcnt lgkmcnt(0)")
        A("s_mul_i32 s%d, s%d, 0x9e3779b5\ns_add_u32 s%d, s%d, 0x7f4a7c15" % (sTAG, sTAG, sTAG, sTAG))
    def w2_prep():
        A("v_lshlrev_b32 v%d, 4, v11\nv_lshl_add_u32 v%d, v10, 10, v%d" % (vWO, vWO, vWO))
        A("v_cmp_gt_u32 s[68:69], 2, v10\nv_mov_b32 v13, 0x10000000\ns_mul_i32 s58, s%d, %d\ns_lshl_b32 s64, s3, 8\ns_add_u32 s58, s58, s64" % (sREST, 14 * 1024))
        A("v_cndmask_b32 v%d, v13, v%d, s[68:69]\ns_lshl_b32 s57, s%d, 15\ns_add_u32 s57, s57, s64" % (vWD2, vWO, sREST))
    def load_wo(a):
        A("buffer_load_dwordx4 v[%d:%d], v%d, s[%d:%d], s57 offen %s" % (WOR + 4 * a, WOR + 4 * a + 3, vWO, sWO, sWO + 3, w2pol))
        if a < 7: A("s_add_u32 s57, s57, 4096")
    def load_wd(a):
        A("buffer_load_dwordx4 v[%d:%d], v%d, s[%d:%d], s58 offen %s" % (WDR + 4 * a, WDR + 4 * a + 3, vWD2 if a == 3 else vWO, sWD, sWD + 3, w2pol))
        if a < 3: A("s_add_u32 s58, s58, 4096")

    L.append((header or "") + "; @launch grid=(256,1,1) block=(512,1,1) lds=%d" % (LDS_END + lds_pad))
    if stamp: L.append("; stamps: " + " ".join(names))
    L.append('.amdgcn_target "amdgcn-amd-amdhsa--gfx950"\n.text\n.globl %s_kernel\n.p2align 8\n.type %s_kernel,@function\n%s_kernel:' % (NAME, NAME, NAME))
    A("s_cmp_ge_u32 s2, 256\ns_cbranch_scc1 L_end")
    A("s_load_dwordx16 s[4:19], s[0:1], 0\ns_load_dwordx8 s[20:27], s[0:1], 64\ns_load_dwordx2 s[28:29], s[0:1], 96")
    ST("start")
    A("v_lshrrev_b32 v9, 6, v0\nv_and_b32 v%d, 63, v0\nv_readfirstlane_b32 s3, v9" % vL)
    A("s_bfe_u32 s%d, s2, 0x10003" % sB)
    A("s_and_b32 s%d, s2, 7\ns_lshr_b32 s63, s2, 4\ns_lshl_b32 s63, s63, 3\ns_or_b32 s%d, s%d, s63" % (sREST, sREST, sREST))
    if xmap: A("s_mov_b32 s%d, s%d" % (sRID, sREST))
    if xmap:
        A("s_and_b32 s64, s2, 7\ns_lshr_b32 s63, s2, 4\ns_lshl_b32 s%d, s64, 4\ns_or_b32 s%d, s%d, s63" % (sREST, sREST, sREST))
        A("s_sub_u32 s%d, s%d, s64\ns_cmp_eq_u32 s63, 15\ns_cselect_b32 s%d, 127, s%d" % (sTILE, sREST, sTILE, sTILE))
    A("s_lshl_b32 s%d, s%d, 7\ns_add_u32 s%d, s%d, s%d" % (sSLOT, sB, sSLOT, sSLOT, sREST))
    A("v_lshrrev_b32 v10, 4, v%d\nv_and_b32 v11, 15, v%d\nv_lshlrev_b32 v%d, 4, v%d" % (vL, vL, vVO, vL))
    A("s_cmp_ge_u32 s3, 4\ns_cbranch_scc1 L_helper")

    if sprio: A("s_setprio %d" % sprio)
    A("v_lshlrev_b32 v12, 2, v10\nv_xor_b32 v12, v12, v11\nv_lshlrev_b32 v12, 4, v12\nv_lshl_add_u32 v%d, v10, 8, v12" % vKS)
    for i in range(1, 4): A("v_xor_b32 v%d, %d, v%d" % (vKS + i, 16 * i, vKS))
    A("s_lshl_b32 s%d, s3, 12\ns_mov_b32 s%d, s%d" % (sKO, sVO, sKO))
    A("s_lshl_b32 s65, s%d, 18" % sSLOT)
    A("s_mul_i32 s%d, s3, 12288\ns_add_u32 s%d, s%d, %d" % (sM0, sM0, sM0, LDS_K))
    A("s_movk_i32 s%d, 3584\ns_cmp_lt_u32 s%d, 64\ns_cselect_b32 s%d, 8192, s%d" % (sSTR, sTILE, sSTR, sSTR))
    A("s_lshl_b32 s63, s%d, 4\nv_mul_u32_u24 v12, s63, v10\nv_lshl_add_u32 v12, v11, 3, v12" % sSTR)
    A("s_lshl_b32 s62, s%d, 2\ns_add_u32 s62, s62, s3\ns_lshl_b32 s62, s62, 6" % sB)
    A("v_bfe_u32 v13, v11, 2, 1\nv_lshlrev_b32 v13, 10, v13\nv_lshl_add_u32 v13, v10, 5, v13\ns_lshl_b32 s63, s62, 1\nv_add_u32 v13, s63, v13")
    A("s_mul_i32 s63, s62, s%d" % sSTR)
    A("s_sub_u32 s64, s%d, 64\ns_cmp_lt_u32 s%d, 64\ns_cselect_b32 s64, s%d, s64\ns_sub_u32 s62, s%d, 92\ns_cmp_ge_u32 s%d, 92\ns_cselect_b32 s64, s62, s64\ns_lshl_b32 s64, s64, 7" % (sTILE, sTILE, sTILE, sTILE, sTILE))
    A("s_mul_i32 s%d, s%d, 511\ns_add_u32 s%d, s%d, 128\ns_mov_b32 s%d, 0x20000" % (sW + 2, sSTR, sW + 2, sW + 2, sW + 3))
    A("s_mov_b32 s%d, 0x40000\ns_mov_b32 s%d, 0x20000" % (sK + 2, sK + 3))
    A("s_waitcnt lgkmcnt(0)")
    if estamp == "karg": ST("q")
    A("s_add_u32 s%d, s6, s65\ns_addc_u32 s%d, s7, 0" % (sK, sK + 1))
    A("s_cmp_ge_u32 s%d, 120\ns_cbranch_scc1 L_noA1" % sTILE)
    A("s_cmp_lt_u32 s%d, 64\ns_cselect_b32 s%d, s10, s16\ns_cselect_b32 s%d, s11, s17" % (sTILE, sW, sW + 1))
    A("s_cmp_ge_u32 s%d, 92\ns_cselect_b32 s%d, s18, s%d\ns_cselect_b32 s%d, s19, s%d" % (sTILE, sW, sW, sW + 1, sW + 1))
    A("s_add_u32 s%d, s%d, s64\ns_addc_u32 s%d, s%d, 0" % (sW, sW, sW + 1, sW + 1))
    A("global_load_dwordx4 v[64:67], v13, s[4:5]\nglobal_load_dwordx4 v[68:71], v13, s[4:5] offset:16")
    if estamp == "x": A("s_waitcnt vmcnt(0)"); ST("q")
    vm.issue("X", False); vm.issue("X", False)
    for q in range(16):
        pace(d0, 0.5)
        A("buffer_load_dwordx2 v[%d:%d], v12, s[%d:%d], s63 offen %s" % (32 + 2 * q, 33 + 2 * q, sW, sW + 3, wpol))
        vm.issue("W%d" % q, False, 0.5)
        if q < 15: A("s_add_u32 s63, s63, s%d" % sSTR)
    A("L_noA1:")
    if estamp == "x": A("s_cmp_lt_u32 s%d, 120\ns_cbranch_scc1 L_es1" % sTILE); ST("q"); A("L_es1:")
    if estamp == "w": ST("q")
    slots = {}
    def at(i, f): slots.setdefault(i, []).append(f)
    def loadK(t, i):
        if i == 0:
            A("s_add_u32 s63, s%d, %d\ns_mov_b32 m0, s63" % (sM0, (t % 3) * 4096))
            A("s_waitcnt lgkmcnt(0)" if t >= 3 else "s_nop 0")
        A("buffer_load_dwordx4 v%d, s[%d:%d], s%d offen offset:%d %s lds" % (vKS + i, sK, sK + 3, sKO, 1024 * i, kpol))
        vm.issue("K%d" % t)
        if i == 3 and t < 15: A("s_add_u32 s%d, s%d, %d" % (sKO, sKO, tstep))
    def readK(t):
        wait("K%d" % t)
        for i in range(4):
            A("ds_read_b128 v[%d:%d], v%d offset:%d" % (Kreg(t) + 4 * i, Kreg(t) + 4 * i + 3, vKR + i, (t % 3) * 4096))
    def loadV(t, i):
        A("buffer_load_dwordx4 v[%d:%d], v%d, s[%d:%d], s%d offen offset:%d %s" % (Vreg(t) + 4 * i, Vreg(t) + 4 * i + 3, vVO, sV, sV + 3, sVO, 1024 * i, pol))
        vm.issue("V%d.%d" % (t, i))
        if i == 3 and t < 15: A("s_add_u32 s%d, s%d, %d" % (sVO, sVO, tstep))
    def setup2():
        A("s_load_dword s%d, s[28:29], %d" % (sTAG, WS_EPOCH))
        A("s_barrier")
        A("s_add_u32 s%d, s8, s65\ns_addc_u32 s%d, s9, 0\ns_mov_b32 s%d, 0x40000\ns_mov_b32 s%d, 0x20000" % (sV, sV + 1, sV + 2, sV + 3))
        A("v_and_b32 v9, 1, v%d\nv_cmp_eq_u32 vcc, 1, v9\nv_mov_b32 v12, 0x0c0c0100\nv_mov_b32 v9, 0x01000c0c\nv_mov_b32 v13, 0x0c0c0302\nv_mov_b32 v15, 0x03020c0c" % vL)
        A("v_cndmask_b32 v12, v12, v9, vcc\nv_cndmask_b32 v13, v13, v15, vcc")
        A("v_and_b32 v9, 2, v%d\nv_cmp_eq_u32 vcc, 2, v9\nv_mov_b32 v15, 0x0c0c0c0c\ns_nop 0" % vL)
        A("v_cndmask_b32 v%d, v12, v15, vcc\nv_cndmask_b32 v%d, v15, v12, vcc\nv_cndmask_b32 v%d, v13, v15, vcc\nv_cndmask_b32 v%d, v15, v13, vcc" % (vSP, vSP + 1, vSP + 2, vSP + 3))
        A("v_and_b32 v12, 3, v11\nv_lshlrev_b32 v12, 10, v12\nv_lshrrev_b32 v13, 2, v11\nv_lshl_add_u32 v12, v13, 8, v12\nv_xor_b32 v13, v10, v11\nv_lshl_add_u32 v12, v13, 4, v12\nv_add_u32 v%d, s%d, v12" % (vKR, sM0))
        for i in range(1, 4): A("v_xor_b32 v%d, %d, v%d" % (vKR + i, 64 * i, vKR))
        if dodd: A("s_getreg_b32 s63, hwreg(HW_REG_XCC_ID, 0, 1)\ns_cmp_eq_u32 s63, 1\ns_cselect_b64 vcc, -1, 0")
    def phaseA(half):
        def f():
            l1 = newlabel("skipA")
            A("s_cmp_ge_u32 s%d, 120\ns_cbranch_scc1 %s" % (sTILE, l1))
            A("s_waitcnt vmcnt(%d)" % (vm.after("W15") + (8 if half == 0 else 0)))
            for u in range(8 * half, 8 * half + 8):
                for j2 in range(2):
                    A("v_perm_b32 v%d, v%d, v%d, v%d" % (96 + 2 * (u & 7) + j2, 64 + (u >> 1), 64 + (u >> 1), vSP + 2 * (u & 1) + j2))
            for u in range(8 * half, 8 * half + 8):
                A("v_mfma_f32_16x16x16_bf16 v[72:75], v[%d:%d], v[%d:%d], %s" % (96 + 2 * (u & 7), 97 + 2 * (u & 7), 32 + 2 * u, 33 + 2 * u, "0" if u == 0 else "v[72:75]"))
            if half == 1:
                ST("W")
                A("s_lshl_b32 s63, s3, 10\nv_add_u32 v9, s63, v%d\ns_nop 6" % vVO)
                A("ds_write_b128 v9, v[72:75] offset:%d" % LDS_A)
                bump(LDS_C)
            A("%s:" % l1)
        return f
    def progress(val):
        def f():
            l1 = newlabel("pg")
            only_wave(0, l1)
            A("v_mov_b32 v12, 0\nv_mov_b32 v13, %d\nds_write_b32 v12, v13 offset:%d" % (val, LDS_C + 12))
            A("%s:" % l1)
        return f
    def q_wait():
        ST("qw")
        A("v_lshrrev_b32 v9, 2, v11\nv_lshlrev_b32 v9, 8, v9\nv_lshl_add_u32 v9, v10, 4, v9")
        await_lds(LDS_C + 8, 4, 0)
        for i in range(4):
            A("ds_read_b128 v[%d:%d], v9 offset:%d" % (Q0 + 4 * i, Q0 + 4 * i + 3, LDS_Q + 64 * i))
    def qk(ts):
        def f():
            A("s_waitcnt lgkmcnt(0)")
            for t in ts:
                for i in range(4):
                    A("v_mfma_f32_16x16x32_bf16 v[%d:%d], v[%d:%d], v[%d:%d], %s" % (S0 + 4 * t, S0 + 4 * t + 3, Kreg(t) + 4 * i, Kreg(t) + 4 * i + 3, Q0 + 4 * i, Q0 + 4 * i + 3,
                      "0" if i == 0 else "v[%d:%d]" % (S0 + 4 * t, S0 + 4 * t + 3)))
        return f
    def smax():
        A("v_max3_f32 v9, v32, v33, v34\nv_max3_f32 v14, v35, v36, v37")
        rs = list(range(38, 96))
        for k in range(0, len(rs), 2): A("v_max3_f32 v%d, v%d, v%d, v%d" % ((9, 14)[(k >> 1) & 1], (9, 14)[(k >> 1) & 1], rs[k], rs[k + 1]))
        A("v_max_f32 v9, v9, v14")
        A("s_mov_b32 s65, 0x%08x" % f2u(128 ** -0.5 * LOG2E))
        xrows("v_max_f32", 9, 12)
        A("v_mul_f32 v9, s65, v9")
    def sexp(lo, hi):
        def f():
            for r in range(lo, hi): A("v_fma_f32 v%d, v%d, s65, -v9" % (r, r))
            for r in range(lo, hi): A("v_exp_f32 v%d, v%d" % (r, r))
            if hi == 96: ST("exp")
        return f
    def ssum(lo, hi):
        def f():
            for r in range(lo, hi, 2):
                if r == 32: A("v_mov_b32 v14, v32\nv_mov_b32 v15, v33")
                else: A("v_pk_add_f32 v[14:15], v[14:15], v[%d:%d]" % (r, r + 1))
            for r in range(lo, hi, 2): A("v_cvt_pk_bf16_f32 v%d, v%d, v%d" % (32 + (r - 32) // 2, r, r + 1))
            if hi == 96:
                A("v_add_f32 v15, v15, v14")
                xrows("v_add_f32", 15, 14)
                A("v_lshrrev_b32 v14, 2, v11\nv_lshlrev_b32 v14, 4, v14\ns_lshl_b32 s63, s3, 2\nv_add_u32 v14, s63, v14")
                A("ds_write_b32 v14, v9 offset:%d\nds_write_b32 v14, v15 offset:%d" % (LDS_M, LDS_L))
                bump(LDS_C + 4)
        return f
    def expand(t):
        for r in range(4):
            for j2 in range(2):
                A("v_perm_b32 v%d, v%d, v%d, v%d" % (AX0 + 2 * r + j2, 32 + 2 * t + (r >> 1), 32 + 2 * t + (r >> 1), vSP + 2 * (r & 1) + j2))
    def pvm(t, r):
        for hf in range(2):
            A("v_mfma_f32_16x16x16_bf16 v[%d:%d], v[%d:%d], v[%d:%d], %s" % (O0 + 4 * hf, O0 + 4 * hf + 3, AX0 + 2 * r, AX0 + 2 * r + 1,
              Vreg(t) + 4 * r + 2 * hf, Vreg(t) + 4 * r + 2 * hf + 1, "0" if (t == 0 and r == 0) else "v[%d:%d]" % (O0 + 4 * hf, O0 + 4 * hf + 3)))
    def pv(t):
        def f():
            expand(t); wait("V%d.3" % t)
            for r in range(4): pvm(t, r)
        return f
    def s_prep():
        srds2(); tag(); w2_prep()
        A("v_lshlrev_b32 v9, 4, v10\nv_lshlrev_b32 v10, 4, v%d\ns_mul_i32 s63, s3, %d\nv_add_u32 v10, s63, v10" % (vL, WVS))
        A("s_lshl_b32 s99, s%d, 11\ns_lshl_b32 s63, s3, 9\ns_add_u32 s99, s99, s63\ns_add_u32 s99, s99, %d" % (sSLOT, WS_YP))
        A("v_mov_b32 v%d, s%d\nv_mov_b32 v%d, s%d" % (PUB + 1, sTAG, PUB + 3, sTAG))
        if y32:
            A("v_and_b32 v12, 4, v11\nv_cmp_eq_u32 s[68:69], 0, v12\nv_mov_b32 v13, 0x0c0c0c0c\ns_nop 0")
            for h in range(2):
                for j in range(2):
                    A("v_cndmask_b32 v%d, v13, v%d, s[68:69]\nv_cndmask_b32 v%d, v%d, v13, s[68:69]" % (80 + 4 * h + j, vSP + 2 * h + j, 82 + 4 * h + j, vSP + 2 * h + j))
    dm = max(dpat) if dpat else d
    if adapt or p0 is not None or par: dm = max(dm, db)
    if dodd: dm = max(dm, max(dodd))
    dmv = max(dm, dend[1]) if dend else dm
    assert 4 <= dm <= 8
    at(0, setup2)
    at(1, phaseA(0)); at(min(dm, 6), phaseA(1))
    assert min(dm, 6) < 3 + dm
    for t in range(16): at(4 * t + 3 + dm, lambda t=t: readK(t))
    for p in sorted(set([p1, p2, pe] + ([lateg] if lateg else []) + ([pstl] if stlb else []) + ([pt] if touch else []) + (adapt or []) + ([p0] if p0 is not None else []))): at(p, progress(p))
    if p0 is not None or par:
        if p0 is not None:
            at(pm - 1, lambda: A("v_mov_b32 v2, 0\nds_read_b32 v0, v2 offset:%d" % (LDS_C + 16)))
            at(pm, lambda: A("s_waitcnt lgkmcnt(0)"))
        else: at(pm, lambda: A("v_mov_b32 v0, 0"))
        if par: at(pm, lambda: A("s_getreg_b32 s63, hwreg(HW_REG_XCC_ID, 0, 1)\ns_mul_i32 s63, s63, %d\ns_getreg_b32 s64, hwreg(HW_REG_XCC_ID, 2, 1)\ns_mul_i32 s64, s64, %d\ns_add_u32 s63, s63, s64\ns_add_u32 s63, s63, %d\nv_add_u32 v0, s63, v0" % (par, plate, pbase0)))
        if stamp: at(pm, lambda: A("s_nop 0\nv_readfirstlane_b32 s71, v0"))
        for j, p in enumerate(range(pm, pend, win)):
            at(p, lambda j=j: A("v_cmp_le_u32 vcc, %d, v0" % thr[j % len(thr)]))
        at(pend, lambda: A("s_mov_b64 vcc, 0"))
    if adapt:
        a0 = adapt[0] + win
        at(a0 - 1, lambda: A("s_mov_b64 vcc, 0"))
        for j, p in enumerate(range(a0, 126, win)):
            at(p, lambda: A("v_mov_b32 v2, 0\nds_read_b32 v0, v2 offset:%d" % (LDS_C + 16)))
            at(p + 1, lambda j=j: A("s_waitcnt lgkmcnt(0)\nv_and_b32 v0, %d, v0\nv_cmp_ne_u32 vcc, 0, v0" % (1 << (j % 8))))
    at(qk_at - 1, q_wait)
    t = 0; s = qk_at
    while t < 16:
        ts = [u for u in (t, t + 1) if u < 16 and 4 * u + 3 + dm < s and (u < 14 or s >= 64)]
        if ts:
            assert all(s < 4 * (u + 10) + 3 + dm for u in ts)
            at(s, qk(ts)); t += len(ts); slast = s
        s += 1
    at(slast + 1, smax)
    for k in range(4): at(slast + 2 + k, sexp(32 + 16 * k, 48 + 16 * k))
    at(slast + 6, ssum(32, 64)); at(slast + 7, ssum(64, 96))
    nxt = slast + 8; late = []
    for t in range(15):
        nxt = max(nxt, 67 + 4 * t + dmv)
        if nxt <= 127: at(nxt, pv(t))
        else: late.append(t)
        assert t + 10 > 15 or nxt < 64 + 4 * (t + 10)
        nxt += 1
    at(113, s_prep)
    if isinstance(estamp, int): at(estamp, lambda: ST("q"))
    if stamp:
        at(16, lambda: ST("pubA")); at(96, lambda: ST("pubML")); at(112, lambda: ST("yg")); at(56, lambda: ST("q"))
    for i in range(128):
        if adapt and i == adapt[0] + win: amode[0] = True
        if (p0 is not None or par) and i == pm + 1: amode[0] = True
        if dodd and i == 0: pace(d0)
        elif dend and i >= dend[0]: pace(dend[1])
        else: pace()
        if i < 64: loadK(i >> 2, i & 3)
        else: loadV((i - 64) >> 2, i & 3)
        for f in slots.get(i, []): f()
    amode[0] = False
    for t in late: pv(t)()
    expand(15)
    prel = ([lambda a=a: load_wd(a) for a in range(4)] + [lambda a=a: load_wo(a) for a in range(8)])[:ypre]
    for r in range(4):
        wait("V15.%d" % r)
        if r == 3: ST("V7")
        pvm(15, r)
        if r == 2:
            for f in prel: f(); vm.issue("w2")
    A("s_nop 6")
    A("ds_write_b128 v10, v[16:19] offset:%d\nds_write_b128 v10, v[20:23] offset:%d" % (LDS_O, LDS_O + HFS))
    A("s_waitcnt lgkmcnt(0)\ns_barrier")
    ST("B5")
    opl = "buffer_load_dwordx4 v[%d:%d], v15, %s, s100 offen %s" % (T, T + 3, WS, ld2pol)
    x = lambda k: T + k
    npre = ypre
    ST("pubO")
    if b5b: A("s_barrier")
    wl = [lambda a=a: load_wd(a) for a in range(4)] + [lambda a=a: load_wo(a) for a in range(8)]
    for f in wl[npre:]: f()
    if y32:
        def proj(P, a):
            for j in range(4): A("v_perm_b32 v%d, v%d, v%d, v%d" % (AX0 + 4 * (a & 1) + j, P + (a >> 1), P + (a >> 1), 80 + 4 * (a & 1) + j))
        def projm(W, a, first):
            A("v_mfma_f32_16x16x32_bf16 v[%d:%d], v[%d:%d], v[%d:%d], %s" % (YA, YA + 3, AX0 + 4 * (a & 1), AX0 + 4 * (a & 1) + 3, W + 4 * a, W + 4 * a + 3, "0" if first else "v[%d:%d]" % (YA, YA + 3)))
        A("ds_read_b128 v[%d:%d], v9 offset:%d\nv_lshlrev_b32 v9, 1, v9\ns_waitcnt lgkmcnt(0)" % (x(0), x(3), LDS_H))
        A("v_cvt_pk_bf16_f32 v%d, v%d, v%d\nv_cvt_pk_bf16_f32 v%d, v%d, v%d" % (x(4), x(0), x(1), x(5), x(2), x(3)))
        proj(x(4), 0); proj(x(4), 1)
        A("s_waitcnt vmcnt(8)")
        projm(WDR, 0, True); proj(x(4), 2); projm(WDR, 1, False); proj(x(4), 3); projm(WDR, 2, False); A("s_nop 0"); projm(WDR, 3, False)
        A("s_waitcnt vmcnt(0)")
        ST("og")
        A("s_barrier")
        for k in range(4):
            A("ds_read_b128 v[%d:%d], v9 offset:%d" % (x(8 + 4 * k), x(11 + 4 * k), LDS_o + 128 * (k & 1) + 16 * (k >> 1)))
        def addcvt(k, j):
            A("v_add_f32 v%d, v%d, v%d\nv_add_f32 v%d, v%d, v%d\nv_cvt_pk_bf16_f32 v%d, v%d, v%d" % (x(8 + 8 * k + j), x(8 + 8 * k + j), x(12 + 8 * k + j), x(9 + 8 * k + j), x(9 + 8 * k + j), x(13 + 8 * k + j),
              x(2 * k + j // 2), x(8 + 8 * k + j), x(9 + 8 * k + j)))
        A("s_waitcnt lgkmcnt(2)")
        addcvt(0, 0); proj(x(0), 0); addcvt(0, 2); projm(WOR, 0, False); proj(x(0), 1); proj(x(0), 2); projm(WOR, 1, False)
        A("s_waitcnt lgkmcnt(0)")
        if ystamp: ST("W")
        addcvt(1, 0); projm(WOR, 2, False); proj(x(0), 3); proj(x(0), 4); projm(WOR, 3, False); addcvt(1, 2); projm(WOR, 4, False)
        proj(x(0), 5); proj(x(0), 6); projm(WOR, 5, False); proj(x(0), 7); projm(WOR, 6, False); A("s_nop 0"); projm(WOR, 7, False)
        if ystamp: ST("qw")
        A("s_nop 6\ns_mov_b32 exec_hi, 0")
        A("v_cvt_pk_bf16_f32 v%d, v%d, v%d\nv_cvt_pk_bf16_f32 v%d, v%d, v%d" % (PUB, YA, YA + 1, PUB + 2, YA + 2, YA + 3))
    else:
        def proj(P, W, a, first):
            for j2 in range(2): A("v_perm_b32 v%d, v%d, v%d, v%d" % (AX0 + 2 * (a & 3) + j2, P + (a >> 1), P + (a >> 1), vSP + 2 * (a & 1) + j2))
        def projm(W, a, first):
            for hf in range(2):
                A("v_mfma_f32_16x16x16_bf16 v[%d:%d], v[%d:%d], v[%d:%d], %s" % (YA + 4 * hf, YA + 4 * hf + 3, AX0 + 2 * (a & 3), AX0 + 2 * (a & 3) + 1,
                  W + 4 * a + 2 * hf, W + 4 * a + 2 * hf + 1, "0" if first else "v[%d:%d]" % (YA + 4 * hf, YA + 4 * hf + 3)))
        A("ds_read_b128 v[%d:%d], v9 offset:%d\nv_lshlrev_b32 v9, 1, v9\ns_waitcnt lgkmcnt(0)" % (x(0), x(3), LDS_H))
        A("v_cvt_pk_bf16_f32 v%d, v%d, v%d\nv_cvt_pk_bf16_f32 v%d, v%d, v%d" % (x(4), x(0), x(1), x(5), x(2), x(3)))
        for a in range(4): proj(x(4), WDR, a, a == 0)
        A("s_waitcnt vmcnt(8)")
        for a in range(4): projm(WDR, a, a == 0)
        A("s_waitcnt vmcnt(0)")
        ST("og")
        A("s_barrier")
        for k in range(4):
            A("ds_read_b128 v[%d:%d], v9 offset:%d" % (x(8 + 4 * k), x(11 + 4 * k), LDS_o + 128 * (k & 1) + 16 * (k >> 1)))
        for k in range(2):
            A("s_waitcnt lgkmcnt(%d)" % (2 - 2 * k))
            if ystamp and k == 1: ST("W")
            for j in range(4): A("v_add_f32 v%d, v%d, v%d" % (x(8 + 8 * k + j), x(8 + 8 * k + j), x(12 + 8 * k + j)))
            A("v_cvt_pk_bf16_f32 v%d, v%d, v%d\nv_cvt_pk_bf16_f32 v%d, v%d, v%d" % (x(2 * k), x(8 + 8 * k), x(9 + 8 * k), x(2 * k + 1), x(10 + 8 * k), x(11 + 8 * k)))
            for a in range(4 * k, 4 * k + 2): proj(x(0), WOR, a, False)
            for a in range(4 * k, 4 * k + 2):
                projm(WOR, a, False); proj(x(0), WOR, a + 2, False)
            for a in range(4 * k + 2, 4 * k + 4): projm(WOR, a, False)
        if ystamp: ST("qw")
        A("s_nop 5\ns_mov_b64 exec, 0xffff")
        A("v_cvt_pk_bf16_f32 v%d, v%d, v%d\nv_cvt_pk_bf16_f32 v%d, v%d, v%d" % (PUB, YA, YA + 1, PUB + 2, YA + 2, YA + 3))
        A("s_mov_b32 exec_lo, 0xffff0000")
        A("v_cvt_pk_bf16_f32 v%d, v%d, v%d\nv_cvt_pk_bf16_f32 v%d, v%d, v%d" % (PUB, YA + 4, YA + 5, PUB + 2, YA + 6, YA + 7))
        A("s_mov_b32 exec_lo, -1")
    A("buffer_store_dwordx4 v[%d:%d], v%d, %s, s99 offen %s" % (PUB, PUB + 3, vVO, WS, st2pol))
    A("s_mov_b64 exec, -1")
    A("s_branch L_join")

    A("L_helper:")
    A("v_mov_b32 v12, 0\nv_mov_b32 v13, 0\nv_mov_b32 v14, 0\nv_mov_b32 v15, 0\nds_write_b128 v12, v[12:15] offset:%d" % LDS_C)
    if adapt or p0 is not None: A("ds_write_b32 v12, v12 offset:%d" % (LDS_C + 16))
    A("s_waitcnt lgkmcnt(0)")
    A("s_load_dword s%d, s[28:29], %d" % (sTAG, WS_EPOCH))
    A("s_barrier")
    srds2()
    if cpre:
        if cpre == 1: A("s_cmp_lt_u32 s%d, 120\ns_cbranch_scc1 L_nocp" % sTILE)
        A("s_getpc_b64 s[34:35]\nL_pc0:\ns_sub_u32 s34, s34, L_pc0-%s_kernel\ns_subb_u32 s35, s35, 0" % NAME)
        A("s_and_b32 s63, s3, 3\ns_lshl_b32 s63, s63, 10\nv_add_u32 v32, s63, v%d" % vVO)
        for k in range(4):
            A("v_min_u32 v33, L_end-%s_kernel-16, v32\nglobal_load_dwordx4 v[36:39], v33, s[34:35]\nv_add_u32 v32, 4096, v32" % NAME)
        A("L_nocp:")
    if tlb:
        only_wave(6, "L_notlb")
        A("s_lshl_b32 s63, s%d, 18\ns_add_u32 s63, s63, 0x3ff80\nv_mov_b32 v32, s63\ns_lshl_b32 s63, s%d, 15\nv_mov_b32 v33, s63\ns_mul_i32 s63, s%d, %d\nv_mov_b32 v34, s63\nv_mov_b32 v35, 0\ns_mov_b64 exec, 1" % (sSLOT, sREST, sREST, 14 * 1024))
        if tlb & 1: A("global_load_dword v36, v32, s[8:9] nt")
        if tlb & 2: A("global_load_dword v37, v33, s[12:13] nt\nglobal_load_dword v38, v34, s[20:21] nt")
        if tlb & 4: A("global_load_dword v39, v35, s[24:25] nt")
        A("s_mov_b64 exec, -1\nL_notlb:")
    if lateg:
        tag()
    if stlb:
        only_wave(6, "L_nostlb")
        await_lds(LDS_C + 12, pstl, nap)
        A("s_lshl_b32 s63, s%d, 18\ns_add_u32 s32, s8, s63\ns_addc_u32 s33, s9, 0\ns_lshl_b32 s63, s%d, 15\ns_add_u32 s34, s12, s63\ns_addc_u32 s35, s13, 0\ns_mul_i32 s63, s%d, %d\ns_add_u32 s36, s20, s63\ns_addc_u32 s37, s21, 0" % (sSLOT, sREST, sREST, 14 * 1024))
        if stlb & 1: A("s_load_dword s38, s[32:33], 0")
        if stlb & 2: A("s_load_dword s39, s[34:35], 0\ns_load_dword s40, s[36:37], 0")
        if stlb & 4: A("s_load_dword s41, s[24:25], 0")
        A("L_nostlb:")
    only_wave(5, "L_nox")
    if lateg: await_lds(LDS_C + 12, lateg, nap)
    A("s_lshl_b32 s63, s%d, 10\nv_add_u32 v9, s63, v%d" % (sB, vVO))
    A("global_load_dwordx4 v[32:35], v9, s[4:5]\nglobal_load_dwordx4 v[36:39], v%d, s[22:23]" % vVO)
    if tearly:
        A("s_lshl_b32 s63, s%d, 7\ns_add_u32 s63, s63, %d\nv_mov_b32 v12, 0\nbuffer_load_dword v44, v12, %s, s63 offen %s" % (sSLOT, WS_ML, WS, tpol))
    A("s_waitcnt vmcnt(0)")
    A("v_dot2_f32_bf16 v%d, v32, v36, 0" % vG)
    for i in range(1, 4): A("v_dot2_f32_bf16 v%d, v%d, v%d, v%d" % (vG, 32 + i, 36 + i, vG))
    A("s_nop 2")
    for c in ("quad_perm:[1,0,3,2]", "quad_perm:[2,3,0,1]", "row_half_mirror", "row_mirror"):
        dpp("v_add_f32", vG, vG, vG, c); A("s_nop 1")
    xrows("v_add_f32", vG, 9)
    A("v_mul_f32 v%d, 0x%08x, v%d\nv_exp_f32 v%d, v%d\ns_nop 0\nv_add_f32 v%d, 1.0, v%d\nv_rcp_f32 v%d, v%d" % (vG, f2u(-LOG2E), vG, vG, vG, vG, vG, vG, vG))
    A("L_nox:")
    if not lateg: tag()
    only_wave(4, "L_noA2")
    A("s_cmp_ge_u32 s%d, 120\ns_cbranch_scc1 L_noA2" % sTILE)
    if pub4:
        A("v_and_b32 v14, 31, v%d\nv_lshlrev_b32 v9, 4, v14\nv_lshrrev_b32 v15, 5, v%d\nv_lshl_add_u32 v9, v15, 3, v9" % (vL, vL))
        A("v_lshrrev_b32 v14, 4, v14\nv_mul_u32_u24 v14, %d, v14\nv_add_u32 v14, v14, v%d" % (30720 - 256, vVO))
    else:
        A("v_lshlrev_b32 v9, 3, v%d\nv_lshrrev_b32 v14, 5, v%d\nv_mul_u32_u24 v14, %d, v14\nv_add_u32 v14, v14, v9" % (vL, vL, 30720 - 256))
    A("s_mul_i32 s64, s%d, 61440\ns_lshl_b32 s65, s%d, 8\ns_add_u32 s64, s64, s65\ns_add_u32 s64, s64, %d" % (sB, sTILE, WS_QG))
    if tearly:
        A("s_mov_b32 exec_hi, 0\nbuffer_load_dwordx4 v[44:47], v14, %s, s64 offen %s\ns_mov_b32 exec_hi, -1" % (WS, tpol))
    await_lds(LDS_C, 4, 1)
    for w in range(4):
        A("ds_read_b64 v[%d:%d], v9 offset:%d" % (32 + 2 * w, 33 + 2 * w, LDS_A + 1024 * w))
    A("s_waitcnt lgkmcnt(0)\nv_pk_add_f32 v[32:33], v[32:33], v[34:35]\nv_pk_add_f32 v[36:37], v[36:37], v[38:39]\nv_pk_add_f32 v[32:33], v[32:33], v[36:37]")
    if pub4:
        A("v_cvt_pk_bf16_f32 v36, v32, v33\nv_cvt_pk_bf16_f32 v38, v32, v33\nv_mov_b32 v37, s%d\nv_mov_b32 v39, s%d\nv_permlane32_swap_b32 v36, v38\ns_mov_b32 exec_hi, 0" % (sTAG, sTAG))
        A("buffer_store_dwordx4 v[36:39], v14, %s, s64 offen %s\ns_mov_b32 exec_hi, -1" % (WS, stpol))
    else:
        A("v_cvt_pk_bf16_f32 v32, v32, v33\nv_mov_b32 v33, s%d" % sTAG)
        A("buffer_store_dwordx2 v[32:33], v14, %s, s64 offen %s" % (WS, stpol))
    A("L_noA2:")
    ST("pubA")
    def adapt_cps(cs, setup=False):
        l1 = newlabel("noad")
        if setup:
            nrow = npeer // 8; span = 32 // nrow
            A("s_lshr_b32 s64, s2, 3\ns_and_b32 s60, s64, %d\ns_mul_i32 s60, s60, %d\ns_lshr_b32 s64, s64, %d\ns_lshl_b32 s64, s64, 3\ns_and_b32 s63, s2, 7\ns_add_u32 s64, s64, s63\ns_add_u32 s64, s64, s60" % (span - 1, npeer, span.bit_length() - 1))
            A("s_lshl_b32 s64, s64, %d\ns_add_u32 s66, s64, %d\ns_lshl_b32 s60, s60, %d\ns_add_u32 s60, s60, %d" % (mkstr, WS_MK, mkstr, WS_MK))
            A("v_and_b32 v50, %d, v%d\nv_lshlrev_b32 v50, %d, v50\nv_mov_b32 v51, 0\nv_mov_b32 v52, s%d" % (npeer - 1, vL, mkstr, sTAG))
            if stamp: A("s_mov_b32 s71, 0")
        only_wave(aw, l1)
        for c in cs:
            await_lds(LDS_C + 12, adapt[c], 1)
            A("s_mov_b64 exec, 1\nbuffer_store_dword v52, v51, %s, s66 offen %s\ns_mov_b64 exec, -1" % (WS, stpol))
            if adelay: A("s_waitcnt vmcnt(0)")
            A("buffer_load_dword v53, v50, %s, s60 offen %s" % (WS, ldpol))
            A("s_add_u32 s66, s66, 32768\ns_add_u32 s60, s60, 32768\ns_waitcnt vmcnt(0)")
            A("v_cmp_eq_u32 vcc, s%d, v53\ns_bcnt1_i32_b64 s63, vcc\ns_mov_b32 s61, 0" % sTAG)
            for thr, m in alev:
                A("s_cmp_ge_u32 s63, %d\ns_cselect_b32 s61, %d, s61" % (thr, m))
            A("v_mov_b32 v53, s61\nds_write_b32 v51, v53 offset:%d" % (LDS_C + 16))
            if stamp: A("s_min_u32 s63, s63, 63\ns_lshl_b32 s63, s63, %d\ns_or_b32 s71, s71, s63" % (6 * c))
        A("%s:" % l1)
    if adapt: adapt_cps([c for c, cp in enumerate(adapt) if cp < p1], True)
    A("v_lshrrev_b32 v40, 5, v%d\nv_mul_u32_u24 v40, %d, v40\nv_add_u32 v40, v40, v%d" % (vL, 61440 - 512, vVO))
    A("s_mul_i32 s98, s%d, 30720\ns_lshr_b32 s64, s%d, 4\ns_lshl_b32 s64, s64, 11\ns_add_u32 s98, s98, s64\ns_and_b32 s65, s3, 3\ns_lshl_b32 s64, s65, 9\ns_add_u32 s98, s98, s64\ns_add_u32 s98, s98, %d" % (sB, sREST, WS_QG))
    qld = "buffer_load_dwordx4 v[32:35], v40, %s, s98 offen %s" % (WS, ldpol)
    if p0 is None:
        await_lds(LDS_C + 12, p1, nap)
        poll([qld], [33, 35], 4)
    else:
        await_lds(LDS_C + 12, p0, 1)
        A(qld + "\ns_waitcnt vmcnt(0)")
        cmpn([33, 35])
        A("s_wqm_b64 s[60:61], vcc\ns_bcnt0_i32_b64 s63, s[60:61]\nv_mov_b32 v12, 0\nv_mov_b32 v13, s63\ns_mov_b64 exec, 1\nds_add_u32 v12, v13 offset:%d\ns_mov_b64 exec, -1" % (LDS_C + 16))
        A("s_cmp_eq_u32 s63, 64\ns_cbranch_scc1 L_qok")
        await_lds(LDS_C + 12, p1, nap)
        A("s_mov_b64 exec, s[60:61]")
        poll([qld], [33, 35], 4)
        A("L_qok:")
    A("v_mov_b32 v36, v32\nv_mov_b32 v37, v34\ns_lshl_b32 s63, s65, 8\ns_add_u32 s63, s63, %d\nv_permlane32_swap_b32 v36, v32\nv_permlane32_swap_b32 v37, v34" % LDS_Q)
    for a, b in ((36, 32), (37, 34)):
        A("v_lshlrev_b32 v12, 16, v%d\nv_lshlrev_b32 v13, 16, v%d\nv_and_b32 v14, 0xffff0000, v%d\nv_and_b32 v15, 0xffff0000, v%d" % (a, b, a, b))
        A("v_add_f32 v12, v12, v13\nv_add_f32 v14, v14, v15\nv_cvt_pk_bf16_f32 v%d, v12, v14" % a)
    A("v_and_b32 v9, 31, v%d\nv_lshl_add_u32 v9, v9, 3, s63" % vL)
    A("ds_write2_b32 v9, v36, v37 offset0:0 offset1:1")
    bump(LDS_C + 8)
    if touch & 4:
        await_lds(LDS_C + 12, pt, nap)
        A(("s_xor_b32 s63, s%d, %d\ns_lshl_b32 s63, s63, 11" % (sSLOT, tx)) if tx else "s_lshl_b32 s63, s%d, 11" % sSLOT)
        A("s_and_b32 s64, s3, 1\ns_lshl_b32 s64, s64, 10\ns_add_u32 s63, s63, s64\ns_add_u32 s63, s63, %d" % WS_OP)
        A("s_and_b32 s64, s3, 2\ns_mul_i32 s64, s64, %d\ns_add_u32 s63, s63, s64" % ((WS_YP - WS_OP) // 2))
        A("buffer_load_dwordx4 v[%d:%d], v%d, %s, s63 offen %s" % (T + 20, T + 23, vVO, WS, tpol))
    if warm:
        only_wave(4, "L_warm_ret")
        A("s_mov_b64 exec, 0\ns_branch L_pad0\nL_warm_ret:\ns_mov_b64 exec, -1")
    only_wave(5, "L_noside")
    A("v_min_u32 v40, 13, v11\nv_lshrrev_b32 v40, 1, v40\nv_lshlrev_b32 v40, 3, v40")
    A("s_mul_i32 s63, s%d, 7\ns_mul_i32 s64, s%d, 3840\ns_add_u32 s63, s63, s64\ns_lshl_b32 s63, s63, 3\ns_add_u32 s63, s63, %d" % (sREST, sB, WS_QG + 2048 * 8))
    A("v_and_b32 v41, 1, v10\nv_mul_u32_u24 v41, 61440, v41\nv_lshrrev_b32 v42, 1, v10\nv_mul_u32_u24 v42, %d, v42\nv_add3_u32 v40, v40, v41, v42\nv_add_u32 v40, s63, v40" % (896 * 8))
    poll(["buffer_load_dwordx2 v[32:33], v40, %s, 0 offen %s" % (WS, ldpol)], [33], 4)
    A("v_and_b32 v34, 1, v%d\nv_cmp_eq_u32 vcc, 1, v34\nv_lshlrev_b32 v34, 16, v32\nv_and_b32 v35, 0xffff0000, v32" % vL)
    A("v_cndmask_b32 v34, v34, v35, vcc\nv_cmp_gt_u32 vcc, 14, v11\nv_mov_b32 v35, v34\ns_nop 1\nv_permlane16_swap_b32 v35, v34\nv_add_f32 v34, v34, v35")
    A("v_mov_b32 v36, v34\ns_nop 1\nv_permlane32_swap_b32 v34, v36")
    A("v_mul_f32 v34, 0x%08x, v34\nv_exp_f32 v34, v34\nv_sub_f32 v37, 1.0, v%d\nv_add_f32 v34, 1.0, v34\nv_rcp_f32 v34, v34\nv_mul_f32 v36, v36, v37" % (f2u(-LOG2E), vG))
    A("v_mul_f32 v34, v34, v36\nv_cndmask_b32 v34, 0, v34, vcc")
    A("v_and_b32 v35, 3, v11\nv_lshlrev_b32 v35, 4, v35\nv_and_b32 v36, 12, v11\nv_add_u32 v35, v36, v35")
    A("ds_write_b32 v35, v34 offset:%d" % LDS_H)
    A("v_and_b32 v40, 3, v%d\nv_lshlrev_b32 v40, 4, v40\nv_bfe_u32 v41, v%d, 2, 1\nv_lshl_add_u32 v41, v41, 6, v40" % (vL, vL))
    A("s_lshl_b32 s64, s%d, 7\ns_add_u32 s64, s64, %d\nv_mov_b32 v45, s%d\nv_mov_b32 v47, s%d" % (sSLOT, WS_ML, sTAG, sTAG))
    await_lds(LDS_C + 4, 4, nap)
    A("ds_read_b128 v[32:35], v40 offset:%d\nds_read_b128 v[36:39], v40 offset:%d" % (LDS_M, LDS_L))
    A("v_and_b32 v42, 12, v%d\nv_add_u32 v42, v42, v40\nds_read_b32 v43, v42 offset:%d" % (vL, LDS_M))
    A("s_waitcnt lgkmcnt(0)\nv_max3_f32 v44, v32, v33, v34\nv_max_f32 v44, v44, v35")
    for w in range(4): A("v_sub_f32 v%d, v%d, v44" % (32 + w, 32 + w))
    for w in range(4): A("v_exp_f32 v%d, v%d" % (32 + w, 32 + w))
    A("v_mul_f32 v46, v32, v36")
    for w in range(1, 4): A("v_fmac_f32 v46, v%d, v%d" % (32 + w, 36 + w))
    A("s_mov_b64 exec, 0xff")
    A("buffer_store_dwordx4 v[44:47], v41, %s, s64 offen %s" % (WS, stpol))
    A("s_mov_b64 exec, -1")
    ST("pubML")
    A("s_and_b32 s64, s%d, 0xf0\ns_lshl_b32 s64, s64, 7\ns_add_u32 s64, s64, %d" % (sSLOT, WS_ML))
    A("v_lshrrev_b32 v41, 2, v%d\nv_lshl_add_u32 v41, v41, 7, v40" % vL)
    await_lds(LDS_C + 12, p2, nap)
    poll(["buffer_load_dwordx4 v[32:35], v41, %s, s64 offen %s" % (WS, ldpol)], [33, 35], 4)
    A("v_mov_b32 v36, v32\ns_nop 1")
    for c in ("row_ror:4", "row_ror:8"):
        dpp("v_max_f32", 36, 36, 36, c); A("s_nop 1")
    xrows("v_max_f32", 36, 37)
    A("v_sub_f32 v37, v32, v36\nv_exp_f32 v37, v37\ns_nop 0\nv_mul_f32 v37, v37, v34\ns_nop 1")
    for c in ("row_ror:4", "row_ror:8"):
        dpp("v_add_f32", 37, 37, 37, c); A("s_nop 1")
    xrows("v_add_f32", 37, 38)
    A("v_sub_f32 v43, v43, v36\nv_rcp_f32 v37, v37\nv_exp_f32 v43, v43\nv_mul_f32 v37, v37, v%d\nv_mul_f32 v43, v43, v37" % vG)
    A("ds_write_b32 v42, v43 offset:%d" % LDS_F)
    A("L_noside:")
    if adapt: adapt_cps([c for c, cp in enumerate(adapt) if cp >= p1])
    A("s_cmp_lg_u32 s2, 255\ns_cbranch_scc1 L_noep")
    only_wave(7, "L_noep")
    A("v_lshlrev_b32 v48, 9, v%d\ns_mov_b32 s64, %d" % (vL, WS_ML))
    await_lds(LDS_C + 12, pe, nap)
    poll(["buffer_load_dwordx4 v[%d:%d], v48, %s, s64 offen offset:%d %s" % (32 + 4 * a, 35 + 4 * a, WS, 128 * a, ldpol) for a in range(4)], [33 + 2 * a for a in range(8)], 8)
    A("v_mov_b32 v48, %d\nv_mov_b32 v49, s%d\ns_mov_b64 exec, 1" % (WS_EPOCH, sTAG))
    A("buffer_store_dword v49, v48, %s, 0 offen %s" % (WS, stpol))
    A("s_mov_b64 exec, -1")
    A("L_noep:")
    A("v_lshrrev_b32 v9, 3, v%d\nv_and_b32 v12, 7, v%d\ns_and_b32 s65, s3, 1" % (vL, vL))
    A("v_lshlrev_b32 v10, 5, v10\nv_lshl_add_u32 v10, v12, 2, v10\ns_lshl_b32 s63, s65, 7\nv_add_u32 v10, s63, v10")
    A("v_lshrrev_b32 v11, 1, v%d\nv_lshlrev_b32 v11, 4, v11\nv_and_b32 v13, 1, v%d\nv_mul_u32_u24 v13, %d, v13" % (vL, vL, HFS))
    A("s_lshl_b32 s63, s65, 9\nv_add3_u32 v11, v11, v13, s63")
    A("v_lshrrev_b32 v14, 5, v%d\nv_lshlrev_b32 v14, 4, v14\ns_lshl_b32 s63, s65, 5\nv_add_u32 v14, s63, v14" % vL)
    A("s_lshl_b32 s99, s%d, 11\ns_lshl_b32 s63, s65, 10\ns_add_u32 s99, s99, s63\ns_add_u32 s99, s99, %d" % (sSLOT, WS_OP))
    A("v_lshlrev_b32 v15, 11, v9\nv_lshl_add_u32 v15, v12, 4, v15")
    A("s_and_b32 s100, s%d, 0xf0\ns_lshl_b32 s63, s65, 3\ns_add_u32 s100, s100, s63\ns_lshl_b32 s100, s100, 11\ns_and_b32 s63, s%d, 15\ns_lshl_b32 s63, s63, 7\ns_add_u32 s100, s100, s63\ns_add_u32 s100, s100, %d" % (sSLOT, sREST, WS_OP))
    A("v_mov_b32 v%d, s%d\nv_mov_b32 v%d, s%d" % (PUB + 1, sTAG, PUB + 3, sTAG))
    A("s_waitcnt lgkmcnt(0)\ns_barrier")
    ST("B5")
    A("s_cmp_ge_u32 s3, 6\ns_cbranch_scc1 L_gather")
    A("ds_read_b128 v[%d:%d], v14 offset:%d" % (x(16), x(19), LDS_F))
    for w in range(4):
        A("ds_read_b128 v[%d:%d], v11 offset:%d" % (x(4 * w), x(4 * w + 3), LDS_O + w * WVS))
    for w in range(4):
        A("s_waitcnt lgkmcnt(%d)" % (3 - w))
        for j in range(4):
            A("v_mul_f32 v%d, v%d, v%d" % (x(j), x(j), x(16)) if w == 0 else "v_fmac_f32 v%d, v%d, v%d" % (x(j), x(4 * w + j), x(16 + w)))
    A("v_cvt_pk_bf16_f32 v%d, v%d, v%d\nv_cvt_pk_bf16_f32 v%d, v%d, v%d" % (PUB, x(0), x(1), PUB + 2, x(2), x(3)))
    A("buffer_store_dwordx4 v[%d:%d], v%d, %s, s99 offen %s" % (PUB, PUB + 3, vVO, WS, st2pol))
    ST("pubO")
    if b5b: A("s_barrier")
    ST("og")
    A("s_barrier\ns_branch L_join")
    A("L_gather:")
    A(opl)
    ST("pubO")
    if b5b: A("s_barrier")
    def unpack4(b):
        A("v_lshlrev_b32 v%d, 16, v%d\nv_lshlrev_b32 v%d, 16, v%d\nv_and_b32 v%d, 0xffff0000, v%d\nv_and_b32 v%d, 0xffff0000, v%d\ns_nop 0" % (x(4), b, x(6), b + 2, x(5), b, x(7), b + 2))
    def mpoll(ns, sleep):
        if ns == 1:
            poll([opl], [x(1), x(3)], sleep, first=False); unpack4(x(0)); return
        base = [x(0)] + [x(8 + 4 * k) for k in range(ns - 1)]
        ld = lambda k: "buffer_load_dwordx4 v[%d:%d], v15, %s, s100 offen %s" % (base[k], base[k] + 3, WS, ld2pol)
        pend = [34, 40, 42, 32][:ns]
        lo, fin = newlabel("mp"), newlabel("mf")
        A("s_waitcnt vmcnt(0)")
        cmpn([base[0] + 1, base[0] + 3])
        A("s_wqm_b64 exec, vcc\ns_cbranch_scc0 %s_0\ns_mov_b32 s62, 0" % fin)
        A("s_mov_b64 s[%d:%d], exec" % (pend[0], pend[0] + 1))
        A(ld(0))
        A("s_mov_b64 exec, -1")
        for k in range(1, ns):
            A("s_mov_b64 s[%d:%d], -1\ns_sleep %d" % (pend[k], pend[k] + 1, stag)); A(ld(k))
        A("%s:" % lo)
        for k in range(ns):
            A("s_mov_b64 exec, s[%d:%d]\ns_waitcnt vmcnt(%d)" % (pend[k], pend[k] + 1, ns - 1))
            cmpn([base[k] + 1, base[k] + 3])
            A("s_wqm_b64 exec, vcc\ns_cbranch_scc0 %s_%d" % (fin, k))
            A("s_mov_b64 s[%d:%d], exec" % (pend[k], pend[k] + 1))
            A(ld(k))
        A("s_add_u32 s62, s62, 1\ns_cmp_gt_u32 s62, %d\ns_cbranch_scc0 %s\ns_branch L_bail" % (spin, lo))
        for k in range(ns - 1, -1, -1):
            A("%s_%d:\ns_mov_b64 exec, -1" % (fin, k)); unpack4(base[k])
            if k: A("s_branch %s" % fin)
        A("%s:" % fin)
    def red4(steps):
        A("v_permlane32_swap_b32 v%d, v%d\nv_permlane32_swap_b32 v%d, v%d\nv_add_f32 v%d, v%d, v%d\nv_add_f32 v%d, v%d, v%d\ns_nop 1" % (x(4), x(6), x(5), x(7), x(4), x(4), x(6), x(5), x(5), x(7)))
        A("v_permlane16_swap_b32 v%d, v%d\nv_add_f32 v%d, v%d, v%d" % (x(4), x(5), x(4), x(4), x(5)))
        for c in steps:
            A("s_nop 1"); dpp("v_add_f32", x(4), x(4), x(4), c)
    mpoll(ns1, sleep1)
    red4(["row_ror:8"])
    A("ds_write_b32 v10, v%d offset:%d\ns_waitcnt lgkmcnt(0)" % (x(4), LDS_o))
    ST("og")
    A("s_barrier")
    A("L_join:")
    ST("pubY")
    assert nred == 64
    if nred == 64:
        A("s_cmp_lt_u32 s%d, 96\ns_cbranch_scc1 L_exit" % sRID)
        A("v_lshrrev_b32 v15, 2, v%d\nv_lshlrev_b32 v15, 11, v15\nv_and_b32 v9, 3, v%d\nv_lshl_add_u32 v15, v9, 4, v15" % (vL, vL))
        A("s_lshl_b32 s100, s%d, 7\ns_lshl_b32 s63, s3, 4\ns_add_u32 s100, s100, s63\ns_lshl_b32 s100, s100, 11\ns_sub_u32 s64, s%d, 96\ns_lshl_b32 s63, s64, 6\ns_add_u32 s100, s100, s63\ns_add_u32 s100, s100, %d" % (sB, sRID, WS_YP))
        A(opl)
        A("v_lshlrev_b32 v9, 4, v9\nv_lshrrev_b32 v10, 4, v%d\nv_lshl_add_u32 v9, v10, 2, v9\ns_lshl_b32 s63, s3, 6\nv_add_u32 v9, s63, v9" % vL)
        A("v_and_b32 v10, 7, v%d\nv_lshlrev_b32 v11, 3, v10\nv_lshrrev_b32 v12, 1, v10\nv_and_b32 v10, 1, v10\nv_lshlrev_b32 v10, 2, v10\nv_lshl_add_u32 v10, v12, 4, v10" % vL)
        A("s_lshl_b32 s63, s%d, 10\ns_lshr_b32 s65, s64, 3\ns_lshl_b32 s65, s65, 8\ns_add_u32 s63, s63, s65\ns_and_b32 s65, s64, 3\ns_lshl_b32 s65, s65, 6\ns_add_u32 s63, s63, s65\ns_and_b32 s65, s64, 4\ns_lshl_b32 s65, s65, 1\ns_add_u32 s63, s63, s65\nv_add_u32 v10, s63, v10" % sB)
        mpoll(ns2, sleep2)
        ST("yg")
        red4(["row_ror:4", "row_ror:8"])
        A("ds_write_b32 v9, v%d offset:%d\ns_waitcnt lgkmcnt(0)\ns_barrier" % (x(4), LDS_R))
        only_wave(0, "L_exit")
        for w in range(8):
            A("ds_read_b64 v[%d:%d], v11 offset:%d" % (64 + 2 * w, 65 + 2 * w, LDS_R + 64 * w))
        A("s_waitcnt lgkmcnt(4)\nv_pk_add_f32 v[64:65], v[64:65], v[66:67]\nv_pk_add_f32 v[68:69], v[68:69], v[70:71]\nv_pk_add_f32 v[64:65], v[64:65], v[68:69]")
        A("s_waitcnt lgkmcnt(0)\nv_pk_add_f32 v[72:73], v[72:73], v[74:75]\nv_pk_add_f32 v[76:77], v[76:77], v[78:79]\nv_pk_add_f32 v[72:73], v[72:73], v[76:77]\nv_pk_add_f32 v[64:65], v[64:65], v[72:73]")
        A("s_mov_b64 exec, 0xff\nv_cvt_pk_bf16_f32 v64, v64, v65")
    else:
        A("s_cmp_lt_u32 s%d, 112\ns_cbranch_scc1 L_exit" % sRID)
        A("v_lshrrev_b32 v15, 3, v%d\nv_lshlrev_b32 v15, 11, v15\nv_and_b32 v9, 7, v%d\nv_lshl_add_u32 v15, v9, 4, v15" % (vL, vL))
        A("s_lshl_b32 s100, s%d, 7\ns_lshl_b32 s63, s3, 4\ns_add_u32 s100, s100, s63\ns_lshl_b32 s100, s100, 11\ns_sub_u32 s64, s%d, 112\ns_lshl_b32 s63, s64, 7\ns_add_u32 s100, s100, s63\ns_add_u32 s100, s100, %d\ns_add_u32 s99, s100, 16384" % (sB, sRID, WS_YP))
        fl = [opl, "buffer_load_dwordx4 v[%d:%d], v15, %s, s99 offen %s" % (x(8), x(11), WS, ldpol)]
        A(fl[0]); A(fl[1])
        A("v_lshlrev_b32 v9, 4, v9\nv_lshrrev_b32 v10, 4, v%d\nv_lshl_add_u32 v9, v10, 2, v9\ns_lshl_b32 s63, s3, 7\nv_add_u32 v9, s63, v9" % vL)
        A("v_and_b32 v10, 15, v%d\nv_lshlrev_b32 v11, 3, v10\nv_lshrrev_b32 v12, 1, v10\nv_and_b32 v10, 1, v10\nv_lshlrev_b32 v10, 2, v10\nv_lshl_add_u32 v10, v12, 4, v10" % vL)
        A("s_lshl_b32 s63, s%d, 10\ns_lshr_b32 s65, s64, 1\ns_lshl_b32 s65, s65, 7\ns_add_u32 s63, s63, s65\ns_and_b32 s65, s64, 1\ns_lshl_b32 s65, s65, 3\ns_add_u32 s63, s63, s65\nv_add_u32 v10, s63, v10" % sB)
        poll(fl, [x(1), x(3), x(9), x(11)], sleep2, first=False)
        ST("yg")
        A("v_lshlrev_b32 v%d, 16, v%d\nv_lshlrev_b32 v%d, 16, v%d\nv_and_b32 v%d, 0xffff0000, v%d\nv_and_b32 v%d, 0xffff0000, v%d" % (x(12), x(8), x(14), x(10), x(13), x(8), x(15), x(10)))
        unpack4(x(0))
        A("v_pk_add_f32 v[%d:%d], v[%d:%d], v[%d:%d]\nv_pk_add_f32 v[%d:%d], v[%d:%d], v[%d:%d]\ns_nop 1" % (x(4), x(5), x(4), x(5), x(12), x(13), x(6), x(7), x(6), x(7), x(14), x(15)))
        red4(["row_ror:8"])
        A("ds_write_b32 v9, v%d offset:%d\ns_waitcnt lgkmcnt(0)\ns_barrier" % (x(4), LDS_A))
        only_wave(0, "L_exit")
        for w in range(8):
            A("ds_read_b64 v[%d:%d], v11 offset:%d" % (64 + 2 * w, 65 + 2 * w, LDS_A + 128 * w))
        A("s_waitcnt lgkmcnt(4)\nv_pk_add_f32 v[64:65], v[64:65], v[66:67]\nv_pk_add_f32 v[68:69], v[68:69], v[70:71]\nv_pk_add_f32 v[64:65], v[64:65], v[68:69]")
        A("s_waitcnt lgkmcnt(0)\nv_pk_add_f32 v[72:73], v[72:73], v[74:75]\nv_pk_add_f32 v[76:77], v[76:77], v[78:79]\nv_pk_add_f32 v[72:73], v[72:73], v[76:77]\nv_pk_add_f32 v[64:65], v[64:65], v[72:73]")
        A("s_mov_b64 exec, 0xffff\nv_cvt_pk_bf16_f32 v64, v64, v65")
    A("global_store_dword v10, v64, s[24:25] %s" % outpol)
    A("s_mov_b64 exec, -1")
    A("L_exit:")
    if gprobe:
        name, ref = gprobe
        only_wave(0, "L_gp1")
        ST("end")
        A("s_waitcnt lgkmcnt(0)\ns_lshl_b32 s63, s2, 7\ns_add_u32 s63, s63, %d\nv_mov_b32 v20, s70\nv_mov_b32 v21, s%d\nv_mov_b32 v22, s%d\nv_mov_b32 v23, s%d\nv_mov_b32 v24, 0" % (WS_MK, sTAG, stn[name], sTAG))
        A("s_mov_b64 exec, 1\nbuffer_store_dwordx4 v[20:23], v24, %s, s63 offen sc1\ns_mov_b64 exec, -1" % WS)
        A("L_gp1:")
        only_wave(7, "L_gp2")
        A("s_cmp_lg_u32 s2, 0\ns_cbranch_scc1 L_gp2")
        A("L_gpw:\ns_sleep 16\ns_memrealtime s[64:65]\ns_waitcnt lgkmcnt(0)\ns_sub_u32 s64, s64, s70\ns_cmp_lt_u32 s64, 3500\ns_cbranch_scc1 L_gpw")
        A("v_lshlrev_b32 v48, 9, v%d\ns_mov_b32 s64, %d" % (vL, WS_MK))
        poll(["buffer_load_dwordx4 v[%d:%d], v48, %s, s64 offen offset:%d sc1" % (32 + 4 * a, 35 + 4 * a, WS, 128 * a) for a in range(4)], [33 + 2 * a for a in range(8)], 8)
        for a in range(8): A("v_subrev_u32 v%d, s70, v%d" % (32 + 2 * a, 32 + 2 * a))
        op0 = "v_max_i32" if ref == "late" else "v_min_i32"
        A("%s v50, v32, v36\n%s v51, v40, v44\n%s v50, v50, v51\nv_max_i32 v52, v34, v38\nv_max_i32 v51, v42, v46\nv_max_i32 v52, v52, v51\ns_nop 1" % (op0, op0, op0))
        for r, op in ((50, op0), (52, "v_max_i32")):
            for c in ("quad_perm:[1,0,3,2]", "quad_perm:[2,3,0,1]", "row_half_mirror", "row_mirror"):
                dpp(op, r, r, r, c); A("s_nop 1")
            xrows(op, r, 54)
        A("v_sub_u32 v52, v52, v50\ns_nop 0\nv_readfirstlane_b32 s63, v52\ns_sub_u32 s63, s63, %d\ns_max_i32 s63, s63, 0\ns_mul_i32 s63, s63, 10\ns_add_u32 s63, s63, 6000" % aoff)
        A("L_gpl:\ns_sleep 4\ns_memrealtime s[64:65]\ns_waitcnt lgkmcnt(0)\ns_sub_u32 s64, s64, s70\ns_cmp_lt_u32 s64, s63\ns_cbranch_scc1 L_gpl")
        A("L_gp2:")
    if skewprobe:
        only_wave(7, "L_sk1")
        A("s_waitcnt lgkmcnt(0)\ns_lshl_b32 s63, s2, 7\ns_add_u32 s63, s63, %d\nv_mov_b32 v20, s70\nv_mov_b32 v21, s%d\nv_mov_b32 v22, 0" % (WS_MK, sTAG))
        A("s_mov_b64 exec, 1\nbuffer_store_dwordx2 v[20:21], v22, %s, s63 offen sc1\ns_mov_b64 exec, -1" % WS)
        A("s_cmp_lg_u32 s2, 255\ns_cbranch_scc1 L_sk1")
        A("v_lshlrev_b32 v48, 9, v%d\ns_mov_b32 s64, %d" % (vL, WS_MK))
        poll(["buffer_load_dwordx2 v[%d:%d], v48, %s, s64 offen offset:%d sc1" % (32 + 2 * a, 33 + 2 * a, WS, 128 * a) for a in range(4)], [33, 35, 37, 39], 8)
        for a in range(4): A("v_subrev_u32 v%d, s70, v%d" % (32 + 2 * a, 32 + 2 * a))
        A("v_min_i32 v40, v32, v34\nv_min_i32 v41, v36, v38\nv_min_i32 v40, v40, v41\nv_max_i32 v42, v32, v34\nv_max_i32 v41, v36, v38\nv_max_i32 v42, v42, v41\ns_nop 1")
        for r, op in ((40, "v_min_i32"), (42, "v_max_i32")):
            for c in ("quad_perm:[1,0,3,2]", "quad_perm:[2,3,0,1]", "row_half_mirror", "row_mirror"):
                dpp(op, r, r, r, c); A("s_nop 1")
            xrows(op, r, 44)
        A("v_sub_u32 v42, v42, v40\ns_nop 0\nv_readfirstlane_b32 s63, v42\nv_readfirstlane_b32 s62, v40\ns_mul_i32 s63, s63, %d\ns_add_u32 s63, s63, 6000\ns_add_u32 s63, s63, s62" % (skewprobe - 1))
        A("L_skl:\ns_sleep 4\ns_memrealtime s[64:65]\ns_waitcnt lgkmcnt(0)\ns_sub_u32 s64, s64, s70\ns_cmp_lt_u32 s64, s63\ns_cbranch_scc1 L_skl")
        A("L_sk1:")
    if probe:
        ST("end")
        name, sign, waves = probe
        A("s_waitcnt lgkmcnt(0)")
        A("s_lshl_b32 s63, 1, s3\ns_and_b32 s63, s63, %d\ns_cbranch_scc0 L_pe" % waves)
        A("s_and_b32 s63, s2, 7\ns_lshl_b32 s63, 1, s63\ns_and_b32 s63, s63, %d\ns_cbranch_scc0 L_pe" % pslot)
        if prow is not None: A("s_lshr_b32 s63, s2, 3\ns_cmp_lg_u32 s63, %d\ns_cbranch_scc1 L_pe" % prow)
        if name == "W": A("s_cmp_ge_u32 s%d, 120\ns_cbranch_scc1 L_pe" % sTILE)
        if name == "yg": A("s_cmp_lt_u32 s%d, 96\ns_cbranch_scc1 L_pe" % sRID)
        A("s_sub_u32 s63, s%d, s70" % stn[name])
        if amp > 1: A("s_sub_u32 s63, s63, %d\ns_max_i32 s63, s63, 0\ns_mul_i32 s63, s63, %d" % (aoff, amp))
        if sign < 0: A("s_sub_u32 s63, 4000, s63")
        A("s_add_u32 s63, s63, %d" % pbase)
        A("L_pl:\ns_sleep 4\ns_memrealtime s[64:65]\ns_waitcnt lgkmcnt(0)\ns_sub_u32 s64, s64, s70\ns_cmp_lt_u32 s64, s63\ns_cbranch_scc1 L_pl")
        A("L_pe:")
    if stamp:
        ST("end")
        A("s_waitcnt lgkmcnt(0)")
        A("s_lshl_b32 s63, s2, 3\ns_add_u32 s63, s63, s3\ns_lshl_b32 s63, s63, 6\ns_add_u32 s63, s63, %d\nv_mov_b32 v9, 0" % WS_STAMP)
        for i in range(0, 16, 4):
            for j in range(4):
                A("v_mov_b32 v%d, s%d" % (20 + j, 70 + 2 * (i + j)) if i + j < len(names) else "v_mov_b32 v%d, s71" % (20 + j))
            A("buffer_store_dwordx4 v[20:23], v9, %s, s63 offen offset:%d\ns_nop 1" % (WS, 4 * i))
    A("s_endpgm")
    A("L_bail:")
    A("s_mov_b64 exec, 1\nv_mov_b32 v9, 0\nv_mov_b32 v10, 0xdead\nglobal_store_dword v9, v10, s[26:27]")
    A("L_end:\ns_endpgm")
    L.append('.section .rodata,"a"\n.p2align 6\n.amdhsa_kernel %s_kernel' % NAME)
    L.append("  .amdhsa_next_free_vgpr 256\n  .amdhsa_next_free_sgpr 102\n  .amdhsa_accum_offset 256\n  .amdhsa_group_segment_fixed_size 0\n  .amdhsa_kernarg_size 104\n  .amdhsa_user_sgpr_count 2\n  .amdhsa_user_sgpr_kernarg_segment_ptr 1\n  .amdhsa_system_sgpr_workgroup_id_x 1\n.end_amdhsa_kernel")
    if warm:
        i0 = L.index("L_pub:"); i1 = L.index("L_exit:")
        out = L[:i0 + 1]; n = 0; k = 0; hold = False
        def size(t):
            if t.startswith(("buffer_", "global_", "ds_", "v_pk_", "v_cvt_pk", "v_lshl_add", "v_add3", "v_mfma", "v_bfe", "s_memrealtime")) or "_dpp" in t or "0xffff0000" in t or "s[68:69]" in t and t.startswith("v_"): return 8
            import re
            m = re.findall(r"(?<![\w\[:])(0x[0-9a-f]+|\d+)(?![\w\]:])", t.split(None, 1)[1]) if " " in t and not t.startswith(("s_waitcnt", "s_nop", "s_sleep")) else []
            return 8 if any(int(x, 0) > 64 for x in m) else 4
        out.append("L_pad0:"); out.append("    s_cbranch_execz L_pad1"); k = 1
        for ln in L[i0 + 1:i1]:
            t = ln.strip()
            if t.startswith("L_spin") or t.startswith("s_branch L_chk"): hold = True
            out.append(ln)
            if t.endswith(":"): continue
            if hold and t == "s_mov_b64 exec, -1": hold = False
            n += size(t)
            if n >= warm and not hold and not t.startswith(("s_branch", "s_cmp", "s_mov_b32 exec", "s_mov_b64 exec, 0x", "s_mov_b64 exec, 1")):
                out.append("L_pad%d:" % k); out.append("    s_cbranch_execz L_pad%d" % (k + 1)); k += 1; n = 4
        out[-1:] = out[-1:]
        out.append("L_pad%d:" % k); out.append("    s_cbranch_execz L_warm_ret")
        L[:] = out + L[i1:]
    if now2:
        L[:] = [ln for ln in L if not (ln.strip().startswith("buffer_load") and ("s[48:51]" in ln or "s[52:55]" in ln))]
    if noside:
        out = []; inh = False
        for i, ln in enumerate(L):
            if ln == "L_helper:": inh = True
            if ln == "L_noep:": inh = False
            if inh:
                t = ln.strip()
                if t.startswith("buffer_store") and "s" in noside: continue
                if t.startswith("buffer_load") and "l" in noside: continue
                if t.startswith("global_load") and "x" in noside: continue
                if t.startswith("s_wqm_b64 exec, vcc"): ln = "    s_and_b64 vcc, 0, 0"
            out.append(ln)
        L[:] = out
    return "\n".join(L) + "\n"
```

```python
import gen6, asmlib, hazard, json, sys, shutil
ref = open("gated_mix__gqa_block_cached__glu_gated_glu__decode.s.ref").read().split("\n")
layout = "\n".join(l for l in ref if l.startswith("; Kernarg") or l.startswith(";   offset")) + "\n"
doc = """;
; Hand-offs go through d_ws as 8-byte {payload, tag} granules, sc1 stores and sc1 polling loads. The tag is a bijective
"""
cfg = dict(d=6, p1=30, p2=110, qk_at=44, touch=4, pt=50, tx=0, tpol="sc1", dend=[122, 12], ypre=4, spin=2000000)
if len(sys.argv) > 2: cfg.update(json.loads(sys.argv[2]))
out = sys.argv[1]
open(out, "w").write(gen6.gen(header=layout + doc, **cfg))
asmlib.build(out)
assert hazard.check(out) == 0
```

```python
import sys, struct
NAME = "gated_mix__gqa_block_cached__glu_gated_glu__decode"
def f2u(x): return struct.unpack("<I", struct.pack("<f", x))[0]
LOG2E = 1.4426950408889634

WS_EPOCH = 0
WS_QG = 0x1000
WS_ML = 0x20000
WS_OP = 0x40000
WS_YP = 0xC0000
WS_MK = 0x140000
WS_STAMP = 0x400000
WS_USED = 0x180000
LDS_A = 0
LDS_Q = 4096
LDS_M = 5120
LDS_L = 5184
LDS_F = 5248
LDS_H = 5312
LDS_C = 5376
LDS_o = 5632
LDS_R = 5888
HFS = 1152
WVS = 2304
LDS_O = 6400
LDS_K = LDS_O + 4 * WVS
assert LDS_K % 256 == 0
LDS_END = LDS_K + 4 * 12288

class VM:
    def __init__(self): self.ops = []
    def issue(self, name, counted=True, w=None): self.ops.append((name, counted, (1.0 if counted else None) if w is None else w))
    def after(self, name):
        idx = max(i for i, (n, c, w) in enumerate(self.ops) if n == name)
        return sum(1 for n, c, w in self.ops[idx + 1:] if c)
    def pace_n(self, room):
        n = 0; tot = 0.0
        for name, c, w in reversed(self.ops):
            if w is None: continue
            if tot + w > room: return n, True
            tot += w; n += 1
        return n, False

def gen(d=5, dpat=None, d0=None, pol="nt", kpol=None, wpol="nt", w2pol="", stamp=False,
        p1=22, p2=100, pe=123, qk_at=37, outpol="", stpol="sc1", ldpol="sc1", spin=200000, header=None, probe=None, pbase=6000,
        sleep1=0, sleep2=0, nap=2, sprio=1, dend=None, lds_pad=0, adapt=None, db=7, alev=None, win=8, mkstr=7, npeer=16, adelay=True, aw=6, skewprobe=0, gprobe=None, pslot=255, prow=None, p0=None, thr=None, pm=16, pend=126, noside=None, pub4=True, ns1=1, ns2=1, stag=3, amp=1, aoff=2000, preG=True, preP=False, b5b=True, ssl=0, now2=False, touch=0, pt=116, tx=1, tpol="", tearly=False, tout=False, par=0, dodd=None, nred=64, plate=0, pbase0=0, tlb=0, xmap=False, lateg=0, stlb=0, pstl=12, cpre=0, estamp=None, ld2pol=None, st2pol=None, warm=0, ystamp=False):
    if kpol is None: kpol = pol
    if d0 is None: d0 = d
    if ld2pol is None: ld2pol = ldpol
    if st2pol is None: st2pol = stpol
    L = []
    def A(s):
        for line in s.strip("\n").split("\n"):
            t = line.strip()
            L.append(t if t.endswith(":") else "    " + t)
    vm = VM()
    diag = stamp or probe or skewprobe or gprobe
    names = ["start", "W", "pubA", "qw", "q", "exp", "pubML", "V7", "B5", "pubO", "og", "pubY", "yg", "end"]
    stn = {n: 70 + 2 * i for i, n in enumerate(names)}
    def ST(name):
        if diag and (not gprobe or name in ("start", "end", gprobe[0])): A("s_memrealtime s[%d:%d]" % (stn[name], stn[name] + 1))
    def wait(name, extra=0):
        n = vm.after(name) + extra
        assert n <= 63
        A("s_waitcnt vmcnt(%d)" % n)
    npace = [0]; amode = [False]
    def pace(dd=None, w=1.0):
        if dodd and dd is None:
            de = dpat[npace[0] % len(dpat)] if dpat else d
            do = dodd[npace[0] % len(dodd)]
            npace[0] += 1
            (ne, need_e), (no, need_o) = vm.pace_n(de - w), vm.pace_n(do - w)
            if max(ne, no) != min(ne, no):
                l1 = newlabel("pc")
                if need_e and need_o: A("s_waitcnt vmcnt(%d)" % max(ne, no))
                A("s_cbranch_%s %s\ns_waitcnt vmcnt(%d)\n%s:" % ("vccnz" if ne < no else "vccz", l1, min(ne, no), l1))
            elif need_e: A("s_waitcnt vmcnt(%d)" % ne)
            return
        if amode[0] and dd is None:
            l1 = newlabel("pc")
            dd = dpat[npace[0] % len(dpat)] if dpat else d
            npace[0] += 1
            A("s_waitcnt vmcnt(%d)\ns_cbranch_vccnz %s\ns_waitcnt vmcnt(%d)\n%s:" % (vm.pace_n(db - w)[0], l1, vm.pace_n(dd - w)[0], l1))
            return
        if dd is None:
            dd = dpat[npace[0] % len(dpat)] if dpat else d
            npace[0] += 1
        n, need = vm.pace_n(dd - w)
        if need: A("s_waitcnt vmcnt(%d)" % n)
    lab = [0]
    def newlabel(p):
        lab[0] += 1; return "L_%s%d" % (p, lab[0])

    vL, vVO, vSP, vG = 1, 3, 4, 8
    Q0, O0, AX0, S0 = 16, 16, 24, 32
    vKS, vKR = 88, 92
    YA, PUB, vWO, vWD2, vHH = 64, 72, 76, 77, 78
    WOR, WDR, WOF, T = 128, 144, 160, 192
    def buf(i): return 96 + 16 * (i % 10)
    def Kreg(t): return buf(t)
    def Vreg(t): return buf(t + 6)
    sK, sV, sW, sWS, sWO, sWD = 32, 36, 40, 44, 48, 52
    sB, sREST, sTAG, sSTR = 30, 31, 56, 58
    sKO, sVO, sSLOT, sM0 = 66, 67, 59, 101
    sTILE, sRID = (57, 61) if xmap else (sREST, sREST)
    WS = "s[%d:%d]" % (sWS, sWS + 3)
    tstep = 4 * 4096

    def dpp(op, dst, a, b, ctrl):
        A("%s_dpp v%d, v%d, v%d %s row_mask:0xf bank_mask:0xf" % (op, dst, a, b, ctrl))
    def xrows(op, x, t):
        A("v_mov_b32 v%d, v%d\ns_nop 1\nv_permlane16_swap_b32 v%d, v%d\n%s v%d, v%d, v%d" % (t, x, t, x, op, x, t, x))
        A("v_mov_b32 v%d, v%d\ns_nop 1\nv_permlane32_swap_b32 v%d, v%d\n%s v%d, v%d, v%d" % (t, x, t, x, op, x, t, x))
    def cmpn(tagregs):
        A("v_cmp_ne_u32 vcc, s%d, v%d" % (sTAG, tagregs[0]))
        for r in tagregs[1:]:
            A("v_cmp_ne_u32 s[68:69], s%d, v%d\ns_or_b64 vcc, vcc, s[68:69]" % (sTAG, r))
    def poll(loads, tagregs, sleep=0, first=True):
        lo, lc = newlabel("spin"), newlabel("chk")
        A("s_mov_b32 s62, 0")
        if not first: A("s_branch %s" % lc)
        elif sleep: A("s_branch %s_n" % lo)
        A("%s:" % lo)
        if sleep: A("s_sleep %d\n%s_n:" % (sleep, lo))
        for s in loads: A(s)
        A("s_add_u32 s62, s62, 1\ns_cmp_gt_u32 s62, %d\ns_cbranch_scc1 L_bail" % spin)
        A("%s:" % lc)
        A("s_waitcnt vmcnt(0)")
        cmpn(tagregs)
        A("s_wqm_b64 exec, vcc\ns_cbranch_scc1 %s" % lo)
        A("s_mov_b64 exec, -1")
    def bump(off):
        A("v_mov_b32 v12, 0\nv_mov_b32 v13, 1\ns_mov_b64 exec, 1\nds_add_u32 v12, v13 offset:%d\ns_mov_b64 exec, -1" % off)
    def await_lds(off, val, sleep):
        lo = newlabel("lw")
        A("v_mov_b32 v12, 0\ns_mov_b32 s62, 0\ns_branch %s_n\n%s:" % (lo, lo))
        if sleep: A("s_sleep %d" % sleep)
        A("%s_n:\nds_read_b32 v13, v12 offset:%d\ns_add_u32 s62, s62, 1\ns_cmp_gt_u32 s62, %d\ns_cbranch_scc1 L_bail" % (lo, off, spin * 8))
        A("s_waitcnt lgkmcnt(0)\nv_readfirstlane_b32 s63, v13\ns_cmp_lt_u32 s63, %d\ns_cbranch_scc1 %s" % (val, lo))
    def only_wave(w, skip): A("s_cmp_lg_u32 s3, %d\ns_cbranch_scc1 %s" % (w, skip))

    def srds2():
        A("s_mov_b32 s%d, s28\ns_mov_b32 s%d, s29\ns_mov_b32 s%d, %d\ns_mov_b32 s%d, 0x20000" % (sWS, sWS + 1, sWS + 2, 0x500000 if stamp else WS_USED, sWS + 3))
        A("s_mov_b32 s%d, s12\ns_mov_b32 s%d, s13\ns_mov_b32 s%d, 0x400000\ns_mov_b32 s%d, 0x20000" % (sWO, sWO + 1, sWO + 2, sWO + 3))
        A("s_mov_b32 s%d, s20\ns_mov_b32 s%d, s21\ns_mov_b32 s%d, 1835008\ns_mov_b32 s%d, 0x20000" % (sWD, sWD + 1, sWD + 2, sWD + 3))
    def tag():
        A("s_waitcnt lgkmcnt(0)")
        A("s_mul_i32 s%d, s%d, 0x9e3779b5\ns_add_u32 s%d, s%d, 0x7f4a7c15" % (sTAG, sTAG, sTAG, sTAG))
    def w2_prep():
        A("v_lshrrev_b32 v9, 3, v%d\nv_and_b32 v12, 7, v%d\nv_lshlrev_b32 v%d, 4, v12\nv_lshl_add_u32 v%d, v9, 10, v%d" % (vL, vL, vWO, vWO, vWO))
        A("v_cmp_gt_u32 s[68:69], 6, v9\nv_mov_b32 v13, 0x10000000\ns_mul_i32 s58, s%d, %d\ns_lshl_b32 s64, s3, 7\ns_add_u32 s58, s58, s64" % (sREST, 14 * 1024))
        A("v_cndmask_b32 v%d, v13, v%d, s[68:69]\ns_lshl_b32 s57, s%d, 15\ns_add_u32 s57, s57, s64" % (vWD2, vWO, sREST))
    def load_wo(a):
        A("buffer_load_dwordx4 v[%d:%d], v%d, s[%d:%d], s57 offen %s" % (WOR + 4 * a, WOR + 4 * a + 3, vWO, sWO, sWO + 3, w2pol))
        vm.issue("wo")
        if a < 3: A("s_add_u32 s57, s57, 8192")
    def load_wd(a):
        if a == 1: A("s_add_u32 s58, s58, 8192")
        A("buffer_load_dwordx4 v[%d:%d], v%d, s[%d:%d], s58 offen %s" % (WDR + 4 * a, WDR + 4 * a + 3, vWD2 if a else vWO, sWD, sWD + 3, w2pol)); vm.issue("wd")

    L.append((header or "") + "; @launch grid=(256,1,1) block=(512,1,1) lds=%d" % (LDS_END + lds_pad))
    if stamp: L.append("; stamps: " + " ".join(names))
    L.append('.amdgcn_target "amdgcn-amd-amdhsa--gfx950"\n.text\n.globl %s_kernel\n.p2align 8\n.type %s_kernel,@function\n%s_kernel:' % (NAME, NAME, NAME))
    A("s_cmp_ge_u32 s2, 256\ns_cbranch_scc1 L_end")
    A("s_load_dwordx16 s[4:19], s[0:1], 0\ns_load_dwordx8 s[20:27], s[0:1], 64\ns_load_dwordx2 s[28:29], s[0:1], 96")
    ST("start")
    A("v_lshrrev_b32 v9, 6, v0\nv_and_b32 v%d, 63, v0\nv_readfirstlane_b32 s3, v9" % vL)
    A("s_bfe_u32 s%d, s2, 0x10003" % sB)
    A("s_and_b32 s%d, s2, 7\ns_lshr_b32 s63, s2, 4\ns_lshl_b32 s63, s63, 3\ns_or_b32 s%d, s%d, s63" % (sREST, sREST, sREST))
    if xmap: A("s_mov_b32 s%d, s%d" % (sRID, sREST))
    if xmap:
        A("s_and_b32 s64, s2, 7\ns_lshr_b32 s63, s2, 4\ns_lshl_b32 s%d, s64, 4\ns_or_b32 s%d, s%d, s63" % (sREST, sREST, sREST))
        A("s_sub_u32 s%d, s%d, s64\ns_cmp_eq_u32 s63, 15\ns_cselect_b32 s%d, 127, s%d" % (sTILE, sREST, sTILE, sTILE))
    A("s_lshl_b32 s%d, s%d, 7\ns_add_u32 s%d, s%d, s%d" % (sSLOT, sB, sSLOT, sSLOT, sREST))
    A("v_lshrrev_b32 v10, 4, v%d\nv_and_b32 v11, 15, v%d\nv_lshlrev_b32 v%d, 4, v%d" % (vL, vL, vVO, vL))
    A("s_cmp_ge_u32 s3, 4\ns_cbranch_scc1 L_helper")

    if sprio: A("s_setprio %d" % sprio)
    A("v_lshlrev_b32 v12, 2, v10\nv_xor_b32 v12, v12, v11\nv_lshlrev_b32 v12, 4, v12\nv_lshl_add_u32 v%d, v10, 8, v12" % vKS)
    for i in range(1, 4): A("v_xor_b32 v%d, %d, v%d" % (vKS + i, 16 * i, vKS))
    A("s_lshl_b32 s%d, s3, 12\ns_mov_b32 s%d, s%d" % (sKO, sVO, sKO))
    A("s_lshl_b32 s65, s%d, 18" % sSLOT)
    A("s_mul_i32 s%d, s3, 12288\ns_add_u32 s%d, s%d, %d" % (sM0, sM0, sM0, LDS_K))
    A("s_movk_i32 s%d, 3584\ns_cmp_lt_u32 s%d, 64\ns_cselect_b32 s%d, 8192, s%d" % (sSTR, sTILE, sSTR, sSTR))
    A("s_lshl_b32 s63, s%d, 4\nv_mul_u32_u24 v12, s63, v10\nv_lshl_add_u32 v12, v11, 3, v12" % sSTR)
    A("s_lshl_b32 s62, s%d, 2\ns_add_u32 s62, s62, s3\ns_lshl_b32 s62, s62, 6" % sB)
    A("v_bfe_u32 v13, v11, 2, 1\nv_lshlrev_b32 v13, 10, v13\nv_lshl_add_u32 v13, v10, 5, v13\ns_lshl_b32 s63, s62, 1\nv_add_u32 v13, s63, v13")
    A("s_mul_i32 s63, s62, s%d" % sSTR)
    A("s_sub_u32 s64, s%d, 64\ns_cmp_lt_u32 s%d, 64\ns_cselect_b32 s64, s%d, s64\ns_sub_u32 s62, s%d, 92\ns_cmp_ge_u32 s%d, 92\ns_cselect_b32 s64, s62, s64\ns_lshl_b32 s64, s64, 7" % (sTILE, sTILE, sTILE, sTILE, sTILE))
    A("s_mul_i32 s%d, s%d, 511\ns_add_u32 s%d, s%d, 128\ns_mov_b32 s%d, 0x20000" % (sW + 2, sSTR, sW + 2, sW + 2, sW + 3))
    A("s_mov_b32 s%d, 0x40000\ns_mov_b32 s%d, 0x20000" % (sK + 2, sK + 3))
    A("s_waitcnt lgkmcnt(0)")
    if estamp == "karg": ST("q")
    A("s_add_u32 s%d, s6, s65\ns_addc_u32 s%d, s7, 0" % (sK, sK + 1))
    A("s_cmp_ge_u32 s%d, 120\ns_cbranch_scc1 L_noA1" % sTILE)
    A("s_cmp_lt_u32 s%d, 64\ns_cselect_b32 s%d, s10, s16\ns_cselect_b32 s%d, s11, s17" % (sTILE, sW, sW + 1))
    A("s_cmp_ge_u32 s%d, 92\ns_cselect_b32 s%d, s18, s%d\ns_cselect_b32 s%d, s19, s%d" % (sTILE, sW, sW, sW + 1, sW + 1))
    A("s_add_u32 s%d, s%d, s64\ns_addc_u32 s%d, s%d, 0" % (sW, sW, sW + 1, sW + 1))
    A("global_load_dwordx4 v[64:67], v13, s[4:5]\nglobal_load_dwordx4 v[68:71], v13, s[4:5] offset:16")
    if estamp == "x": A("s_waitcnt vmcnt(0)"); ST("q")
    vm.issue("X", False); vm.issue("X", False)
    for q in range(16):
        pace(d0, 0.5)
        A("buffer_load_dwordx2 v[%d:%d], v12, s[%d:%d], s63 offen %s" % (32 + 2 * q, 33 + 2 * q, sW, sW + 3, wpol))
        vm.issue("W%d" % q, False, 0.5)
        if q < 15: A("s_add_u32 s63, s63, s%d" % sSTR)
    A("L_noA1:")
    if estamp == "x": A("s_cmp_lt_u32 s%d, 120\ns_cbranch_scc1 L_es1" % sTILE); ST("q"); A("L_es1:")
    if estamp == "w": ST("q")
    slots = {}
    def at(i, f): slots.setdefault(i, []).append(f)
    def loadK(t, i):
        if i == 0:
            A("s_add_u32 s63, s%d, %d\ns_mov_b32 m0, s63" % (sM0, (t % 3) * 4096))
            A("s_waitcnt lgkmcnt(0)" if t >= 3 else "s_nop 0")
        A("buffer_load_dwordx4 v%d, s[%d:%d], s%d offen offset:%d %s lds" % (vKS + i, sK, sK + 3, sKO, 1024 * i, kpol))
        vm.issue("K%d" % t)
        if i == 3 and t < 15: A("s_add_u32 s%d, s%d, %d" % (sKO, sKO, tstep))
    def readK(t):
        wait("K%d" % t)
        for i in range(4):
            A("ds_read_b128 v[%d:%d], v%d offset:%d" % (Kreg(t) + 4 * i, Kreg(t) + 4 * i + 3, vKR + i, (t % 3) * 4096))
    def loadV(t, i):
        A("buffer_load_dwordx4 v[%d:%d], v%d, s[%d:%d], s%d offen offset:%d %s" % (Vreg(t) + 4 * i, Vreg(t) + 4 * i + 3, vVO, sV, sV + 3, sVO, 1024 * i, pol))
        vm.issue("V%d.%d" % (t, i))
        if i == 3 and t < 15: A("s_add_u32 s%d, s%d, %d" % (sVO, sVO, tstep))
    def setup2():
        A("s_load_dword s%d, s[28:29], %d" % (sTAG, WS_EPOCH))
        A("s_barrier")
        A("s_add_u32 s%d, s8, s65\ns_addc_u32 s%d, s9, 0\ns_mov_b32 s%d, 0x40000\ns_mov_b32 s%d, 0x20000" % (sV, sV + 1, sV + 2, sV + 3))
        A("v_and_b32 v9, 1, v%d\nv_cmp_eq_u32 vcc, 1, v9\nv_mov_b32 v12, 0x0c0c0100\nv_mov_b32 v9, 0x01000c0c\nv_mov_b32 v13, 0x0c0c0302\nv_mov_b32 v15, 0x03020c0c" % vL)
        A("v_cndmask_b32 v12, v12, v9, vcc\nv_cndmask_b32 v13, v13, v15, vcc")
        A("v_and_b32 v9, 2, v%d\nv_cmp_eq_u32 vcc, 2, v9\nv_mov_b32 v15, 0x0c0c0c0c\ns_nop 0" % vL)
        A("v_cndmask_b32 v%d, v12, v15, vcc\nv_cndmask_b32 v%d, v15, v12, vcc\nv_cndmask_b32 v%d, v13, v15, vcc\nv_cndmask_b32 v%d, v15, v13, vcc" % (vSP, vSP + 1, vSP + 2, vSP + 3))
        A("v_and_b32 v12, 3, v11\nv_lshlrev_b32 v12, 10, v12\nv_lshrrev_b32 v13, 2, v11\nv_lshl_add_u32 v12, v13, 8, v12\nv_xor_b32 v13, v10, v11\nv_lshl_add_u32 v12, v13, 4, v12\nv_add_u32 v%d, s%d, v12" % (vKR, sM0))
        for i in range(1, 4): A("v_xor_b32 v%d, %d, v%d" % (vKR + i, 64 * i, vKR))
        if dodd: A("s_getreg_b32 s63, hwreg(HW_REG_XCC_ID, 0, 1)\ns_cmp_eq_u32 s63, 1\ns_cselect_b64 vcc, -1, 0")
    def phaseA(half):
        def f():
            l1 = newlabel("skipA")
            A("s_cmp_ge_u32 s%d, 120\ns_cbranch_scc1 %s" % (sTILE, l1))
            A("s_waitcnt vmcnt(%d)" % (vm.after("W15") + (8 if half == 0 else 0)))
            for u in range(8 * half, 8 * half + 8):
                for j2 in range(2):
                    A("v_perm_b32 v%d, v%d, v%d, v%d" % (96 + 2 * (u & 7) + j2, 64 + (u >> 1), 64 + (u >> 1), vSP + 2 * (u & 1) + j2))
            for u in range(8 * half, 8 * half + 8):
                A("v_mfma_f32_16x16x16_bf16 v[72:75], v[%d:%d], v[%d:%d], %s" % (96 + 2 * (u & 7), 97 + 2 * (u & 7), 32 + 2 * u, 33 + 2 * u, "0" if u == 0 else "v[72:75]"))
            if half == 1:
                ST("W")
                A("s_lshl_b32 s63, s3, 10\nv_add_u32 v9, s63, v%d\ns_nop 6" % vVO)
                A("ds_write_b128 v9, v[72:75] offset:%d" % LDS_A)
                bump(LDS_C)
            A("%s:" % l1)
        return f
    def progress(val):
        def f():
            l1 = newlabel("pg")
            only_wave(0, l1)
            A("v_mov_b32 v12, 0\nv_mov_b32 v13, %d\nds_write_b32 v12, v13 offset:%d" % (val, LDS_C + 12))
            A("%s:" % l1)
        return f
    def q_wait():
        ST("qw")
        A("v_lshrrev_b32 v9, 2, v11\nv_lshlrev_b32 v9, 8, v9\nv_lshl_add_u32 v9, v10, 4, v9")
        await_lds(LDS_C + 8, 4, 0)
        for i in range(4):
            A("ds_read_b128 v[%d:%d], v9 offset:%d" % (Q0 + 4 * i, Q0 + 4 * i + 3, LDS_Q + 64 * i))
    def qk(ts):
        def f():
            A("s_waitcnt lgkmcnt(0)")
            for t in ts:
                for i in range(4):
                    A("v_mfma_f32_16x16x32_bf16 v[%d:%d], v[%d:%d], v[%d:%d], %s" % (S0 + 4 * t, S0 + 4 * t + 3, Kreg(t) + 4 * i, Kreg(t) + 4 * i + 3, Q0 + 4 * i, Q0 + 4 * i + 3,
                      "0" if i == 0 else "v[%d:%d]" % (S0 + 4 * t, S0 + 4 * t + 3)))
        return f
    def smax():
        A("v_max3_f32 v9, v32, v33, v34\nv_max3_f32 v14, v35, v36, v37")
        rs = list(range(38, 96))
        for k in range(0, len(rs), 2): A("v_max3_f32 v%d, v%d, v%d, v%d" % ((9, 14)[(k >> 1) & 1], (9, 14)[(k >> 1) & 1], rs[k], rs[k + 1]))
        A("v_max_f32 v9, v9, v14")
        A("s_mov_b32 s65, 0x%08x" % f2u(128 ** -0.5 * LOG2E))
        xrows("v_max_f32", 9, 12)
        A("v_mul_f32 v9, s65, v9")
    def sexp(lo, hi):
        def f():
            for r in range(lo, hi): A("v_fma_f32 v%d, v%d, s65, -v9" % (r, r))
            for r in range(lo, hi): A("v_exp_f32 v%d, v%d" % (r, r))
            if hi == 96: ST("exp")
        return f
    def ssum(lo, hi):
        def f():
            for r in range(lo, hi, 2):
                if r == 32: A("v_mov_b32 v14, v32\nv_mov_b32 v15, v33")
                else: A("v_pk_add_f32 v[14:15], v[14:15], v[%d:%d]" % (r, r + 1))
            for r in range(lo, hi, 2): A("v_cvt_pk_bf16_f32 v%d, v%d, v%d" % (32 + (r - 32) // 2, r, r + 1))
            if hi == 96:
                A("v_add_f32 v15, v15, v14")
                xrows("v_add_f32", 15, 14)
                A("v_lshrrev_b32 v14, 2, v11\nv_lshlrev_b32 v14, 4, v14\ns_lshl_b32 s63, s3, 2\nv_add_u32 v14, s63, v14")
                A("ds_write_b32 v14, v9 offset:%d\nds_write_b32 v14, v15 offset:%d" % (LDS_M, LDS_L))
                bump(LDS_C + 4)
        return f
    def expand(t):
        for r in range(4):
            for j2 in range(2):
                A("v_perm_b32 v%d, v%d, v%d, v%d" % (AX0 + 2 * r + j2, 32 + 2 * t + (r >> 1), 32 + 2 * t + (r >> 1), vSP + 2 * (r & 1) + j2))
    def pvm(t, r):
        for hf in range(2):
            A("v_mfma_f32_16x16x16_bf16 v[%d:%d], v[%d:%d], v[%d:%d], %s" % (O0 + 4 * hf, O0 + 4 * hf + 3, AX0 + 2 * r, AX0 + 2 * r + 1,
              Vreg(t) + 4 * r + 2 * hf, Vreg(t) + 4 * r + 2 * hf + 1, "0" if (t == 0 and r == 0) else "v[%d:%d]" % (O0 + 4 * hf, O0 + 4 * hf + 3)))
    def pv(t):
        def f():
            expand(t); wait("V%d.3" % t)
            for r in range(4): pvm(t, r)
        return f
    def s_prep():
        srds2(); tag(); w2_prep()
        A("v_lshlrev_b32 v10, 4, v%d\ns_mul_i32 s63, s3, %d\nv_add_u32 v10, s63, v10" % (vL, WVS))
        A("v_mov_b32 v15, 0\ns_mov_b32 s60, 1")
        A("v_mov_b32 v%d, s%d\nv_mov_b32 v%d, s%d" % (PUB + 1, sTAG, PUB + 3, sTAG))
    dm = max(dpat) if dpat else d
    if adapt or p0 is not None or par: dm = max(dm, db)
    if dodd: dm = max(dm, max(dodd))
    dmv = max(dm, dend[1]) if dend else dm
    assert 4 <= dm <= 8
    at(0, setup2)
    at(1, phaseA(0)); at(min(dm, 6), phaseA(1))
    assert min(dm, 6) < 3 + dm
    for t in range(16): at(4 * t + 3 + dm, lambda t=t: readK(t))
    for p in sorted(set([p1, p2, pe] + ([lateg] if lateg else []) + ([pstl] if stlb else []) + ([pt] if touch else []) + (adapt or []) + ([p0] if p0 is not None else []))): at(p, progress(p))
    if p0 is not None or par:
        if p0 is not None:
            at(pm - 1, lambda: A("v_mov_b32 v2, 0\nds_read_b32 v0, v2 offset:%d" % (LDS_C + 16)))
            at(pm, lambda: A("s_waitcnt lgkmcnt(0)"))
        else: at(pm, lambda: A("v_mov_b32 v0, 0"))
        if par: at(pm, lambda: A("s_getreg_b32 s63, hwreg(HW_REG_XCC_ID, 0, 1)\ns_mul_i32 s63, s63, %d\ns_getreg_b32 s64, hwreg(HW_REG_XCC_ID, 2, 1)\ns_mul_i32 s64, s64, %d\ns_add_u32 s63, s63, s64\ns_add_u32 s63, s63, %d\nv_add_u32 v0, s63, v0" % (par, plate, pbase0)))
        if stamp: at(pm, lambda: A("s_nop 0\nv_readfirstlane_b32 s71, v0"))
        for j, p in enumerate(range(pm, pend, win)):
            at(p, lambda j=j: A("v_cmp_le_u32 vcc, %d, v0" % thr[j % len(thr)]))
        at(pend, lambda: A("s_mov_b64 vcc, 0"))
    if adapt:
        a0 = adapt[0] + win
        at(a0 - 1, lambda: A("s_mov_b64 vcc, 0"))
        for j, p in enumerate(range(a0, 126, win)):
            at(p, lambda: A("v_mov_b32 v2, 0\nds_read_b32 v0, v2 offset:%d" % (LDS_C + 16)))
            at(p + 1, lambda j=j: A("s_waitcnt lgkmcnt(0)\nv_and_b32 v0, %d, v0\nv_cmp_ne_u32 vcc, 0, v0" % (1 << (j % 8))))
    at(qk_at - 1, q_wait)
    t = 0; s = qk_at
    while t < 16:
        ts = [u for u in (t, t + 1) if u < 16 and 4 * u + 3 + dm < s and (u < 14 or s >= 64)]
        if ts:
            assert all(s < 4 * (u + 10) + 3 + dm for u in ts)
            at(s, qk(ts)); t += len(ts); slast = s
        s += 1
    at(slast + 1, smax)
    for k in range(4): at(slast + 2 + k, sexp(32 + 16 * k, 48 + 16 * k))
    at(slast + 6, ssum(32, 64)); at(slast + 7, ssum(64, 96))
    nxt = slast + 8; late = []
    for t in range(15):
        nxt = max(nxt, 67 + 4 * t + dmv)
        if nxt <= 127: at(nxt, pv(t))
        else: late.append(t)
        assert t + 10 > 15 or nxt < 64 + 4 * (t + 10)
        nxt += 1
    at(113, s_prep)
    if isinstance(estamp, int): at(estamp, lambda: ST("q"))
    if stamp:
        at(16, lambda: ST("pubA")); at(96, lambda: ST("pubML")); at(112, lambda: ST("yg")); at(56, lambda: ST("q"))
    for i in range(128):
        if adapt and i == adapt[0] + win: amode[0] = True
        if (p0 is not None or par) and i == pm + 1: amode[0] = True
        if dodd and i == 0: pace(d0)
        elif dend and i >= dend[0]: pace(dend[1])
        else: pace()
        if i < 64: loadK(i >> 2, i & 3)
        else: loadV((i - 64) >> 2, i & 3)
        for f in slots.get(i, []): f()
    amode[0] = False
    for t in late: pv(t)()
    expand(15)
    for r in range(4):
        wait("V15.%d" % r)
        if r == 3: ST("V7")
        pvm(15, r)
    A("s_nop 6")
    A("ds_write_b128 v10, v[16:19] offset:%d\nds_write_b128 v10, v[20:23] offset:%d" % (LDS_O, LDS_O + HFS))
    A("s_waitcnt lgkmcnt(0)\ns_barrier")
    ST("B5")
    if ssl: A("s_sleep %d" % ssl)
    opl = "buffer_load_dwordx4 v[%d:%d], v15, %s, s100 offen %s" % (T, T + 3, WS, ld2pol)
    A("s_branch L_join")

    A("L_helper:")
    A("v_mov_b32 v12, 0\nv_mov_b32 v13, 0\nv_mov_b32 v14, 0\nv_mov_b32 v15, 0\nds_write_b128 v12, v[12:15] offset:%d" % LDS_C)
    if adapt or p0 is not None: A("ds_write_b32 v12, v12 offset:%d" % (LDS_C + 16))
    A("s_waitcnt lgkmcnt(0)")
    A("s_load_dword s%d, s[28:29], %d" % (sTAG, WS_EPOCH))
    A("s_barrier")
    srds2()
    if cpre:
        if cpre == 1: A("s_cmp_lt_u32 s%d, 120\ns_cbranch_scc1 L_nocp" % sTILE)
        A("s_getpc_b64 s[34:35]\nL_pc0:\ns_sub_u32 s34, s34, L_pc0-%s_kernel\ns_subb_u32 s35, s35, 0" % NAME)
        A("s_and_b32 s63, s3, 3\ns_lshl_b32 s63, s63, 10\nv_add_u32 v32, s63, v%d" % vVO)
        for k in range(4):
            A("v_min_u32 v33, L_end-%s_kernel-16, v32\nglobal_load_dwordx4 v[36:39], v33, s[34:35]\nv_add_u32 v32, 4096, v32" % NAME)
        A("L_nocp:")
    if tlb:
        only_wave(6, "L_notlb")
        A("s_lshl_b32 s63, s%d, 18\ns_add_u32 s63, s63, 0x3ff80\nv_mov_b32 v32, s63\ns_lshl_b32 s63, s%d, 15\nv_mov_b32 v33, s63\ns_mul_i32 s63, s%d, %d\nv_mov_b32 v34, s63\nv_mov_b32 v35, 0\ns_mov_b64 exec, 1" % (sSLOT, sREST, sREST, 14 * 1024))
        if tlb & 1: A("global_load_dword v36, v32, s[8:9] nt")
        if tlb & 2: A("global_load_dword v37, v33, s[12:13] nt\nglobal_load_dword v38, v34, s[20:21] nt")
        if tlb & 4: A("global_load_dword v39, v35, s[24:25] nt")
        A("s_mov_b64 exec, -1\nL_notlb:")
    if lateg:
        tag()
    if stlb:
        only_wave(6, "L_nostlb")
        await_lds(LDS_C + 12, pstl, nap)
        A("s_lshl_b32 s63, s%d, 18\ns_add_u32 s32, s8, s63\ns_addc_u32 s33, s9, 0\ns_lshl_b32 s63, s%d, 15\ns_add_u32 s34, s12, s63\ns_addc_u32 s35, s13, 0\ns_mul_i32 s63, s%d, %d\ns_add_u32 s36, s20, s63\ns_addc_u32 s37, s21, 0" % (sSLOT, sREST, sREST, 14 * 1024))
        if stlb & 1: A("s_load_dword s38, s[32:33], 0")
        if stlb & 2: A("s_load_dword s39, s[34:35], 0\ns_load_dword s40, s[36:37], 0")
        if stlb & 4: A("s_load_dword s41, s[24:25], 0")
        A("L_nostlb:")
    only_wave(5, "L_nox")
    if lateg: await_lds(LDS_C + 12, lateg, nap)
    A("s_lshl_b32 s63, s%d, 10\nv_add_u32 v9, s63, v%d" % (sB, vVO))
    A("global_load_dwordx4 v[32:35], v9, s[4:5]\nglobal_load_dwordx4 v[36:39], v%d, s[22:23]" % vVO)
    if tearly:
        A("s_lshl_b32 s63, s%d, 7\ns_add_u32 s63, s63, %d\nv_mov_b32 v12, 0\nbuffer_load_dword v44, v12, %s, s63 offen %s" % (sSLOT, WS_ML, WS, tpol))
    A("s_waitcnt vmcnt(0)")
    A("v_dot2_f32_bf16 v%d, v32, v36, 0" % vG)
    for i in range(1, 4): A("v_dot2_f32_bf16 v%d, v%d, v%d, v%d" % (vG, 32 + i, 36 + i, vG))
    A("s_nop 2")
    for c in ("quad_perm:[1,0,3,2]", "quad_perm:[2,3,0,1]", "row_half_mirror", "row_mirror"):
        dpp("v_add_f32", vG, vG, vG, c); A("s_nop 1")
    xrows("v_add_f32", vG, 9)
    A("v_mul_f32 v%d, 0x%08x, v%d\nv_exp_f32 v%d, v%d\ns_nop 0\nv_add_f32 v%d, 1.0, v%d\nv_rcp_f32 v%d, v%d" % (vG, f2u(-LOG2E), vG, vG, vG, vG, vG, vG, vG))
    A("L_nox:")
    if not lateg: tag()
    only_wave(4, "L_noA2")
    A("s_cmp_ge_u32 s%d, 120\ns_cbranch_scc1 L_noA2" % sTILE)
    if pub4:
        A("v_and_b32 v14, 31, v%d\nv_lshlrev_b32 v9, 4, v14\nv_lshrrev_b32 v15, 5, v%d\nv_lshl_add_u32 v9, v15, 3, v9" % (vL, vL))
        A("v_lshrrev_b32 v14, 4, v14\nv_mul_u32_u24 v14, %d, v14\nv_add_u32 v14, v14, v%d" % (30720 - 256, vVO))
    else:
        A("v_lshlrev_b32 v9, 3, v%d\nv_lshrrev_b32 v14, 5, v%d\nv_mul_u32_u24 v14, %d, v14\nv_add_u32 v14, v14, v9" % (vL, vL, 30720 - 256))
    A("s_mul_i32 s64, s%d, 61440\ns_lshl_b32 s65, s%d, 8\ns_add_u32 s64, s64, s65\ns_add_u32 s64, s64, %d" % (sB, sTILE, WS_QG))
    if tearly:
        A("s_mov_b32 exec_hi, 0\nbuffer_load_dwordx4 v[44:47], v14, %s, s64 offen %s\ns_mov_b32 exec_hi, -1" % (WS, tpol))
    await_lds(LDS_C, 4, 1)
    for w in range(4):
        A("ds_read_b64 v[%d:%d], v9 offset:%d" % (32 + 2 * w, 33 + 2 * w, LDS_A + 1024 * w))
    A("s_waitcnt lgkmcnt(0)\nv_pk_add_f32 v[32:33], v[32:33], v[34:35]\nv_pk_add_f32 v[36:37], v[36:37], v[38:39]\nv_pk_add_f32 v[32:33], v[32:33], v[36:37]")
    if pub4:
        A("v_cvt_pk_bf16_f32 v36, v32, v33\nv_cvt_pk_bf16_f32 v38, v32, v33\nv_mov_b32 v37, s%d\nv_mov_b32 v39, s%d\nv_permlane32_swap_b32 v36, v38\ns_mov_b32 exec_hi, 0" % (sTAG, sTAG))
        A("buffer_store_dwordx4 v[36:39], v14, %s, s64 offen %s\ns_mov_b32 exec_hi, -1" % (WS, stpol))
    else:
        A("v_cvt_pk_bf16_f32 v32, v32, v33\nv_mov_b32 v33, s%d" % sTAG)
        A("buffer_store_dwordx2 v[32:33], v14, %s, s64 offen %s" % (WS, stpol))
    A("L_noA2:")
    ST("pubA")
    def adapt_cps(cs, setup=False):
        l1 = newlabel("noad")
        if setup:
            nrow = npeer // 8; span = 32 // nrow
            A("s_lshr_b32 s64, s2, 3\ns_and_b32 s60, s64, %d\ns_mul_i32 s60, s60, %d\ns_lshr_b32 s64, s64, %d\ns_lshl_b32 s64, s64, 3\ns_and_b32 s63, s2, 7\ns_add_u32 s64, s64, s63\ns_add_u32 s64, s64, s60" % (span - 1, npeer, span.bit_length() - 1))
            A("s_lshl_b32 s64, s64, %d\ns_add_u32 s66, s64, %d\ns_lshl_b32 s60, s60, %d\ns_add_u32 s60, s60, %d" % (mkstr, WS_MK, mkstr, WS_MK))
            A("v_and_b32 v50, %d, v%d\nv_lshlrev_b32 v50, %d, v50\nv_mov_b32 v51, 0\nv_mov_b32 v52, s%d" % (npeer - 1, vL, mkstr, sTAG))
            if stamp: A("s_mov_b32 s71, 0")
        only_wave(aw, l1)
        for c in cs:
            await_lds(LDS_C + 12, adapt[c], 1)
            A("s_mov_b64 exec, 1\nbuffer_store_dword v52, v51, %s, s66 offen %s\ns_mov_b64 exec, -1" % (WS, stpol))
            if adelay: A("s_waitcnt vmcnt(0)")
            A("buffer_load_dword v53, v50, %s, s60 offen %s" % (WS, ldpol))
            A("s_add_u32 s66, s66, 32768\ns_add_u32 s60, s60, 32768\ns_waitcnt vmcnt(0)")
            A("v_cmp_eq_u32 vcc, s%d, v53\ns_bcnt1_i32_b64 s63, vcc\ns_mov_b32 s61, 0" % sTAG)
            for thr, m in alev:
                A("s_cmp_ge_u32 s63, %d\ns_cselect_b32 s61, %d, s61" % (thr, m))
            A("v_mov_b32 v53, s61\nds_write_b32 v51, v53 offset:%d" % (LDS_C + 16))
            if stamp: A("s_min_u32 s63, s63, 63\ns_lshl_b32 s63, s63, %d\ns_or_b32 s71, s71, s63" % (6 * c))
        A("%s:" % l1)
    if adapt: adapt_cps([c for c, cp in enumerate(adapt) if cp < p1], True)
    A("v_lshrrev_b32 v40, 5, v%d\nv_mul_u32_u24 v40, %d, v40\nv_add_u32 v40, v40, v%d" % (vL, 61440 - 512, vVO))
    A("s_mul_i32 s98, s%d, 30720\ns_lshr_b32 s64, s%d, 4\ns_lshl_b32 s64, s64, 11\ns_add_u32 s98, s98, s64\ns_and_b32 s65, s3, 3\ns_lshl_b32 s64, s65, 9\ns_add_u32 s98, s98, s64\ns_add_u32 s98, s98, %d" % (sB, sREST, WS_QG))
    qld = "buffer_load_dwordx4 v[32:35], v40, %s, s98 offen %s" % (WS, ldpol)
    if p0 is None:
        await_lds(LDS_C + 12, p1, nap)
        poll([qld], [33, 35], 4)
    else:
        await_lds(LDS_C + 12, p0, 1)
        A(qld + "\ns_waitcnt vmcnt(0)")
        cmpn([33, 35])
        A("s_wqm_b64 s[60:61], vcc\ns_bcnt0_i32_b64 s63, s[60:61]\nv_mov_b32 v12, 0\nv_mov_b32 v13, s63\ns_mov_b64 exec, 1\nds_add_u32 v12, v13 offset:%d\ns_mov_b64 exec, -1" % (LDS_C + 16))
        A("s_cmp_eq_u32 s63, 64\ns_cbranch_scc1 L_qok")
        await_lds(LDS_C + 12, p1, nap)
        A("s_mov_b64 exec, s[60:61]")
        poll([qld], [33, 35], 4)
        A("L_qok:")
    A("v_mov_b32 v36, v32\nv_mov_b32 v37, v34\ns_lshl_b32 s63, s65, 8\ns_add_u32 s63, s63, %d\nv_permlane32_swap_b32 v36, v32\nv_permlane32_swap_b32 v37, v34" % LDS_Q)
    for a, b in ((36, 32), (37, 34)):
        A("v_lshlrev_b32 v12, 16, v%d\nv_lshlrev_b32 v13, 16, v%d\nv_and_b32 v14, 0xffff0000, v%d\nv_and_b32 v15, 0xffff0000, v%d" % (a, b, a, b))
        A("v_add_f32 v12, v12, v13\nv_add_f32 v14, v14, v15\nv_cvt_pk_bf16_f32 v%d, v12, v14" % a)
    A("v_and_b32 v9, 31, v%d\nv_lshl_add_u32 v9, v9, 3, s63" % vL)
    A("ds_write2_b32 v9, v36, v37 offset0:0 offset1:1")
    bump(LDS_C + 8)
    if touch & 4:
        await_lds(LDS_C + 12, pt, nap)
        A(("s_xor_b32 s63, s%d, %d\ns_lshl_b32 s63, s63, 11" % (sSLOT, tx)) if tx else "s_lshl_b32 s63, s%d, 11" % sSLOT)
        A("s_and_b32 s64, s3, 1\ns_lshl_b32 s64, s64, 10\ns_add_u32 s63, s63, s64\ns_add_u32 s63, s63, %d" % WS_OP)
        A("s_and_b32 s64, s3, 2\ns_mul_i32 s64, s64, %d\ns_add_u32 s63, s63, s64" % ((WS_YP - WS_OP) // 2))
        A("buffer_load_dwordx4 v[%d:%d], v%d, %s, s63 offen %s" % (T + 20, T + 23, vVO, WS, tpol))
    if warm:
        only_wave(4, "L_warm_ret")
        A("s_mov_b64 exec, 0\ns_branch L_pad0\nL_warm_ret:\ns_mov_b64 exec, -1")
    only_wave(5, "L_noside")
    A("v_min_u32 v40, 13, v11\nv_lshrrev_b32 v40, 1, v40\nv_lshlrev_b32 v40, 3, v40")
    A("s_mul_i32 s63, s%d, 7\ns_mul_i32 s64, s%d, 3840\ns_add_u32 s63, s63, s64\ns_lshl_b32 s63, s63, 3\ns_add_u32 s63, s63, %d" % (sREST, sB, WS_QG + 2048 * 8))
    A("v_and_b32 v41, 1, v10\nv_mul_u32_u24 v41, 61440, v41\nv_lshrrev_b32 v42, 1, v10\nv_mul_u32_u24 v42, %d, v42\nv_add3_u32 v40, v40, v41, v42\nv_add_u32 v40, s63, v40" % (896 * 8))
    poll(["buffer_load_dwordx2 v[32:33], v40, %s, 0 offen %s" % (WS, ldpol)], [33], 4)
    A("v_and_b32 v34, 1, v%d\nv_cmp_eq_u32 vcc, 1, v34\nv_lshlrev_b32 v34, 16, v32\nv_and_b32 v35, 0xffff0000, v32" % vL)
    A("v_cndmask_b32 v34, v34, v35, vcc\nv_cmp_gt_u32 vcc, 14, v11\nv_mov_b32 v35, v34\ns_nop 1\nv_permlane16_swap_b32 v35, v34\nv_add_f32 v34, v34, v35")
    A("v_mov_b32 v36, v34\ns_nop 1\nv_permlane32_swap_b32 v34, v36")
    A("v_mul_f32 v34, 0x%08x, v34\nv_exp_f32 v34, v34\nv_sub_f32 v37, 1.0, v%d\nv_add_f32 v34, 1.0, v34\nv_rcp_f32 v34, v34\nv_mul_f32 v36, v36, v37" % (f2u(-LOG2E), vG))
    A("v_mul_f32 v34, v34, v36\nv_cndmask_b32 v34, 0, v34, vcc")
    A("v_and_b32 v35, 7, v11\nv_lshlrev_b32 v35, 3, v35\nv_lshrrev_b32 v36, 3, v11\nv_lshl_add_u32 v35, v36, 2, v35")
    A("ds_write_b32 v35, v34 offset:%d" % LDS_H)
    A("v_and_b32 v40, 3, v%d\nv_lshlrev_b32 v40, 4, v40\nv_bfe_u32 v41, v%d, 2, 1\nv_lshl_add_u32 v41, v41, 6, v40" % (vL, vL))
    A("s_lshl_b32 s64, s%d, 7\ns_add_u32 s64, s64, %d\nv_mov_b32 v45, s%d\nv_mov_b32 v47, s%d" % (sSLOT, WS_ML, sTAG, sTAG))
    await_lds(LDS_C + 4, 4, nap)
    A("ds_read_b128 v[32:35], v40 offset:%d\nds_read_b128 v[36:39], v40 offset:%d" % (LDS_M, LDS_L))
    A("v_and_b32 v42, 12, v%d\nv_add_u32 v42, v42, v40\nds_read_b32 v43, v42 offset:%d" % (vL, LDS_M))
    A("s_waitcnt lgkmcnt(0)\nv_max3_f32 v44, v32, v33, v34\nv_max_f32 v44, v44, v35")
    for w in range(4): A("v_sub_f32 v%d, v%d, v44" % (32 + w, 32 + w))
    for w in range(4): A("v_exp_f32 v%d, v%d" % (32 + w, 32 + w))
    A("v_mul_f32 v46, v32, v36")
    for w in range(1, 4): A("v_fmac_f32 v46, v%d, v%d" % (32 + w, 36 + w))
    A("s_mov_b64 exec, 0xff")
    A("buffer_store_dwordx4 v[44:47], v41, %s, s64 offen %s" % (WS, stpol))
    A("s_mov_b64 exec, -1")
    ST("pubML")
    A("s_and_b32 s64, s%d, 0xf0\ns_lshl_b32 s64, s64, 7\ns_add_u32 s64, s64, %d" % (sSLOT, WS_ML))
    A("v_lshrrev_b32 v41, 2, v%d\nv_lshl_add_u32 v41, v41, 7, v40" % vL)
    await_lds(LDS_C + 12, p2, nap)
    poll(["buffer_load_dwordx4 v[32:35], v41, %s, s64 offen %s" % (WS, ldpol)], [33, 35], 4)
    A("v_mov_b32 v36, v32\ns_nop 1")
    for c in ("row_ror:4", "row_ror:8"):
        dpp("v_max_f32", 36, 36, 36, c); A("s_nop 1")
    xrows("v_max_f32", 36, 37)
    A("v_sub_f32 v37, v32, v36\nv_exp_f32 v37, v37\ns_nop 0\nv_mul_f32 v37, v37, v34\ns_nop 1")
    for c in ("row_ror:4", "row_ror:8"):
        dpp("v_add_f32", 37, 37, 37, c); A("s_nop 1")
    xrows("v_add_f32", 37, 38)
    A("v_sub_f32 v43, v43, v36\nv_rcp_f32 v37, v37\nv_exp_f32 v43, v43\nv_mul_f32 v37, v37, v%d\nv_mul_f32 v43, v43, v37" % vG)
    A("ds_write_b32 v42, v43 offset:%d" % LDS_F)
    A("L_noside:")
    if adapt: adapt_cps([c for c, cp in enumerate(adapt) if cp >= p1])
    A("s_cmp_lg_u32 s2, 255\ns_cbranch_scc1 L_noep")
    only_wave(7, "L_noep")
    A("v_lshlrev_b32 v48, 9, v%d\ns_mov_b32 s64, %d" % (vL, WS_ML))
    await_lds(LDS_C + 12, pe, nap)
    poll(["buffer_load_dwordx4 v[%d:%d], v48, %s, s64 offen offset:%d %s" % (32 + 4 * a, 35 + 4 * a, WS, 128 * a, ldpol) for a in range(4)], [33 + 2 * a for a in range(8)], 8)
    A("v_mov_b32 v48, %d\nv_mov_b32 v49, s%d\ns_mov_b64 exec, 1" % (WS_EPOCH, sTAG))
    A("buffer_store_dword v49, v48, %s, 0 offen %s" % (WS, stpol))
    A("s_mov_b64 exec, -1")
    A("L_noep:")
    w2_prep()
    A("v_lshrrev_b32 v11, 1, v%d\nv_lshlrev_b32 v11, 4, v11\nv_and_b32 v13, 1, v%d\nv_mul_u32_u24 v13, %d, v13" % (vL, vL, HFS))
    A("s_and_b32 s65, s3, 1\ns_lshl_b32 s63, s65, 9\nv_add3_u32 v11, v11, v13, s63")
    A("v_lshrrev_b32 v14, 5, v%d\nv_lshlrev_b32 v14, 4, v14\ns_lshl_b32 s63, s65, 5\nv_add_u32 v14, s63, v14" % vL)
    A("s_lshl_b32 s99, s%d, 11\ns_lshl_b32 s63, s65, 10\ns_add_u32 s99, s99, s63\ns_add_u32 s99, s99, %d" % (sSLOT, WS_OP))
    A("v_lshlrev_b32 v15, 11, v9\nv_lshl_add_u32 v15, v12, 4, v15")
    A("s_and_b32 s100, s%d, 0xf0\ns_lshl_b32 s63, s65, 3\ns_add_u32 s100, s100, s63\ns_lshl_b32 s100, s100, 11\ns_and_b32 s63, s%d, 15\ns_lshl_b32 s63, s63, 7\ns_add_u32 s100, s100, s63\ns_add_u32 s100, s100, %d" % (sSLOT, sREST, WS_OP))
    A("v_mov_b32 v%d, s%d\nv_mov_b32 v%d, s%d" % (PUB + 1, sTAG, PUB + 3, sTAG))
    if touch & 3 or tout:
        await_lds(LDS_C + 12, pt, nap)
        if touch & 1:
            A("s_cmp_ge_u32 s3, 6\ns_cbranch_scc0 L_t1")
            A(opl)
            A("L_t1:")
        if tout:
            A("s_cmp_lt_u32 s%d, 96\ns_cbranch_scc1 L_t3\ns_lshl_b32 s63, s%d, 10\ns_sub_u32 s64, s%d, 96\ns_lshr_b32 s64, s64, 2\ns_lshl_b32 s64, s64, 7\ns_add_u32 s63, s63, s64\nv_mov_b32 v12, s63" % (sRID, sB, sRID))
            only_wave(4, "L_t3")
            A("global_load_dword v%d, v12, s[24:25]\nL_t3:" % (T + 21))
        if touch & 2:
            A("s_cmp_lt_u32 s%d, 96\ns_cbranch_scc1 L_t2" % sRID)
            A("v_lshrrev_b32 v12, 2, v%d\nv_lshlrev_b32 v12, 11, v12\nv_and_b32 v13, 3, v%d\nv_lshl_add_u32 v12, v13, 4, v12" % (vL, vL))
            A("s_lshl_b32 s64, s%d, 7\ns_and_b32 s63, s3, 3\ns_lshl_b32 s63, s63, 5\ns_add_u32 s64, s64, s63\ns_lshl_b32 s64, s64, 11\ns_sub_u32 s63, s%d, 96\ns_lshl_b32 s63, s63, 6\ns_add_u32 s64, s64, s63\ns_add_u32 s64, s64, %d\ns_add_u32 s63, s64, 32768" % (sB, sRID, WS_YP))
            A("buffer_load_dwordx4 v[%d:%d], v12, %s, s64 offen %s\nbuffer_load_dwordx4 v[%d:%d], v12, %s, s63 offen %s" % (T + 20, T + 23, WS, ldpol, T + 20, T + 23, WS, ldpol))
            A("L_t2:")
    A("s_cmp_ge_u32 s3, 6\ns_cselect_b32 s60, %d, %d" % (0 if preG else 1, 0 if preP else 1))
    if preG or preP:
        A("s_cmp_eq_u32 s60, 1\ns_cbranch_scc1 L_nopre")
        await_lds(LDS_C + 12, pe, nap)
        load_wd(0); load_wd(1)
        for a in range(4): load_wo(a)
        A("L_nopre:")
    A("s_waitcnt lgkmcnt(0)\ns_barrier")
    ST("B5")
    x = lambda k: T + k
    A("s_cmp_ge_u32 s3, 6\ns_cbranch_scc0 L_pub")
    A(opl)
    A("s_branch L_join\nL_pub:")
    A("ds_read_b128 v[%d:%d], v14 offset:%d" % (x(16), x(19), LDS_F))
    for w in range(4):
        A("ds_read_b128 v[%d:%d], v11 offset:%d" % (x(4 * w), x(4 * w + 3), LDS_O + w * WVS))
    for w in range(4):
        A("s_waitcnt lgkmcnt(%d)" % (3 - w))
        for j in (0, 2):
            sel = "op_sel:[0,%d,0] op_sel_hi:[1,%d,1]" % (w & 1, w & 1)
            if w == 0: A("v_pk_mul_f32 v[%d:%d], v[%d:%d], v[%d:%d] op_sel:[0,0] op_sel_hi:[1,0]" % (x(j), x(j + 1), x(j), x(j + 1), x(16), x(17)))
            else: A("v_pk_fma_f32 v[%d:%d], v[%d:%d], v[%d:%d], v[%d:%d] %s" % (x(j), x(j + 1), x(4 * w + j), x(4 * w + j + 1), x(16 + (w & 2)), x(17 + (w & 2)), x(j), x(j + 1), sel))
    A("v_cvt_pk_bf16_f32 v%d, v%d, v%d\nv_cvt_pk_bf16_f32 v%d, v%d, v%d" % (PUB, x(0), x(1), PUB + 2, x(2), x(3)))
    A("buffer_store_dwordx4 v[%d:%d], v%d, %s, s99 offen %s" % (PUB, PUB + 3, vVO, WS, st2pol))

    A("L_join:")
    ST("pubO")
    if b5b: A("s_barrier")
    A("s_cmp_eq_u32 s60, 0\ns_cbranch_scc1 L_nopost")
    load_wd(0); load_wd(1)
    for a in range(4): load_wo(a)
    A("L_nopost:")
    A("v_lshlrev_b32 v13, 3, v9\nds_read_b64 v[%d:%d], v13 offset:%d" % (vHH, vHH + 1, LDS_H))
    A("v_lshlrev_b32 v13, 4, v9")
    A("v_and_b32 v12, 7, v%d\nv_lshrrev_b32 v80, 4, v%d" % (vL, vL))
    A("v_lshlrev_b32 v14, 4, v12\nv_lshrrev_b32 v81, 1, v80\nv_lshl_add_u32 v14, v81, 7, v14")
    A("s_lshl_b32 s99, s%d, 11\ns_lshl_b32 s63, s3, 8\ns_add_u32 s99, s99, s63\ns_add_u32 s99, s99, %d" % (sSLOT, WS_YP))
    A("v_and_b32 v11, 1, v12\nv_lshlrev_b32 v11, 6, v11\nv_lshl_add_u32 v11, v80, 4, v11\nv_lshrrev_b32 v12, 1, v12\nv_lshl_add_u32 v11, v12, 2, v11\ns_and_b32 s63, s3, 1\ns_lshl_b32 s63, s63, 7\nv_add_u32 v11, s63, v11")
    A("s_waitcnt vmcnt(4)\ns_cmp_eq_u32 s60, 1\ns_cbranch_scc1 L_wd\ns_waitcnt vmcnt(1)\nL_wd:")
    A("s_waitcnt lgkmcnt(0)")
    for a in range(2):
        for j in range(4):
            A("v_lshlrev_b32 v80, 16, v%d\nv_and_b32 v81, 0xffff0000, v%d" % (WDR + 4 * a + j, WDR + 4 * a + j))
            op = "v_mul_f32" if a == 0 else "v_fmac_f32"
            A("%s v%d, v%d, v80\n%s v%d, v%d, v81" % (op, YA + 2 * j, vHH + a, op, YA + 2 * j + 1, vHH + a))
    A("s_cmp_eq_u32 s60, 0\ns_cbranch_scc1 L_wo\ns_waitcnt vmcnt(0)\nL_wo:")
    for r in range(16):
        A("v_lshlrev_b32 v%d, 16, v%d\nv_and_b32 v%d, 0xffff0000, v%d" % (WOF + 2 * r, WOR + r, WOF + 2 * r + 1, WOR + r))
    def unpack4(b):
        A("v_lshlrev_b32 v%d, 16, v%d\nv_lshlrev_b32 v%d, 16, v%d\nv_and_b32 v%d, 0xffff0000, v%d\nv_and_b32 v%d, 0xffff0000, v%d\ns_nop 0" % (x(4), b, x(6), b + 2, x(5), b, x(7), b + 2))
    def mpoll(ns, sleep):
        if ns == 1:
            poll([opl], [x(1), x(3)], sleep, first=False); unpack4(x(0)); return
        base = [x(0)] + [x(8 + 4 * k) for k in range(ns - 1)]
        ld = lambda k: "buffer_load_dwordx4 v[%d:%d], v15, %s, s100 offen %s" % (base[k], base[k] + 3, WS, ld2pol)
        pend = [34, 40, 42, 32][:ns]
        lo, fin = newlabel("mp"), newlabel("mf")
        A("s_waitcnt vmcnt(0)")
        cmpn([base[0] + 1, base[0] + 3])
        A("s_wqm_b64 exec, vcc\ns_cbranch_scc0 %s_0\ns_mov_b32 s62, 0" % fin)
        A("s_mov_b64 s[%d:%d], exec" % (pend[0], pend[0] + 1))
        A(ld(0))
        A("s_mov_b64 exec, -1")
        for k in range(1, ns):
            A("s_mov_b64 s[%d:%d], -1\ns_sleep %d" % (pend[k], pend[k] + 1, stag)); A(ld(k))
        A("%s:" % lo)
        for k in range(ns):
            A("s_mov_b64 exec, s[%d:%d]\ns_waitcnt vmcnt(%d)" % (pend[k], pend[k] + 1, ns - 1))
            cmpn([base[k] + 1, base[k] + 3])
            A("s_wqm_b64 exec, vcc\ns_cbranch_scc0 %s_%d" % (fin, k))
            A("s_mov_b64 s[%d:%d], exec" % (pend[k], pend[k] + 1))
            A(ld(k))
        A("s_add_u32 s62, s62, 1\ns_cmp_gt_u32 s62, %d\ns_cbranch_scc0 %s\ns_branch L_bail" % (spin, lo))
        for k in range(ns - 1, -1, -1):
            A("%s_%d:\ns_mov_b64 exec, -1" % (fin, k)); unpack4(base[k])
            if k: A("s_branch %s" % fin)
        A("%s:" % fin)
    def red4(steps):
        A("v_permlane32_swap_b32 v%d, v%d\nv_permlane32_swap_b32 v%d, v%d\nv_add_f32 v%d, v%d, v%d\nv_add_f32 v%d, v%d, v%d\ns_nop 1" % (x(4), x(6), x(5), x(7), x(4), x(4), x(6), x(5), x(5), x(7)))
        A("v_permlane16_swap_b32 v%d, v%d\nv_add_f32 v%d, v%d, v%d" % (x(4), x(5), x(4), x(4), x(5)))
        for c in steps:
            A("s_nop 1"); dpp("v_add_f32", x(4), x(4), x(4), c)
    A("s_cmp_lt_u32 s3, 6\ns_cbranch_scc1 L_nog2")
    mpoll(ns1, sleep1)
    red4(["row_ror:8"])
    A("ds_write_b32 v11, v%d offset:%d\ns_waitcnt lgkmcnt(0)" % (x(4), LDS_o))
    A("L_nog2:")
    if ystamp != 2: ST("og")
    A("s_barrier")
    y = lambda k: T + 24 + k
    A("ds_read_b128 v[%d:%d], v13 offset:%d\nds_read_b128 v[%d:%d], v13 offset:%d" % (y(0), y(3), LDS_o, y(4), y(7), LDS_o + 128))
    A("s_waitcnt lgkmcnt(0)")
    if ystamp: ST("W")
    A("v_pk_add_f32 v[%d:%d], v[%d:%d], v[%d:%d]\nv_pk_add_f32 v[%d:%d], v[%d:%d], v[%d:%d]" % (y(0), y(1), y(0), y(1), y(4), y(5), y(2), y(3), y(2), y(3), y(6), y(7)))
    for a in range(4):
        for j in range(0, 8, 2):
            lo = a & 1
            A("v_pk_fma_f32 v[%d:%d], v[%d:%d], v[%d:%d], v[%d:%d] op_sel:[0,%d,0] op_sel_hi:[1,%d,1]" % (YA + j, YA + j + 1, WOF + 8 * a + j, WOF + 8 * a + j + 1, y(a & 2), y((a & 2) + 1), YA + j, YA + j + 1, lo, lo))
    if ystamp: ST("qw")
    A("s_nop 1")
    for k in range(4): A("v_permlane32_swap_b32 v%d, v%d" % (YA + k, YA + k + 4))
    for k in range(4): A("v_add_f32 v%d, v%d, v%d" % (YA + k, YA + k, YA + k + 4))
    A("s_nop 0\nv_permlane16_swap_b32 v%d, v%d\nv_permlane16_swap_b32 v%d, v%d" % (YA, YA + 2, YA + 1, YA + 3))
    A("v_add_f32 v%d, v%d, v%d\nv_add_f32 v%d, v%d, v%d\ns_nop 0" % (YA, YA, YA + 2, YA + 1, YA + 1, YA + 3))
    dpp("v_add_f32", YA, YA, YA, "row_ror:8"); dpp("v_add_f32", YA + 1, YA + 1, YA + 1, "row_ror:8")
    A("v_cvt_pk_bf16_f32 v%d, v%d, v%d\nv_cvt_pk_bf16_f32 v%d, v%d, v%d\ns_nop 1\nv_permlane16_swap_b32 v%d, v%d" % (PUB + 2, YA, YA + 1, PUB, YA, YA + 1, PUB, PUB + 2))
    A("s_mov_b32 exec_lo, 0xff\ns_mov_b32 exec_hi, 0xff")
    A("buffer_store_dwordx4 v[%d:%d], v14, %s, s99 offen %s" % (PUB, PUB + 3, WS, st2pol))
    A("s_mov_b64 exec, -1")
    ST("pubY")
    if nred == 64:
        A("s_cmp_lt_u32 s%d, 96\ns_cbranch_scc1 L_exit" % sRID)
        A("v_lshrrev_b32 v15, 2, v%d\nv_lshlrev_b32 v15, 11, v15\nv_and_b32 v9, 3, v%d\nv_lshl_add_u32 v15, v9, 4, v15" % (vL, vL))
        A("s_lshl_b32 s100, s%d, 7\ns_lshl_b32 s63, s3, 4\ns_add_u32 s100, s100, s63\ns_lshl_b32 s100, s100, 11\ns_sub_u32 s64, s%d, 96\ns_lshl_b32 s63, s64, 6\ns_add_u32 s100, s100, s63\ns_add_u32 s100, s100, %d" % (sB, sRID, WS_YP))
        A(opl)
        A("v_lshlrev_b32 v9, 4, v9\nv_lshrrev_b32 v10, 4, v%d\nv_lshl_add_u32 v9, v10, 2, v9\ns_lshl_b32 s63, s3, 6\nv_add_u32 v9, s63, v9" % vL)
        A("v_and_b32 v10, 7, v%d\nv_lshlrev_b32 v11, 3, v10\nv_lshrrev_b32 v12, 1, v10\nv_and_b32 v10, 1, v10\nv_lshlrev_b32 v10, 2, v10\nv_lshl_add_u32 v10, v12, 4, v10" % vL)
        A("s_lshl_b32 s63, s%d, 10\ns_lshr_b32 s65, s64, 2\ns_lshl_b32 s65, s65, 7\ns_add_u32 s63, s63, s65\ns_and_b32 s65, s64, 1\ns_lshl_b32 s65, s65, 6\ns_add_u32 s63, s63, s65\ns_and_b32 s65, s64, 2\ns_lshl_b32 s65, s65, 2\ns_add_u32 s63, s63, s65\nv_add_u32 v10, s63, v10" % sB)
        mpoll(ns2, sleep2)
        ST("yg")
        red4(["row_ror:4", "row_ror:8"])
        A("ds_write_b32 v9, v%d offset:%d\ns_waitcnt lgkmcnt(0)\ns_barrier" % (x(4), LDS_R))
        only_wave(0, "L_exit")
        for w in range(8):
            A("ds_read_b64 v[%d:%d], v11 offset:%d" % (64 + 2 * w, 65 + 2 * w, LDS_R + 64 * w))
        A("s_waitcnt lgkmcnt(4)\nv_pk_add_f32 v[64:65], v[64:65], v[66:67]\nv_pk_add_f32 v[68:69], v[68:69], v[70:71]\nv_pk_add_f32 v[64:65], v[64:65], v[68:69]")
        A("s_waitcnt lgkmcnt(0)\nv_pk_add_f32 v[72:73], v[72:73], v[74:75]\nv_pk_add_f32 v[76:77], v[76:77], v[78:79]\nv_pk_add_f32 v[72:73], v[72:73], v[76:77]\nv_pk_add_f32 v[64:65], v[64:65], v[72:73]")
        A("s_mov_b64 exec, 0xff\nv_cvt_pk_bf16_f32 v64, v64, v65")
    else:
        A("s_cmp_lt_u32 s%d, 112\ns_cbranch_scc1 L_exit" % sRID)
        A("v_lshrrev_b32 v15, 3, v%d\nv_lshlrev_b32 v15, 11, v15\nv_and_b32 v9, 7, v%d\nv_lshl_add_u32 v15, v9, 4, v15" % (vL, vL))
        A("s_lshl_b32 s100, s%d, 7\ns_lshl_b32 s63, s3, 4\ns_add_u32 s100, s100, s63\ns_lshl_b32 s100, s100, 11\ns_sub_u32 s64, s%d, 112\ns_lshl_b32 s63, s64, 7\ns_add_u32 s100, s100, s63\ns_add_u32 s100, s100, %d\ns_add_u32 s99, s100, 16384" % (sB, sRID, WS_YP))
        fl = [opl, "buffer_load_dwordx4 v[%d:%d], v15, %s, s99 offen %s" % (x(8), x(11), WS, ldpol)]
        A(fl[0]); A(fl[1])
        A("v_lshlrev_b32 v9, 4, v9\nv_lshrrev_b32 v10, 4, v%d\nv_lshl_add_u32 v9, v10, 2, v9\ns_lshl_b32 s63, s3, 7\nv_add_u32 v9, s63, v9" % vL)
        A("v_and_b32 v10, 15, v%d\nv_lshlrev_b32 v11, 3, v10\nv_lshrrev_b32 v12, 1, v10\nv_and_b32 v10, 1, v10\nv_lshlrev_b32 v10, 2, v10\nv_lshl_add_u32 v10, v12, 4, v10" % vL)
        A("s_lshl_b32 s63, s%d, 10\ns_lshr_b32 s65, s64, 1\ns_lshl_b32 s65, s65, 7\ns_add_u32 s63, s63, s65\ns_and_b32 s65, s64, 1\ns_lshl_b32 s65, s65, 3\ns_add_u32 s63, s63, s65\nv_add_u32 v10, s63, v10" % sB)
        poll(fl, [x(1), x(3), x(9), x(11)], sleep2, first=False)
        ST("yg")
        A("v_lshlrev_b32 v%d, 16, v%d\nv_lshlrev_b32 v%d, 16, v%d\nv_and_b32 v%d, 0xffff0000, v%d\nv_and_b32 v%d, 0xffff0000, v%d" % (x(12), x(8), x(14), x(10), x(13), x(8), x(15), x(10)))
        unpack4(x(0))
        A("v_pk_add_f32 v[%d:%d], v[%d:%d], v[%d:%d]\nv_pk_add_f32 v[%d:%d], v[%d:%d], v[%d:%d]\ns_nop 1" % (x(4), x(5), x(4), x(5), x(12), x(13), x(6), x(7), x(6), x(7), x(14), x(15)))
        red4(["row_ror:8"])
        A("ds_write_b32 v9, v%d offset:%d\ns_waitcnt lgkmcnt(0)\ns_barrier" % (x(4), LDS_A))
        only_wave(0, "L_exit")
        for w in range(8):
            A("ds_read_b64 v[%d:%d], v11 offset:%d" % (64 + 2 * w, 65 + 2 * w, LDS_A + 128 * w))
        A("s_waitcnt lgkmcnt(4)\nv_pk_add_f32 v[64:65], v[64:65], v[66:67]\nv_pk_add_f32 v[68:69], v[68:69], v[70:71]\nv_pk_add_f32 v[64:65], v[64:65], v[68:69]")
        A("s_waitcnt lgkmcnt(0)\nv_pk_add_f32 v[72:73], v[72:73], v[74:75]\nv_pk_add_f32 v[76:77], v[76:77], v[78:79]\nv_pk_add_f32 v[72:73], v[72:73], v[76:77]\nv_pk_add_f32 v[64:65], v[64:65], v[72:73]")
        A("s_mov_b64 exec, 0xffff\nv_cvt_pk_bf16_f32 v64, v64, v65")
    A("global_store_dword v10, v64, s[24:25] %s" % outpol)
    A("s_mov_b64 exec, -1")
    A("L_exit:")
    if gprobe:
        name, ref = gprobe
        only_wave(0, "L_gp1")
        ST("end")
        A("s_waitcnt lgkmcnt(0)\ns_lshl_b32 s63, s2, 7\ns_add_u32 s63, s63, %d\nv_mov_b32 v20, s70\nv_mov_b32 v21, s%d\nv_mov_b32 v22, s%d\nv_mov_b32 v23, s%d\nv_mov_b32 v24, 0" % (WS_MK, sTAG, stn[name], sTAG))
        A("s_mov_b64 exec, 1\nbuffer_store_dwordx4 v[20:23], v24, %s, s63 offen sc1\ns_mov_b64 exec, -1" % WS)
        A("L_gp1:")
        only_wave(7, "L_gp2")
        A("s_cmp_lg_u32 s2, 0\ns_cbranch_scc1 L_gp2")
        A("L_gpw:\ns_sleep 16\ns_memrealtime s[64:65]\ns_waitcnt lgkmcnt(0)\ns_sub_u32 s64, s64, s70\ns_cmp_lt_u32 s64, 3500\ns_cbranch_scc1 L_gpw")
        A("v_lshlrev_b32 v48, 9, v%d\ns_mov_b32 s64, %d" % (vL, WS_MK))
        poll(["buffer_load_dwordx4 v[%d:%d], v48, %s, s64 offen offset:%d sc1" % (32 + 4 * a, 35 + 4 * a, WS, 128 * a) for a in range(4)], [33 + 2 * a for a in range(8)], 8)
        for a in range(8): A("v_subrev_u32 v%d, s70, v%d" % (32 + 2 * a, 32 + 2 * a))
        op0 = "v_max_i32" if ref == "late" else "v_min_i32"
        A("%s v50, v32, v36\n%s v51, v40, v44\n%s v50, v50, v51\nv_max_i32 v52, v34, v38\nv_max_i32 v51, v42, v46\nv_max_i32 v52, v52, v51\ns_nop 1" % (op0, op0, op0))
        for r, op in ((50, op0), (52, "v_max_i32")):
            for c in ("quad_perm:[1,0,3,2]", "quad_perm:[2,3,0,1]", "row_half_mirror", "row_mirror"):
                dpp(op, r, r, r, c); A("s_nop 1")
            xrows(op, r, 54)
        A("v_sub_u32 v52, v52, v50\ns_nop 0\nv_readfirstlane_b32 s63, v52\ns_sub_u32 s63, s63, %d\ns_max_i32 s63, s63, 0\ns_mul_i32 s63, s63, 10\ns_add_u32 s63, s63, 6000" % aoff)
        A("L_gpl:\ns_sleep 4\ns_memrealtime s[64:65]\ns_waitcnt lgkmcnt(0)\ns_sub_u32 s64, s64, s70\ns_cmp_lt_u32 s64, s63\ns_cbranch_scc1 L_gpl")
        A("L_gp2:")
    if skewprobe:
        only_wave(7, "L_sk1")
        A("s_waitcnt lgkmcnt(0)\ns_lshl_b32 s63, s2, 7\ns_add_u32 s63, s63, %d\nv_mov_b32 v20, s70\nv_mov_b32 v21, s%d\nv_mov_b32 v22, 0" % (WS_MK, sTAG))
        A("s_mov_b64 exec, 1\nbuffer_store_dwordx2 v[20:21], v22, %s, s63 offen sc1\ns_mov_b64 exec, -1" % WS)
        A("s_cmp_lg_u32 s2, 255\ns_cbranch_scc1 L_sk1")
        A("v_lshlrev_b32 v48, 9, v%d\ns_mov_b32 s64, %d" % (vL, WS_MK))
        poll(["buffer_load_dwordx2 v[%d:%d], v48, %s, s64 offen offset:%d sc1" % (32 + 2 * a, 33 + 2 * a, WS, 128 * a) for a in range(4)], [33, 35, 37, 39], 8)
        for a in range(4): A("v_subrev_u32 v%d, s70, v%d" % (32 + 2 * a, 32 + 2 * a))
        A("v_min_i32 v40, v32, v34\nv_min_i32 v41, v36, v38\nv_min_i32 v40, v40, v41\nv_max_i32 v42, v32, v34\nv_max_i32 v41, v36, v38\nv_max_i32 v42, v42, v41\ns_nop 1")
        for r, op in ((40, "v_min_i32"), (42, "v_max_i32")):
            for c in ("quad_perm:[1,0,3,2]", "quad_perm:[2,3,0,1]", "row_half_mirror", "row_mirror"):
                dpp(op, r, r, r, c); A("s_nop 1")
            xrows(op, r, 44)
        A("v_sub_u32 v42, v42, v40\ns_nop 0\nv_readfirstlane_b32 s63, v42\nv_readfirstlane_b32 s62, v40\ns_mul_i32 s63, s63, %d\ns_add_u32 s63, s63, 6000\ns_add_u32 s63, s63, s62" % (skewprobe - 1))
        A("L_skl:\ns_sleep 4\ns_memrealtime s[64:65]\ns_waitcnt lgkmcnt(0)\ns_sub_u32 s64, s64, s70\ns_cmp_lt_u32 s64, s63\ns_cbranch_scc1 L_skl")
        A("L_sk1:")
    if probe:
        ST("end")
        name, sign, waves = probe
        A("s_waitcnt lgkmcnt(0)")
        A("s_lshl_b32 s63, 1, s3\ns_and_b32 s63, s63, %d\ns_cbranch_scc0 L_pe" % waves)
        A("s_and_b32 s63, s2, 7\ns_lshl_b32 s63, 1, s63\ns_and_b32 s63, s63, %d\ns_cbranch_scc0 L_pe" % pslot)
        if prow is not None: A("s_lshr_b32 s63, s2, 3\ns_cmp_lg_u32 s63, %d\ns_cbranch_scc1 L_pe" % prow)
        if name == "W": A("s_cmp_ge_u32 s%d, 120\ns_cbranch_scc1 L_pe" % sTILE)
        if name == "yg": A("s_cmp_lt_u32 s%d, 96\ns_cbranch_scc1 L_pe" % sRID)
        A("s_sub_u32 s63, s%d, s70" % stn[name])
        if amp > 1: A("s_sub_u32 s63, s63, %d\ns_max_i32 s63, s63, 0\ns_mul_i32 s63, s63, %d" % (aoff, amp))
        if sign < 0: A("s_sub_u32 s63, 4000, s63")
        A("s_add_u32 s63, s63, %d" % pbase)
        A("L_pl:\ns_sleep 4\ns_memrealtime s[64:65]\ns_waitcnt lgkmcnt(0)\ns_sub_u32 s64, s64, s70\ns_cmp_lt_u32 s64, s63\ns_cbranch_scc1 L_pl")
        A("L_pe:")
    if stamp:
        ST("end")
        A("s_waitcnt lgkmcnt(0)")
        A("s_lshl_b32 s63, s2, 3\ns_add_u32 s63, s63, s3\ns_lshl_b32 s63, s63, 6\ns_add_u32 s63, s63, %d\nv_mov_b32 v9, 0" % WS_STAMP)
        for i in range(0, 16, 4):
            for j in range(4):
                A("v_mov_b32 v%d, s%d" % (20 + j, 70 + 2 * (i + j)) if i + j < len(names) else "v_mov_b32 v%d, s71" % (20 + j))
            A("buffer_store_dwordx4 v[20:23], v9, %s, s63 offen offset:%d\ns_nop 1" % (WS, 4 * i))
    A("s_endpgm")
    A("L_bail:")
    A("s_mov_b64 exec, 1\nv_mov_b32 v9, 0\nv_mov_b32 v10, 0xdead\nglobal_store_dword v9, v10, s[26:27]")
    A("L_end:\ns_endpgm")
    L.append('.section .rodata,"a"\n.p2align 6\n.amdhsa_kernel %s_kernel' % NAME)
    L.append("  .amdhsa_next_free_vgpr 256\n  .amdhsa_next_free_sgpr 102\n  .amdhsa_accum_offset 256\n  .amdhsa_group_segment_fixed_size 0\n  .amdhsa_kernarg_size 104\n  .amdhsa_user_sgpr_count 2\n  .amdhsa_user_sgpr_kernarg_segment_ptr 1\n  .amdhsa_system_sgpr_workgroup_id_x 1\n.end_amdhsa_kernel")
    if warm:
        i0 = L.index("L_pub:"); i1 = L.index("L_exit:")
        out = L[:i0 + 1]; n = 0; k = 0; hold = False
        def size(t):
            if t.startswith(("buffer_", "global_", "ds_", "v_pk_", "v_cvt_pk", "v_lshl_add", "v_add3", "v_mfma", "v_bfe", "s_memrealtime")) or "_dpp" in t or "0xffff0000" in t or "s[68:69]" in t and t.startswith("v_"): return 8
            import re
            m = re.findall(r"(?<![\w\[:])(0x[0-9a-f]+|\d+)(?![\w\]:])", t.split(None, 1)[1]) if " " in t and not t.startswith(("s_waitcnt", "s_nop", "s_sleep")) else []
            return 8 if any(int(x, 0) > 64 for x in m) else 4
        out.append("L_pad0:"); out.append("    s_cbranch_execz L_pad1"); k = 1
        for ln in L[i0 + 1:i1]:
            t = ln.strip()
            if t.startswith("L_spin") or t.startswith("s_branch L_chk"): hold = True
            out.append(ln)
            if t.endswith(":"): continue
            if hold and t == "s_mov_b64 exec, -1": hold = False
            n += size(t)
            if n >= warm and not hold and not t.startswith(("s_branch", "s_cmp", "s_mov_b32 exec", "s_mov_b64 exec, 0x", "s_mov_b64 exec, 1")):
                out.append("L_pad%d:" % k); out.append("    s_cbranch_execz L_pad%d" % (k + 1)); k += 1; n = 4
        out[-1:] = out[-1:]
        out.append("L_pad%d:" % k); out.append("    s_cbranch_execz L_warm_ret")
        L[:] = out + L[i1:]
    if now2:
        L[:] = [ln for ln in L if not (ln.strip().startswith("buffer_load") and ("s[48:51]" in ln or "s[52:55]" in ln))]
    if noside:
        out = []; inh = False
        for i, ln in enumerate(L):
            if ln == "L_helper:": inh = True
            if ln == "L_noep:": inh = False
            if inh:
                t = ln.strip()
                if t.startswith("buffer_store") and "s" in noside: continue
                if t.startswith("buffer_load") and "l" in noside: continue
                if t.startswith("global_load") and "x" in noside: continue
                if t.startswith("s_wqm_b64 exec, vcc"): ln = "    s_and_b64 vcc, 0, 0"
            out.append(ln)
        L[:] = out
    return "\n".join(L) + "\n"
```
